```python
import torch

def _softmax(x, axis=-1):
    return torch.softmax(x, dim=axis)
def _gelu(x):
    return torch.nn.functional.gelu(x, approximate="tanh")
def _silu(x):
    return torch.nn.functional.silu(x)
def _sigmoid(x):
    return torch.sigmoid(x)
def _layernorm(x, axis=-1, eps=1e-5):
    m = x.mean(dim=axis, keepdim=True)
    v = x.var(dim=axis, keepdim=True, unbiased=False)
    return (x - m) / torch.sqrt(v + eps)
def _scatter_add(tgt, idx, src, axis=0):
    return tgt.clone().index_add_(axis, idx, src)
def _segment_sum(src, seg, n):
    out = torch.zeros((n,) + src.shape[1:], dtype=src.dtype)
    return out.index_add_(0, seg, src)
def _pad(x, pw):
    flat = tuple(v for pair in reversed(pw) for v in pair)
    return torch.nn.functional.pad(x, flat)

kernel_name = 'concat_heads__gqa_block_cached__mha_block_cached__near_ridge'

def setup_inputs():

    _w = (lambda a: (lambda t: t.to(torch.bfloat16) if t.is_floating_point() else t)(torch.as_tensor(a)))
    def _A_setup():
        B, Sq, D = 32, 48, 512
        Hq, Hkv, Sk, Dh = 32, 8, 512, 128
        assert Hq % Hkv == 0, (Hq, Hkv)
        return {
            "x": _w((lambda *s: torch.randn(*s, dtype=torch.bfloat16) * 0.8)(B, Sq, D)),
            "k_cache": _w((lambda *s: torch.randn(*s, dtype=torch.bfloat16) * 0.8)(B, Hkv, Sk, Dh)),
            "v_cache": _w((lambda *s: torch.randn(*s, dtype=torch.bfloat16) * 0.05)(B, Hkv, Sk, Dh)),
            "wq": _w((lambda *s: torch.randn(*s, dtype=torch.bfloat16) * 0.8)(D, Hq * Dh) * (D ** -0.5)),
            "wo": _w((lambda *s: torch.randn(*s, dtype=torch.bfloat16) * 0.05)(Hq * Dh, D) * ((Hq * Dh) ** -0.5)),
        }
    _A_in = _A_setup()

    def _B_setup():
        B, Sq, D = 32, 48, 512
        H, Sk, Dh = 32, 512, 128
        return {
            "x": _w((lambda *s: torch.randn(*s, dtype=torch.bfloat16) * 0.8)(B, Sq, D)),
            "k_cache": _w((lambda *s: torch.randn(*s, dtype=torch.bfloat16) * 0.8)(B, H, Sk, Dh)),
            "v_cache": _w((lambda *s: torch.randn(*s, dtype=torch.bfloat16) * 0.05)(B, H, Sk, Dh)),
            "wq": _w((lambda *s: torch.randn(*s, dtype=torch.bfloat16) * 0.8)(D, H * Dh) * (D ** -0.5)),
            "wo": _w((lambda *s: torch.randn(*s, dtype=torch.bfloat16) * 0.05)(H * Dh, D) * ((H * Dh) ** -0.5)),
        }
    _B_in = _B_setup()

    return {
        "A_x": _A_in["x"],
        "A_k_cache": _A_in["k_cache"],
        "A_v_cache": _A_in["v_cache"],
        "A_wq": _A_in["wq"],
        "A_wo": _A_in["wo"],
        "B_x": _B_in["x"],
        "B_k_cache": _B_in["k_cache"],
        "B_v_cache": _B_in["v_cache"],
        "B_wq": _B_in["wq"],
        "B_wo": _B_in["wo"],
    }

def reference(A_x, A_k_cache, A_v_cache, A_wq, A_wo, B_x, B_k_cache, B_v_cache, B_wq, B_wo):
    def _A_ref(x, k_cache, v_cache, wq, wo):
        B, Sq, D = x.shape
        Hq, Dh = 32, 128
        Hkv = k_cache.shape[1]
        rep = Hq // Hkv
        q = (lambda x, *d: x.permute(*d))((x @ wq).reshape(B, Sq, Hq, Dh), 0, 2, 1, 3)
        k = (lambda x, n, axis: torch.repeat_interleave(x, n, dim=axis))(k_cache, rep, axis=1)
        v = (lambda x, n, axis: torch.repeat_interleave(x, n, dim=axis))(v_cache, rep, axis=1)
        scores = torch.einsum("bhqd,bhkd->bhqk", q, k) * (Dh ** -0.5)
        p = _softmax(scores, axis=-1)
        o = torch.einsum("bhqk,bhkd->bhqd", p, v)
        return (lambda x, *d: x.permute(*d))(o, 0, 2, 1, 3).reshape(B, Sq, Hq * Dh) @ wo

    def _B_ref(x, k_cache, v_cache, wq, wo):
        B, Sq, D = x.shape
        H, Dh = 32, 128
        q = (lambda x, *d: x.permute(*d))((x @ wq).reshape(B, Sq, H, Dh), 0, 2, 1, 3)
        scores = torch.einsum("bhqd,bhkd->bhqk", q, k_cache) * (Dh ** -0.5)
        p = _softmax(scores, axis=-1)
        o = torch.einsum("bhqk,bhkd->bhqd", p, v_cache)
        return (lambda x, *d: x.permute(*d))(o, 0, 2, 1, 3).reshape(B, Sq, H * Dh) @ wo

    a = _A_ref(A_x, A_k_cache, A_v_cache, A_wq, A_wo)
    b = _B_ref(B_x, B_k_cache, B_v_cache, B_wq, B_wo)
    return torch.concatenate([a, b], axis=-1)
```

```python
import re
TRANS = ("v_exp_f32", "v_log_f32", "v_rcp_f32", "v_rsq_f32", "v_sqrt_f32", "v_sin_f32", "v_cos_f32")
def regs(tok, kind):
    tok = tok.strip()
    if tok.startswith("-"): tok = tok[1:]
    m = re.fullmatch(r"abs\((.*)\)", tok)
    if m: tok = m.group(1)
    m = re.fullmatch(kind + r"(\d+)", tok)
    if m: return [int(m.group(1))]
    m = re.fullmatch(kind + r"\[(\d+):(\d+)\]", tok)
    if m: return list(range(int(m.group(1)), int(m.group(2)) + 1))
    if kind == "s" and tok == "vcc": return [106, 107]
    if kind == "s" and tok == "m0": return [124]
    if kind == "s" and tok == "exec": return [126, 127]
    return []
class I:
    pass
def parse(line):
    s = line.split(";")[0].strip()
    if not s or s.endswith(":") or s.startswith("."):
        return None
    parts = s.split(None, 1)
    i = I(); i.mn = parts[0]
    ops = []
    if len(parts) > 1:
        ops = [o.strip() for o in parts[1].split(",")]
        last = ops[-1].split()
        ops[-1] = last[0] if last else ""
        i.mods = last[1:]
    else:
        i.mods = []
    i.ops = ops
    mn = re.sub(r"_(e32|e64)$", "", i.mn)
    i.base = mn
    i.vw = []; i.vr = []; i.sw = []; i.sr = []
    i.kind = "other"
    V = lambda t: regs(t, "v"); S = lambda t: regs(t, "s")
    if mn.startswith("v_mfma"):
        i.kind = "mfma"
        i.vw = V(ops[0]); i.A = V(ops[1]); i.B = V(ops[2]); i.C = V(ops[3]); i.vr = i.A + i.B + i.C
        i.passes = 4 if "16x16x32" in mn else 8
    elif mn.startswith("v_"):
        i.kind = "valu"
        if mn.startswith("v_cmp"):
            i.sw = S(ops[0])
            for o in ops[1:]: i.vr += V(o); i.sr += S(o)
        elif mn.startswith("v_readfirstlane") or mn.startswith("v_readlane"):
            i.sw = S(ops[0]); i.vr = V(ops[1]); i.lane = True
        elif mn.startswith("v_permlane"):
            i.vw = V(ops[0]) + V(ops[1]); i.vr = i.vw[:]; i.perm = True
        else:
            i.vw = V(ops[0])
            rest = ops[1:]
            if mn in ("v_add_co_u32", "v_addc_co_u32", "v_sub_co_u32"):
                i.sw = S(ops[1]); rest = ops[2:]
            for o in rest: i.vr += V(o); i.sr += S(o)
            if mn.startswith("v_fmac") or mn.startswith("v_pk_fmac"): i.vr += i.vw
            if mn in TRANS: i.trans = True
    elif mn.startswith("ds_"):
        i.kind = "ds"
        if mn.startswith("ds_read") or mn.startswith("ds_bpermute") or mn.startswith("ds_swizzle") or "_rtn" in mn:
            i.vw = V(ops[0])
            for o in ops[1:]: i.vr += V(o)
        else:
            for o in ops: i.vr += V(o)
    elif mn.startswith("buffer_") or mn.startswith("global_"):
        i.kind = "vmem"
        allv = []
        if "lds" in i.mods:
            for o in ops: i.vr += V(o); i.sr += S(o)
            i.sr += [124]; i.ldsdma = True
        elif "load" in mn:
            i.vw = V(ops[0])
            for o in ops[1:]: i.vr += V(o); i.sr += S(o)
        else:
            for o in ops: i.vr += V(o); i.sr += S(o)
            if mn.startswith("buffer_store_dwordx4") or mn.startswith("buffer_store_dwordx3"):
                i.wide = V(ops[0])
            if mn.startswith("global_store_dwordx4"):
                i.wide = V(ops[1])
            if "atomic" in mn and "sc0" in i.mods: i.vw = V(ops[0])
    elif mn.startswith("s_"):
        i.kind = "salu"
        if mn == "s_nop": i.nop = int(ops[0], 0) + 1
        elif mn.startswith("s_cmp") or mn.startswith("s_cbranch") or mn in ("s_branch", "s_barrier", "s_waitcnt", "s_endpgm", "s_sleep", "s_setprio", "s_setpc_b64"):
            for o in ops: i.sr += S(o)
        else:
            if ops: i.sw = S(ops[0])
            for o in ops[1:]: i.sr += S(o)
    return i

def need(prev, cur):
    n = 0
    ov = lambda a, b: bool(set(a) & set(b))
    pk, ck = prev.kind, cur.kind
    if pk == "valu":
        if ck == "mfma" and ov(prev.vw, cur.vr): n = max(n, 2)
        if ck == "valu":
            if getattr(cur, "lane", False) and ov(prev.vw, cur.vr): n = max(n, 1)
            if getattr(cur, "perm", False) and ov(prev.vw, cur.vr): n = max(n, 2)
            if getattr(prev, "trans", False) and not getattr(cur, "trans", False) and ov(prev.vw, cur.vr): n = max(n, 1)
            if getattr(prev, "trans", False) and getattr(cur, "trans", False) and ov(prev.vw, cur.vr): n = max(n, 1)
            if ov(prev.sw, cur.sr): n = max(n, 2)
            if cur.base.startswith("v_cndmask") and len(cur.ops) == 4 and ov(prev.sw, regs(cur.ops[3], "s")): n = max(n, 2)
        if ck == "vmem" and ov(prev.sw, cur.sr): n = max(n, 5)
        if ck == "mfma" and ov(prev.sw, [126, 127]): n = max(n, 4)
    if pk == "mfma":
        P = prev.passes
        big = {4: 8, 8: 12}[P]
        if ck == "mfma":
            if ov(prev.vw, cur.A) or ov(prev.vw, cur.B): n = max(n, big)
            if ov(prev.vw, cur.C) and prev.vw != cur.C: n = max(n, {4: 6, 8: 10}[P])
            if ov(prev.vw, cur.vw) and prev.vw != cur.C: n = max(n, {4: 6, 8: 10}[P])
        elif ck in ("valu", "ds", "vmem"):
            if ov(prev.vw, cur.vr) or ov(prev.vw, cur.vw): n = max(n, big)
            if ck == "valu" and ov(prev.C, cur.vw): n = max(n, {4: 3, 8: 7}[P])
    if pk == "vmem" and hasattr(prev, "wide"):
        if ov(prev.wide, cur.vw): n = max(n, 2)
    if pk == "salu" and 124 in prev.sw and ck == "vmem" and getattr(cur, "ldsdma", False): n = max(n, 1)
    return n

def run(lines, report=None):
    out = []
    hist = []
    pos = 0
    W = 24
    nins = 0
    for line in lines:
        ins = parse(line)
        if ins is None:
            out.append(line); continue
        req = 0
        for (p, ppos) in hist:
            nd = need(p, ins)
            if nd:
                have = pos - ppos
                if nd - have > req: req = nd - have
        while req > 0:
            k = min(req, 16)
            out.append("    s_nop %d" % (k - 1))
            pos += k; req -= k; nins += 1
        out.append(line)
        pos += getattr(ins, "nop", 1)
        hist.append((ins, pos))
        hist = [(p, pp) for (p, pp) in hist if pos - pp < W]
        if ins.mn in ("s_branch", "s_endpgm", "s_setpc_b64"):
            hist = []
    if report is not None: report.append(nins)
    return out

def check_edge(lines, src_idx, dst_label):
    probs = []
    before = []
    pos = 0
    j = src_idx
    seq = []
    while j >= 0 and len(seq) < 24:
        ins = parse(lines[j])
        if ins is not None: seq.append(ins)
        j -= 1
    seq.reverse()
    hist = []
    for ins in seq:
        pos += getattr(ins, "nop", 1); hist.append((ins, pos))
    k = [n for n, l in enumerate(lines) if l.strip() == dst_label + ":"][0]
    cnt = 0
    while k < len(lines) and cnt < 24:
        ins = parse(lines[k]); k += 1
        if ins is None: continue
        for (p, ppos) in hist:
            nd = need(p, ins)
            if nd and pos - ppos < nd:
                probs.append((lines[src_idx].strip(), dst_label, p.mn, p.ops, ins.mn, ins.ops, nd, pos - ppos))
        pos += getattr(ins, "nop", 1); cnt += 1
        if ins.mn in ("s_branch", "s_endpgm", "s_setpc_b64"): break
    return probs

def check_all_edges(lines):
    probs = []
    for n, l in enumerate(lines):
        ins = parse(l)
        if ins is not None and (ins.mn.startswith("s_cbranch") or ins.mn == "s_branch"):
            probs += check_edge(lines, n, ins.ops[0])
    return probs
```

```python
import sys, math, struct
from asmlib import *
import hazard

NAME = "concat_heads__gqa_block_cached__mha_block_cached__near_ridge"
ARGS = set(sys.argv[1:])
def opt(name, default=None):
    for x in sys.argv[1:]:
        if x.startswith(name + "="): return x[len(name) + 1:]
    return default

XO = 0
BLK = 8448
PIECE = 1056
ARING = 24576 + 4096
SETSZ = 4 * BLK
BRING = ARING + 2 * SETSZ
LDS_BYTES = BRING + 2 * SETSZ
assert LDS_BYTES <= 163840
OB = 12288
assert OB + 49152 <= ARING + SETSZ

vLane16, vT, vK, vgK0, vgK1, vgV, vgWo = 1, 2, 3, 4, 5, 6, 7
ACC = 8
QF = 104
F = 152
S = 184
P = 208
NM = 220
L = 232
ON = 244
T = 248
vXr, vgWq, vgX = NM, NM + 1, NM + 2
vXa, vTc, vTmpA, vTmpB = T, T + 1, T + 2, T + 3
NVGPR = 256
def acc(t, qt): return ACC + (t * 3 + qt) * 4
def qf(s, qt): return QF + (s * 3 + qt) * 4
def sreg(kt, qt): return S + (kt * 3 + qt) * 4
def preg(qt): return P + qt * 4
def v4(r): return "v[%d:%d]" % (r, r + 3)
def v2(r): return "v[%d:%d]" % (r, r + 1)

sWave, sB, sG, sW = 3, 4, 5, 6
sX, sK, sV, sWQ, sWO, sWS, sXI = 8, 12, 16, 20, 24, 28, 32
sPtr = 36
sKV, sRot, sOff, sT0, sT1, sT2, sCnt = 62, 63, 64, 65, 66, 67, 68
sWqB, sWoB, sXB, sCh, sChN, sBuf = 69, 70, 71, 72, 73, 74
sMA, sMB = 75, 76
sFloor = 77
sRet = 78
sFirst = 80
sSp = 82
sH0, sN, sC, sSet = 86, 87, 88, 89
sCyc = 61
sThr = 1
sCk = 0
sSl0, sSl1, sSl2 = 7, 62, 63
def srd(r): return "s[%d:%d]" % (r, r + 3)

SCALE = (128 ** -0.5) * math.log2(math.e)
BIAS = 7.0
def fbits(x): return struct.unpack("<I", struct.pack("<f", x))[0]

STAMP = "stamp" in ARGS
FINE = int(opt("fine", 0))
INK = "twok" not in ARGS
PSTORE = " sc1" if INK else " sc0 sc1"
SYNC = BRING + SETSZ + 1024
KNAME = NAME + "_kernel" if INK else "main_kernel"

def mf(d, a, b, c):
    return "v_mfma_f32_16x16x32_bf16 %s, %s, %s, %s" % (v4(d), v4(a), v4(b), v4(c) if c is not None else "0")

def weave(a, main, *streams):
    pos = [0] * len(streams)
    for i, m in enumerate(main):
        a(m)
        for k, (lst, st, en) in enumerate(streams):
            if i >= st:
                want = len(lst) if i >= en - 1 else (len(lst) * (i - st + 1) + (en - st) - 1) // (en - st)
                while pos[k] < want:
                    a(lst[pos[k]]); pos[k] += 1
    for k, (lst, st, en) in enumerate(streams):
        while pos[k] < len(lst):
            a(lst[pos[k]]); pos[k] += 1

VWQ = S
def wq_voffsets(a):
    for j in range(8):
        a("v_add_u32 v%d, %d, v%d" % (VWQ + j, ((j & 3) + 8 * (j >> 2)) * 8192 - (j & 3) * PIECE, vgWq))

def dma_block(kind, m0base, m0add, srdq, nt, vg=None):
    out = []
    fl = ""
    if nt: fl = " " + opt("pol" + nt, "nt").replace("+", " ").replace("plain", "")
    else: fl = " " + opt("pol" + kind, "plain").replace("+", " ").replace("plain", "")
    for j in range(8):
        g = []
        if kind == "wq":
            if j & 3 == 0:
                g.append("s_add_u32 m0, s%d, %d" % (m0base, m0add + j * PIECE))
                g.append("s_nop 0")
            g.append("buffer_load_dwordx4 v%d, %s, s%d offen offset:%d%s lds" % (VWQ + j, srd(srdq), sOff, (j & 3) * PIECE, fl))
        elif kind == "wo":
            g.append("s_add_u32 m0, s%d, %d" % (m0base, m0add + j * PIECE - (j & 3) * 1024))
            g.append("s_add_u32 s%d, s%d, 4096" % (sOff, sOff) if j == 4 else "s_nop 0")
            g.append("buffer_load_dwordx4 v%d, %s, s%d offen offset:%d%s lds" % (vgWo, srd(srdq), sOff, (j & 3) * 1024, fl))
        else:
            g.append("s_add_u32 m0, s%d, %d" % (m0base, m0add + j * (PIECE - 256)))
            g.append("s_nop 0")
            g.append("buffer_load_dwordx4 v%d, %s, s%d offen offset:%d%s lds" % (vg[0] if j < 4 else vg[1], srd(srdq), sOff, j * 256, fl))
        out.append("\n".join(g))
    return out

def split_m0(groups):
    out = []
    for g in groups:
        ls = g.split("\n")
        ls = [l for l in ls if l != "s_nop 0"]
        if len(ls) > 1:
            out.append("\n".join(ls[:-1])); out.append(ls[-1])
        else:
            out.append(ls[0])
    return out

def x_piece(i, srdq, bufreg):
    return "\n".join([
        "s_lshl_b32 s%d, s%d, 8" % (sT2, sChN),
        "s_add_u32 s%d, s%d, s%d" % (sT2, sT2, sXB),
        "s_add_u32 m0, s%d, %d" % (bufreg, i * 4096),
        "s_add_u32 s%d, s%d, %d" % (sT2, sT2, i * 16384),
        "buffer_load_dwordx4 v%d, %s, s%d offen lds" % (vgX, srd(srdq), sT2)])

def tr_reads(off, tiles=range(8), dst0=F, va=vT):
    out = []
    for t in tiles:
        for h in range(2):
            out.append("ds_read_b64_tr_b16 %s, v%d offset:%d" % (v2(dst0 + t * 4 + h * 2), va, off + 256 * h + 32 * t))
    return out

def k_reads(off, kts=(0, 1)):
    out = []
    for kt in kts:
        for s in range(4):
            out.append("ds_read_b128 %s, v%d offset:%d" % (v4(F + (kt * 4 + s) * 4), vK, off + 512 * kt + 64 * s))
    return out

def proj_compute(a, setoff, bstride, issue):
    for qt in range(3):
        a("ds_read_b128 %s, v%d offset:%d" % (v4(preg(qt)), vXa, qt * bstride))
    rd = tr_reads(setoff)
    for r in rd[:12]: a(r)
    a("s_waitcnt lgkmcnt(10)")
    for r in rd[12:]: a(r)
    if "noearlyA" not in ARGS:
        a("s_waitcnt lgkmcnt(0)")
        for i_ in issue: a(i_)
        for m in pv_list(range(8)): a(m)
        return
    for t in range(4):
        if t > 0: a("s_waitcnt lgkmcnt(%d)" % (14 - 2 * t))
        for qt in range(3):
            a(mf(acc(t, qt), F + t * 4, preg(qt), acc(t, qt)))
    a("s_waitcnt lgkmcnt(0)")
    main = [mf(acc(t, qt), F + t * 4, preg(qt), acc(t, qt)) for t in range(4, 8) for qt in range(3)]
    weave(a, main, (issue, 0, 12))

def fset(k):
    return (F, P) if k == 0 else (QF, QF + 32)

def proj_reads(k, bstride):
    fa, fb = fset(k)
    out = []
    for qt in range(3):
        out.append("ds_read_b128 %s, v%d offset:%d" % (v4(fb + qt * 4), vXa, qt * bstride))
    return out + tr_reads(0, range(8), fa, vTc)

def proj_pipe3(a, k, issue, reads):
    fa, fb = fset(k)
    main = [mf(acc(t, qt), fa + t * 4, fb + qt * 4, acc(t, qt)) for t in range(8) for qt in range(3)]
    weave(a, main, (reads, 0, 17), (issue, 0, 24))

def slot_rotate(a):
    a("s_mov_b32 s%d, s%d\ns_mov_b32 s%d, s%d\ns_mov_b32 s%d, s%d\ns_mov_b32 s%d, s%d" % (sT0, sSl0, sSl0, sSl1, sSl1, sSl2, sSl2, sT0))

def sm_chain(kt, qt):
    if "nosm" in ARGS: return []
    t0 = T + ((kt * 3 + qt) & 1) * 4
    s = sreg(kt, qt)
    out = ["v_exp_f32 v%d, v%d" % (t0 + r, s + r) for r in range(4)]
    out.append("v_cvt_pk_bf16_f32 v%d, v%d, v%d" % (preg(qt) + 2 * kt, t0, t0 + 1))
    out.append("v_cvt_pk_bf16_f32 v%d, v%d, v%d" % (preg(qt) + 2 * kt + 1, t0 + 2, t0 + 3))
    return out

def qk_chain(kt, qt):
    return [mf(sreg(kt, qt), F + (kt * 4 + s) * 4, qf(s, qt), sreg(kt, qt) if s else NM + qt * 4) for s in range(4)]

def sm_check(a):
    if "nocheck" in ARGS: return
    ok = a.newlabel("L_ok")
    a("v_or3_b32 v%d, v%d, v%d, v%d" % (T, P, P + 1, P + 2))
    a("v_or3_b32 v%d, v%d, v%d, v%d" % (T + 1, P + 3, P + 4, P + 5))
    a("v_or3_b32 v%d, v%d, v%d, v%d" % (T, T, P + 6, P + 7))
    a("v_or3_b32 v%d, v%d, v%d, v%d" % (T + 1, T + 1, P + 8, P + 9))
    a("v_or3_b32 v%d, v%d, v%d, v%d" % (T, T, P + 10, P + 11))
    a("v_or_b32 v%d, v%d, v%d" % (T, T, T + 1))
    a("v_and_b32 v%d, 0x40004000, v%d" % (T, T))
    a("v_cmp_ne_u32 vcc, 0, v%d" % T)
    a("s_or_b64 vcc, vcc, s[%d:%d]" % (sFirst, sFirst + 1))
    a("s_cbranch_scc0 %s" % ok)
    a("s_call_b64 s[%d:%d], L_slow" % (sRet, sRet + 1))
    a.label(ok)

def qk_softmax(a, after_kt0=(), after_kt1=(), extra=()):
    ch = [(0, 0), (0, 1), (0, 2), (1, 0), (1, 1), (1, 2)]
    c0 = qk_chain(0, 0)
    for s in range(4):
        a("s_waitcnt lgkmcnt(%d)" % (7 - s))
        a(c0[s])
    for m in qk_chain(0, 1): a(m)
    weave(a, qk_chain(0, 2), (sm_chain(0, 0), 0, 4))
    a("s_waitcnt lgkmcnt(0)")
    for r in after_kt0: a(r)
    for e in extra: a(e)
    weave(a, qk_chain(1, 0), (sm_chain(0, 1), 0, 4))
    weave(a, qk_chain(1, 1), (sm_chain(0, 2), 0, 4))
    weave(a, qk_chain(1, 2), (sm_chain(1, 0), 0, 4))
    for r in after_kt1: a(r)
    for s in sm_chain(1, 1) + sm_chain(1, 2): a(s)
    sm_check(a)

def tile_fast(a, vo, knext):
    C = lambda kt, qt: qk_chain(kt, qt)
    c = [C(0, 0), C(0, 1), C(0, 2), C(1, 0), C(1, 1), C(1, 2)]
    sm = [sm_chain(0, 0), sm_chain(0, 1), sm_chain(0, 2), sm_chain(1, 0), sm_chain(1, 1), sm_chain(1, 2)]
    v0 = tr_reads(vo, range(4)); v1 = tr_reads(vo, range(4, 8))
    for s in range(4):
        a("s_waitcnt lgkmcnt(%d)" % (7 - s))
        a(c[0][s])
    for m in c[1]: a(m)
    weave(a, c[2], (sm[0], 1, 4))
    a("s_waitcnt lgkmcnt(0)")
    weave(a, c[3], (sm[1], 0, 4), (v0[:4], 0, 4))
    weave(a, c[4], (sm[2], 0, 4), (v0[4:], 0, 4))
    s5 = sreg(1, 2)
    oa = F + 16
    O1, O2 = P + 10, P + 11
    pre = ["v_or3_b32 v%d, v%d, v%d, v%d" % (O1, P, P + 1, P + 4), "v_or3_b32 v%d, v%d, v%d, v%d" % (O2, P + 5, P + 8, P + 9)]
    weave(a, c[5], (pre, 0, 2), (sm[3], 0, 4))
    a(sm[4][0]); a(sm[4][1])
    a("v_or3_b32 v%d, v%d, v%d, v%d" % (O1, O1, P + 2, P + 3))
    a(sm[4][2]); a(sm[4][3])
    a("v_or_b32 v%d, v%d, v%d" % (O1, O1, O2))
    a(sm[4][4]); a(sm[4][5])
    a("v_max3_f32 v%d, v%d, v%d, v%d" % (O2, s5, s5 + 1, s5 + 2))
    a("v_or3_b32 v%d, v%d, v%d, v%d" % (O1, O1, P + 6, P + 7))
    a("v_lshl_or_b32 v%d, v%d, 16, v%d" % (O1, O1, O1))
    a("v_and_b32 v%d, 0x40000000, v%d" % (O1, O1))
    a("v_max3_f32 v%d, v%d, v%d, v%d" % (O2, O2, s5 + 3, O1))
    a("v_cmp_le_f32 vcc, s%d, v%d" % (sThr, O2))
    ok = a.newlabel("L_ok")
    a("s_cbranch_vccz %s" % ok)
    a("s_call_b64 s[%d:%d], L_slow" % (sRet, sRet + 1))
    a.label(ok)
    ll = l_list()
    a("s_waitcnt lgkmcnt(0)")
    m1 = [ll[0], ll[1]] + [mf(acc(t, qt), F + t * 4, preg(qt), acc(t, qt)) for t in range(4) for qt in range(2)]
    weave(a, m1, (sm[5], 0, 5), (v1, 0, 8))
    a(ll[2])
    for t in range(4): a(mf(acc(t, 2), F + t * 4, preg(2), acc(t, 2)))
    m2 = pv_list(range(4, 8))
    if knext is not None:
        kr = k_reads(knext, (0,))
        for r in kr: a(r)
        a("s_waitcnt lgkmcnt(4)")
        for m in m2: a(m)
        for r in k_reads(knext, (1,)): a(r)
    else:
        a("s_waitcnt lgkmcnt(0)")
        for m in m2: a(m)

def pv_list(tiles):
    return [mf(acc(t, qt), F + t * 4, preg(qt), acc(t, qt)) for t in tiles for qt in range(3)]
def l_list():
    return [mf(L + qt * 4, ON, preg(qt), L + qt * 4) for qt in range(3)]

def xlane(a, op, r, t):
    a("v_mov_b32 v%d, v%d" % (t, r))
    a("v_permlane32_swap_b32 v%d, v%d" % (t, r))
    a("%s v%d, v%d, v%d" % (op, r, r, t))
    a("v_mov_b32 v%d, v%d" % (t, r))
    a("v_permlane16_swap_b32 v%d, v%d" % (t, r))
    a("%s v%d, v%d, v%d" % (op, r, r, t))

def slow_path(a):
    a.label("L_slow")
    a("s_nop 7")
    for qt in range(3):
        s0, s1 = sreg(0, qt), sreg(1, qt)
        x = T
        a("v_max3_f32 v%d, v%d, v%d, v%d" % (x, s0, s0 + 1, s0 + 2))
        a("v_max3_f32 v%d, v%d, v%d, v%d" % (x, x, s0 + 3, s1))
        a("v_max3_f32 v%d, v%d, v%d, v%d" % (x, x, s1 + 1, s1 + 2))
        a("v_max_f32 v%d, v%d, v%d" % (x, x, s1 + 3))
        xlane(a, "v_max_f32", x, T + 1)
        a("v_max_f32 v%d, s%d, v%d" % (x, sFloor, x))
        a("v_add_f32 v%d, 0x%x, v%d" % (x, fbits(BIAS), x))
        a("v_sub_f32 v%d, 0, v%d" % (T + 1, x))
        a("v_min_f32 v%d, 0, v%d" % (T + 1, T + 1))
        a("v_exp_f32 v%d, v%d" % (T + 1, T + 1))
        for r in range(4):
            a("v_sub_f32 v%d, v%d, v%d" % (NM + qt * 4 + r, NM + qt * 4 + r, x))
            a("v_sub_f32 v%d, v%d, v%d" % (s0 + r, s0 + r, x))
            a("v_sub_f32 v%d, v%d, v%d" % (s1 + r, s1 + r, x))
        lsk = a.newlabel("L_nors")
        a("s_cmp_lg_u32 s%d, 0\ns_cbranch_scc1 %s" % (sFirst, lsk))
        for r in range(4):
            a("v_mul_f32 v%d, v%d, v%d" % (L + qt * 4 + r, L + qt * 4 + r, T + 1))
        for t in range(8):
            for r in range(4):
                a("v_mul_f32 v%d, v%d, v%d" % (acc(t, qt) + r, acc(t, qt) + r, T + 1))
        a.label(lsk)
    for kt in range(2):
        for qt in range(3):
            for s in sm_chain(kt, qt): a(s)
    a("s_mov_b64 s[%d:%d], 0" % (sFirst, sFirst + 1))
    a("s_mov_b32 s%d, 0x%x" % (sFloor, fbits(-BIAS)))
    a("s_mov_b32 s%d, 1.0" % sThr)
    a("s_nop 1")
    a("s_setpc_b64 s[%d:%d]" % (sRet, sRet + 1))

def zero_acc(a):
    for r in range(96):
        a("v_mov_b32 v%d, 0" % (ACC + r))

def pack_acc(a, scale=None, swap=False):
    for s in range(4):
        for qt in range(3):
            d = qf(s, qt)
            for hh in range(2):
                src = acc(2 * s + hh, qt)
                if scale is not None:
                    for r in (0, 2):
                        a("v_pk_mul_f32 %s, %s, %s%s" % (v2(src + r), v2(src + r), scale(qt), " op_sel_hi:[1,0]" if scale(qt)[0] == "s" else ""))
                a("v_cvt_pk_bf16_f32 v%d, v%d, v%d" % (d + 2 * hh, src, src + 1))
                a("v_cvt_pk_bf16_f32 v%d, v%d, v%d" % (d + 2 * hh + 1, src + 2, src + 3))
    if swap:
        for op in ("v_permlane32_swap_b32", "v_permlane16_swap_b32"):
            for s in range(4):
                for qt in range(3):
                    d = qf(s, qt)
                    a("%s v%d, v%d" % (op, d, d + 2))
                    a("%s v%d, v%d" % (op, d + 1, d + 3))

def att_zero(a):
    zero_acc(a)
    for r in range(12):
        a("v_mov_b32 v%d, 0" % (L + r))
    for r in range(4):
        a("v_mov_b32 v%d, 0x3f803f80" % (ON + r))

def q_final(a, zero=True):
    a("s_nop 7")
    pack_acc(a, lambda qt: "s[%d:%d]" % (sC, sC + 1), True)
    for r in range(12):
        a("v_mov_b32 v%d, 0" % (NM + r))
    if zero: att_zero(a)
    a("s_mov_b64 s[%d:%d], -1" % (sFirst, sFirst + 1))
    a("s_mov_b32 s%d, 0x%x" % (sFloor, fbits(-3e38)))
    a("s_mov_b32 s%d, 0xff800000" % sThr)

def o_final(a):
    a("s_nop 7")
    for qt in range(3):
        a("v_rcp_f32 v%d, v%d" % (L + qt * 4, L + qt * 4))
        a("v_rcp_f32 v%d, v%d" % (L + qt * 4 + 1, L + qt * 4 + 1))
    pack_acc(a, lambda qt: v2(L + qt * 4), False)

def publish(a, base_sgpr):
    a("v_add_u32 v%d, s%d, v%d" % (vTmpA, base_sgpr, vLane16))
    for i in range(12):
        a("ds_write_b128 v%d, %s offset:%d" % (vTmpA, v4(QF + i * 4), i * 1024))

def debug_dump(a, which):
    a("s_lshr_b32 s%d, s%d, 2" % (sT0, sWave))
    a("s_xor_b32 s%d, s%d, 1" % (sT0, sT0))
    a("s_lshl_b32 s%d, s%d, 5\ns_add_u32 s%d, s%d, s%d" % (sT0, sT0, sT0, sT0, sB))
    a("s_lshl_b32 s%d, s%d, 5" % (sT0, sT0))
    a("s_lshl_b32 s%d, s%d, 2\ns_add_u32 s%d, s%d, s%d\ns_add_u32 s%d, s%d, s%d" % (sT1, sG, sT1, sT1, sW, sT0, sT0, sT1))
    a("s_mul_i32 s%d, s%d, 12288" % (sT0, sT0))
    a("s_add_u32 s%d, s%d, 0x%x" % (sT0, sT0, (64 + 32 * which) << 20))
    for i in range(12):
        a("s_add_u32 s%d, s%d, %d" % (sT1, sT0, i * 1024))
        a("buffer_store_dwordx4 %s, v%d, %s, s%d offen" % (v4(QF + i * 4), vLane16, srd(sWS), sT1))
    a("s_waitcnt vmcnt(0)")

def store_partial(a, br):
    a("s_nop 7")
    a("s_add_u32 s%d, s%d, %d" % (sT0, sB, br * 32))
    a("s_lshl_b32 s%d, s%d, 2\ns_add_u32 s%d, s%d, s%d" % (sT0, sT0, sT0, sT0, sW))
    a("s_mul_i32 s%d, s%d, %d" % (sT0, sT0, 12 * 8192))
    a("s_lshl_b32 s%d, s%d, 10\ns_add_u32 s%d, s%d, s%d" % (sT1, sG, sT0, sT0, sT1))
    for s in range(4):
        for qt in range(3):
            d = qf(s, qt); i = s * 3 + qt
            for hh in range(2):
                src = acc(2 * s + hh, qt)
                a("v_cvt_pk_bf16_f32 v%d, v%d, v%d" % (d + 2 * hh, src, src + 1))
                a("v_cvt_pk_bf16_f32 v%d, v%d, v%d" % (d + 2 * hh + 1, src + 2, src + 3))
            a("s_add_u32 s%d, s%d, %d" % (sT1, sT0, i * 8192))
            a("buffer_store_dwordx4 %s, v%d, %s, s%d offen%s" % (v4(d), vLane16, srd(sWS), sT1, PSTORE))

def w_off(kind, pos, dist=2):
    ch = sCh if pos + dist < 4 else sChN
    sp = sSp + ((pos + dist) & 3)
    sh = 18 if kind == "wq" else 15
    base = sWqB if kind == "wq" else sWoB
    return "\n".join([
        "s_lshl_b32 s%d, s%d, 2" % (sOff, ch),
        "s_add_u32 s%d, s%d, s%d" % (sOff, sOff, sp),
        "s_lshl_b32 s%d, s%d, %d" % (sOff, sOff, sh),
        "s_add_u32 s%d, s%d, s%d" % (sOff, sOff, base)])
def w_off_first(kind, k): return w_off(kind, 0, k)

def group_advance(a, buf=True):
    a("s_mov_b32 s%d, s%d" % (sCh, sChN))
    a("s_add_u32 s%d, s%d, 1\ns_and_b32 s%d, s%d, 3" % (sChN, sChN, sChN, sChN))
    if buf: a("s_xor_b32 s%d, s%d, 12288" % (sBuf, sBuf))

def chunk_reset(a):
    a("s_mov_b32 s%d, s%d" % (sCh, sH0))
    a("s_add_u32 s%d, s%d, 1\ns_and_b32 s%d, s%d, 3" % (sChN, sH0, sChN, sChN))

def xaddr(a, pos):
    a("s_lshl_b32 s%d, s%d, 6\ns_or_b32 s%d, s%d, s%d" % (sT0, sSp + pos, sT0, sT0, sBuf))
    a("v_xor_b32 v%d, s%d, v%d" % (vXa, sT0, vXr))

def oaddr(a, pos, basereg):
    a("s_mul_i32 s%d, s%d, 3072\ns_add_u32 s%d, s%d, s%d" % (sT0, sSp + pos, sT0, sT0, basereg))
    a("v_add_u32 v%d, s%d, v%d" % (vXa, sT0, vLane16))

def cond(a, reg, val, body, eq=True):
    l = a.newlabel("L_c")
    a("s_cmp_eq_u32 s%d, %d" % (reg, val))
    a("s_cbranch_scc%d %s" % (0 if eq else 1, l))
    body()
    a.label(l)

def skip_if(a, reg, val, text):
    l = a.newlabel("L_sk")
    return "s_cmp_eq_u32 s%d, %d\ns_cbranch_scc1 %s\n" % (reg, val, l) + text + "\n%s:" % l

def either(a, reg, val, text_eq, text_ne):
    l1 = a.newlabel("L_i"); l2 = a.newlabel("L_j")
    return "s_cmp_eq_u32 s%d, %d\ns_cbranch_scc1 %s\n" % (reg, val, l1) + text_ne + "\ns_branch %s\n%s:\n" % (l2, l1) + text_eq + "\n%s:" % l2

def a_kv_params(a, kv, rot):
    a("s_lshl_b32 s%d, s2, 17\ns_lshr_b32 s%d, s%d, 1\ns_lshl_b32 s%d, s%d, 13\ns_add_u32 s%d, s%d, s%d" % (kv, sT0, sW, sT0, sT0, kv, kv, sT0))
    a("s_mul_i32 s%d, s2, 3\ns_lshr_b32 s%d, s2, 3\ns_add_u32 s%d, s%d, s%d\ns_and_b32 s%d, s%d, 7" % (rot, sT0, rot, rot, sT0, rot, rot))

def b_kv_params(a):
    a("s_lshl_b32 s%d, s2, 2\ns_add_u32 s%d, s%d, s%d" % (sT0, sT0, sT0, sW))
    a("s_lshl_b32 s%d, s%d, 17" % (sKV, sT0))
    a("s_mul_i32 s%d, s%d, 5\ns_lshr_b32 s%d, s%d, 4\ns_add_u32 s%d, s%d, s%d\ns_and_b32 s%d, s%d, 15" % (sRot, sT0, sT1, sT0, sRot, sRot, sT1, sRot, sRot))
def kv_off():
    return "s_lshl_b32 s%d, s%d, 13\ns_add_u32 s%d, s%d, s%d" % (sOff, sRot, sOff, sOff, sKV)

def stamp(a, k, fine=False):
    if not STAMP: return
    if FINE and not fine and k >= 1: return
    if "cyc" in ARGS:
        a("s_memtime s[90:91]\ns_waitcnt lgkmcnt(0)")
        if k == 0: a("s_mov_b32 s7, s90\ns_mov_b32 s92, 1")
        else: a("s_sub_u32 s%d, s90, s%d" % (92 + k, sCyc))
        if k == 0: a("s_mov_b32 s%d, s7" % sCyc)
        return
    a("s_memrealtime s[90:91]\ns_waitcnt lgkmcnt(0)\ns_mov_b32 s%d, s90" % (92 + k))
def cstamp(a, k):
    if not STAMP: return
    a("s_memtime s[90:91]\ns_waitcnt lgkmcnt(0)\ns_mov_b32 s%d, s90" % (92 + k))
def stamp_out(a, n):
    if not STAMP: return
    if "dbgstamp" in ARGS:
        l = a.newlabel("L_ds")
        a("s_cmp_lg_u32 s%d, 0\ns_cbranch_scc1 %s" % (sWave, l))
        dbg_srd(a)
        a("s_mov_b64 exec, 1")
        a("v_mov_b32 v15, 0")
        a("s_not_b32 s90, s92")
        for k, r in enumerate((90, 93, 97, 99, 92 + n - 1)):
            a("v_mov_b32 v14, s%d" % r)
            a("buffer_atomic_umax v14, v15, %s, 0 offen offset:%d" % (srd(sXI), 4 * k))
            a("s_nop 1")
        a.label(l)
        return
    a("s_lshl_b32 s%d, s2, 3\ns_add_u32 s%d, s%d, s%d\ns_lshl_b32 s%d, s%d, 6\ns_add_u32 s%d, s%d, 0x%x" % (sT0, sT0, sT0, sWave, sT0, sT0, sT0, sT0, 536870912 - (1 << 20)))
    a("s_mov_b64 exec, 1")
    a("v_mov_b32 v15, 0")
    for k in range(n):
        a("v_mov_b32 v14, s%d" % (92 + k))
        a("buffer_store_dword v14, v15, %s, s%d offen offset:%d" % (srd(sWS), sT0, 4 * k))
        a("s_nop 1")

def dbg_srd(a):
    a("s_mov_b32 s%d, s%d\ns_mov_b32 s%d, s%d\ns_mov_b32 s%d, 256\ns_mov_b32 s%d, 0x20000" % (sXI, sPtr + 22, sXI + 1, sPtr + 23, sXI + 2, sXI + 3))

GO = 48 << 20
def arrive(a):
    lw = a.newlabel("L_w"); lp = a.newlabel("L_poll"); ld = a.newlabel("L_d"); ln = a.newlabel("L_nl")
    a("v_mov_b32 v%d, %d\nv_mov_b32 v%d, 1" % (T, SYNC, T + 1))
    a("v_lshlrev_b32 v%d, 7, v0" % (T + 4))
    a("s_mov_b64 exec, 1")
    a("s_waitcnt vmcnt(0)")
    a("ds_add_rtn_u32 v%d, v%d, v%d" % (T + 2, T, T + 1))
    a("ds_read_b32 v%d, v%d offset:8" % (T + 5, T))
    a("s_waitcnt lgkmcnt(0)")
    a("v_readfirstlane_b32 s%d, v%d" % (sT0, T + 2))
    a("s_cmp_eq_u32 s%d, 7\ns_cbranch_scc0 %s" % (sT0, ld))
    dbg_srd(a)
    a("s_lshl_b32 s%d, s%d, 2\ns_add_u32 s%d, s%d, 128" % (sT1, sB, sT1, sT1))
    a("v_mov_b32 v%d, 0\nv_mov_b32 v%d, 1" % (T + 2, T + 3))
    a("buffer_atomic_add v%d, v%d, %s, s%d offen sc0 sc1" % (T + 3, T + 2, srd(sXI), sT1))
    a("v_readfirstlane_b32 s%d, v%d" % (sN, T + 5))
    a("s_waitcnt vmcnt(0)")
    a("v_readfirstlane_b32 s%d, v%d" % (sT0, T + 3))
    a("s_and_b32 s%d, s%d, 7" % (sT0, sT0))
    a("s_cmp_eq_u32 s%d, 7\ns_cbranch_scc0 %s" % (sT0, ln))
    a("s_lshl_b32 s%d, s%d, 10\ns_add_u32 s%d, s%d, 0x%x" % (sT1, sB, sT1, sT1, GO))
    a("s_mov_b64 exec, 0xff")
    a("buffer_atomic_add v%d, v%d, %s, s%d offen sc1" % (T + 1, T + 4, srd(sWS), sT1))
    a("s_mov_b64 exec, 1")
    a("s_branch %s" % lw)
    a.label(ln)
    a("s_lshl_b32 s%d, s2, 7\ns_add_u32 s%d, s%d, 0x%x" % (sT1, sT1, sT1, GO))
    a("s_mov_b32 s%d, 200000" % sT2)
    a.label(lp)
    a("s_sub_u32 s%d, s%d, 1\ns_cbranch_scc1 %s" % (sT2, sT2, lw))
    a("buffer_load_dword v%d, v%d, %s, s%d offen sc1" % (T + 3, T + 2, srd(sWS), sT1))
    a("s_waitcnt vmcnt(0)")
    a("v_readfirstlane_b32 s%d, v%d" % (sT0, T + 3))
    a("s_cmp_lg_u32 s%d, s%d\ns_cbranch_scc1 %s" % (sT0, sN, lw))
    sl = int(opt("sleep", 2))
    if sl: a("s_sleep %d" % sl)
    a("s_branch %s" % lp)
    a.label(lw)
    a("ds_write_b32 v%d, v%d offset:4" % (T, T + 1))
    a("s_waitcnt lgkmcnt(0)")
    a.label(ld)
    a("s_mov_b64 exec, -1")

def wait_flag(a):
    lp = a.newlabel("L_f"); ld = a.newlabel("L_g")
    a("v_mov_b32 v%d, %d" % (T, SYNC))
    a("s_mov_b32 s%d, 4000000" % sT2)
    a.label(lp)
    a("s_sub_u32 s%d, s%d, 1\ns_cbranch_scc1 %s" % (sT2, sT2, ld))
    a("ds_read_b32 v%d, v%d offset:4" % (T + 1, T))
    a("s_waitcnt lgkmcnt(0)")
    a("v_readfirstlane_b32 s%d, v%d" % (sT0, T + 1))
    a("s_cmp_lg_u32 s%d, 0\ns_cbranch_scc1 %s" % (sT0, ld))
    a("s_sleep 1\ns_branch %s" % lp)
    a.label(ld)

def reduce_load(a, it, D, so):
    a("s_cmp_ge_u32 s%d, 6\ns_cselect_b32 s%d, 1, 0" % (it, sOff))
    a("s_mul_i32 s%d, s%d, 6\ns_sub_u32 s%d, s%d, s%d" % (sT0, sOff, sT0, it, sT0))
    a("s_mul_i32 s%d, s%d, 6\ns_add_u32 s%d, s%d, s%d" % (sT1, sG, sT0, sT0, sT1))
    a("s_lshl_b32 s%d, s%d, 5\ns_add_u32 s%d, s%d, s%d\ns_mul_i32 s%d, s%d, 48\ns_add_u32 s%d, s%d, s%d" % (sT1, sOff, sT1, sT1, sB, sT1, sT1, sT1, sT1, sT0))
    a("s_lshl_b32 s%d, s%d, 13\ns_add_u32 s%d, s%d, 4096" % (sT1, sT1, sT2, sT1))
    for g_ in range(8):
        a("buffer_load_dwordx4 %s, v%d, %s, s%d offen offset:%d sc1" % (v4(D + 4 * g_), vLane16, srd(sWS), sT1 if g_ < 4 else sT2, (g_ & 3) * 1024))
    a("s_mul_i32 s%d, s%d, 43\ns_lshr_b32 s%d, s%d, 7" % (sT1, sT0, sT1, sT1))
    a("s_mul_i32 s%d, s%d, 3\ns_sub_u32 s%d, s%d, s%d" % (sT2, sT1, sT2, sT0, sT2))
    a("s_mul_i32 s%d, s%d, 3\ns_add_u32 s%d, s%d, s%d\ns_lshl_b32 s%d, s%d, 15" % (so, sB, so, so, sT2, so, so))
    a("s_lshl_b32 s%d, s%d, 6\ns_add_u32 s%d, s%d, s%d" % (sT1, sT1, so, so, sT1))
    a("s_lshl_b32 s%d, s%d, 10\ns_add_u32 s%d, s%d, s%d" % (sT1, sOff, so, so, sT1))

def reduce_fin(a, D, so, younger):
    A_ = QF; X = QF + 8; O_ = QF + 12 + 4 * (1 if younger == 0 else 0); AD = QF + 20
    for g_ in range(8):
        a("s_waitcnt vmcnt(%d)" % (7 - g_ + younger))
        for d in range(4):
            src = D + 4 * g_ + d
            if g_ == 0:
                a("v_lshlrev_b32 v%d, 16, v%d" % (A_ + 2 * d, src))
                a("v_and_b32 v%d, 0xffff0000, v%d" % (A_ + 2 * d + 1, src))
            else:
                a("v_lshlrev_b32 v%d, 16, v%d" % (X, src))
                a("v_and_b32 v%d, 0xffff0000, v%d" % (X + 1, src))
                a("v_add_f32 v%d, v%d, v%d" % (A_ + 2 * d, A_ + 2 * d, X))
                a("v_add_f32 v%d, v%d, v%d" % (A_ + 2 * d + 1, A_ + 2 * d + 1, X + 1))
    for d in range(4):
        a("v_cvt_pk_bf16_f32 v%d, v%d, v%d" % (O_ + d, A_ + 2 * d, A_ + 2 * d + 1))
    a("v_permlane32_swap_b32 v%d, v%d\nv_permlane32_swap_b32 v%d, v%d" % (O_, O_ + 2, O_ + 1, O_ + 3))
    a("v_permlane16_swap_b32 v%d, v%d\nv_permlane16_swap_b32 v%d, v%d" % (O_, O_ + 2, O_ + 1, O_ + 3))
    return "buffer_store_dwordx4 %s, v%d, %s, s%d offen" % (v4(O_), AD, srd(sK), so)

def tail(a, two):
    arrive(a)
    AD = QF + 20
    a("v_and_b32 v%d, 15, v0\nv_lshrrev_b32 v%d, 4, v0\nv_lshlrev_b32 v%d, 11, v%d\nv_lshl_add_u32 v%d, v%d, 4, v%d" % (AD, QF, AD, AD, AD, QF, AD))
    a("s_mov_b32 s%d, s%d\ns_mov_b32 s%d, s%d\ns_mov_b32 s%d, 0x%x\ns_mov_b32 s%d, 0x20000" % (sK, sPtr + 20, sK + 1, sPtr + 21, sK + 2, SZ["out"], sK + 3))
    wait_flag(a)
    stamp(a, 8)
    reduce_load(a, sWave, ACC, sCh)
    if two:
        a("s_add_u32 s%d, s%d, 8" % (sN, sWave))
        reduce_load(a, sN, ACC + 32, sChN)
        st1 = reduce_fin(a, ACC, sCh, 8)
        st2 = reduce_fin(a, ACC + 32, sChN, 0)
        a(st1); a(st2)
    else:
        a(reduce_fin(a, ACC, sCh, 0))

def gen_main(a, dbg=False):
    kernel_begin(a, KNAME)
    a("s_cmp_lt_u32 s2, 256\ns_cbranch_scc1 L_start\ns_endpgm")
    a.label("L_start")
    a("s_load_dwordx16 s[%d:%d], s[0:1], 0" % (sPtr, sPtr + 15))
    a("s_load_dwordx8 s[%d:%d], s[0:1], 64" % (sPtr + 16, sPtr + 23))
    a("s_load_dwordx2 s[%d:%d], s[0:1], 96" % (sPtr + 24, sPtr + 25))
    a("v_lshrrev_b32 v14, 6, v0\ns_nop 0\nv_readfirstlane_b32 s%d, v14" % sWave)
    a("v_and_b32 v0, 63, v0")
    a("s_lshr_b32 s%d, s2, 3\ns_and_b32 s%d, s2, 7\ns_and_b32 s%d, s%d, 3" % (sB, sG, sW, sWave))
    a("v_lshrrev_b32 v14, 4, v0\nv_and_b32 v15, 15, v0")
    a("v_lshlrev_b32 v%d, 4, v0" % vLane16)
    a("v_bfe_u32 v16, v0, 2, 3")
    a("v_mul_u32_u24 v%d, %d, v16" % (vT, PIECE))
    a("v_lshrrev_b32 v16, 5, v0\nv_lshlrev_b32 v16, 9, v16")
    a("v_add_u32 v%d, v%d, v16" % (vT, vT))
    a("v_and_b32 v16, 3, v0\nv_lshlrev_b32 v16, 3, v16")
    a("v_add_u32 v%d, v%d, v16" % (vT, vT))
    a("v_lshrrev_b32 v16, 3, v15\nv_and_b32 v17, 3, v15\nv_lshl_add_u32 v17, v16, 2, v17")
    a("v_mul_u32_u24 v%d, %d, v17" % (vK, PIECE))
    a("v_bfe_u32 v17, v15, 2, 1\nv_xor_b32 v17, v17, v16\nv_lshlrev_b32 v17, 8, v17")
    a("v_add_u32 v%d, v%d, v17" % (vK, vK))
    a("v_lshl_add_u32 v%d, v14, 4, v%d" % (vK, vK))
    a("v_xor_b32 v16, v14, v15\nv_lshlrev_b32 v16, 4, v16\nv_lshl_add_u32 v%d, v15, 8, v16" % vXr)
    a("v_and_b32 v16, 1, v14\nv_lshrrev_b32 v17, 1, v14\nv_lshlrev_b32 v18, 4, v15")
    a("v_lshlrev_b32 v19, 12, v17\nv_add_u32 v19, v19, v18")
    a("v_lshl_add_u32 v%d, v16, 10, v19" % vgK0)
    a("v_lshlrev_b32 v20, 10, v16\nv_sub_u32 v20, 2048, v20\nv_add_u32 v%d, v19, v20" % vgK1)
    a("v_lshlrev_b32 v19, 4, v16\nv_lshl_add_u32 v19, v17, 3, v19")
    a("v_lshl_add_u32 v%d, v19, 8, v18" % vgV)
    a("v_lshl_add_u32 v%d, v19, 10, v18" % vgWo)
    a("v_lshlrev_b32 v19, 2, v16\nv_lshl_add_u32 v19, v17, 4, v19")
    a("v_lshl_add_u32 v%d, v19, 13, v18" % vgWq)
    a("s_lshl_b32 s%d, s%d, 2" % (sT0, sW))
    a("v_xor_b32 v19, v15, v14\nv_xor_b32 v19, s%d, v19\nv_lshlrev_b32 v19, 4, v19" % sT0)
    a("v_lshl_add_u32 v19, v14, 10, v19")
    a("s_lshl_b32 s%d, s%d, 12" % (sT0, sW))
    a("v_add_u32 v%d, s%d, v19" % (vgX, sT0))
    wq_voffsets(a)
    a("s_mov_b32 s%d, 0x%x" % (sC, fbits(SCALE)))
    a("s_and_b32 s%d, s%d, 3" % (sH0, sB))
    a("s_lshr_b32 s%d, s%d, 2" % (sT0, sB))
    for k in range(4):
        a("s_add_u32 s%d, s%d, %d\ns_and_b32 s%d, s%d, 3" % (sSp + k, sT0, k, sSp + k, sSp + k))
    a("s_mul_i32 s%d, s%d, 49152" % (sXB, sB))
    a("s_lshl_b32 s%d, s%d, 2\ns_add_u32 s%d, s%d, s%d" % (sT0, sG, sT0, sT0, sW))
    a("s_lshl_b32 s%d, s%d, 8" % (sWqB, sT0))
    a("s_lshl_b32 s%d, s%d, 19\ns_lshl_b32 s%d, s%d, 8\ns_add_u32 s%d, s%d, s%d" % (sWoB, sG, sT1, sW, sWoB, sWoB, sT1))
    a("s_mul_i32 s%d, s%d, %d" % (sT1, sW, BLK))
    a("s_add_u32 s%d, s%d, %d\ns_add_u32 s%d, s%d, %d" % (sMA, sT1, ARING, sMB, sT1, BRING))
    chunk_reset(a)
    a("s_mov_b32 s%d, 0" % sBuf)
    a("s_waitcnt lgkmcnt(0)")
    pA = dict(x=0, k=2, v=4, wq=6, wo=8); pB = dict(x=10, k=12, v=14, wq=16, wo=18)
    a("s_cmp_ge_u32 s%d, 4" % sWave)
    for nm, q, szA, szB in (("x", sX, SZ["Ax"], SZ["Bx"]), ("k", sK, SZ["Ak"], SZ["Bk"]), ("v", sV, SZ["Av"], SZ["Bv"]),
                            ("wq", sWQ, SZ["Awq"], SZ["Bwq"]), ("wo", sWO, SZ["Awo"], SZ["Bwo"])):
        a("s_cselect_b32 s%d, s%d, s%d" % (q, sPtr + pA[nm], sPtr + pB[nm]))
        a("s_cselect_b32 s%d, s%d, s%d" % (q + 1, sPtr + pA[nm] + 1, sPtr + pB[nm] + 1))
        if szA == szB: a("s_mov_b32 s%d, 0x%x" % (q + 2, szA))
        else: a("s_mov_b32 s%d, 0x%x\ns_cselect_b32 s%d, 0x%x, s%d" % (q + 2, szB, q + 2, szA, q + 2))
        a("s_mov_b32 s%d, 0x20000" % (q + 3))
    a("s_mov_b32 s%d, s%d\ns_mov_b32 s%d, s%d\ns_mov_b32 s%d, 0x%x\ns_mov_b32 s%d, 0x20000" % (sWS, sPtr + 24, sWS + 1, sPtr + 25, sWS + 2, SZ["ws"], sWS + 3))
    a("s_mov_b32 s%d, s%d\ns_mov_b32 s%d, s%d\ns_mov_b32 s%d, 0x%x\ns_mov_b32 s%d, 0x20000" % (sXI, sPtr + 10, sXI + 1, sPtr + 11, sXI + 2, SZ["Bx"], sXI + 3))
    if "burn" in ARGS:
        a("s_mov_b32 s%d, %d" % (sCnt, int(opt("n", 2500))))
        a.label("L_burn")
        for _ in range(4): a("v_add_f32 v30, v30, v30")
        a("s_sub_u32 s%d, s%d, 1\ns_cmp_lg_u32 s%d, 0\ns_cbranch_scc1 L_burn" % (sCnt, sCnt, sCnt))
    stamp(a, 0)
    a("s_cmp_ge_u32 s%d, 4\ns_cbranch_scc1 L_A" % sWave)

    a("s_lshl_b32 s%d, s%d, 10" % (sN, sW))
    a("s_mov_b32 s%d, s%d" % (sChN, sCh))
    for i in range(3): a(x_piece(i, sXI, sN))
    chunk_reset(a)
    a(w_off_first("wq", 0))
    for g in dma_block("wq", sMB, SETSZ, sWQ, False): a(g)
    a(w_off_first("wq", 1))
    for g in dma_block("wq", sMA, 0, sWQ, False): a(g)
    a(w_off_first("wq", 2))
    for g in dma_block("wq", sMA, SETSZ, sWQ, False): a(g)
    zero_acc(a)
    a("s_add_u32 s%d, s%d, %d\ns_mov_b32 s%d, s%d\ns_add_u32 s%d, s%d, %d" % (sSl0, sMB, SETSZ, sSl1, sMA, sSl2, sMA, SETSZ))
    a("s_mov_b32 s%d, 0" % sCnt)
    a("s_waitcnt vmcnt(16)\ns_barrier")
    xaddr(a, 0)
    a("v_add_u32 v%d, s%d, v%d" % (vTc, sSl0, vT))
    for r in proj_reads(0, 4096): a(r)
    a("s_waitcnt vmcnt(8)")
    def p1_body(last):
        if last:
            a("s_mov_b32 s%d, s%d\ns_mov_b32 s%d, s%d" % (sXI, sPtr + 0, sXI + 1, sPtr + 1))
        a("s_xor_b32 s%d, s%d, 12288\ns_lshl_b32 s%d, s%d, 10\ns_add_u32 s%d, s%d, s%d" % (sN, sBuf, sT0, sW, sN, sN, sT0))
        for pos in range(4):
            if FINE == 1 and pos in (0, 2):
                for c in range(4):
                    cond(a, sCnt, c, lambda: stamp(a, 1 + 2 * c + pos // 2, True))
            if pos == 3:
                a("s_xor_b32 s%d, s%d, 12288" % (sBuf, sBuf))
            final = last and pos == 3
            if not final:
                xaddr(a, (pos + 1) & 3)
                a("v_add_u32 v%d, s%d, v%d" % (vTc, sSl1, vT))
            issue = []
            nvm = 0
            if not last or pos == 0:
                a(w_off("wq", pos, 3))
                issue += dma_block("wq", sSl0, 0, sWQ, False); nvm += 8
            elif final or pos == 1:
                a("s_lshl_b32 s%d, s2, 2\ns_add_u32 s%d, s%d, s%d\ns_lshl_b32 s%d, s%d, 17" % (sT0, sT0, sT0, sW, sOff, sT0) +
                  "\ns_mul_i32 s%d, s%d, 5\ns_lshr_b32 s%d, s%d, 4\ns_add_u32 s%d, s%d, s%d\ns_and_b32 s%d, s%d, 15\ns_lshl_b32 s%d, s%d, 13\ns_add_u32 s%d, s%d, s%d"
                  % (sT1, sT0, sT0, sT0, sT1, sT1, sT0, sT1, sT1, sT1, sT1, sOff, sOff, sT1))
                if final: issue += dma_block("kv", sSl0, 0, sV, "V", (vgV, vgV))
                else: issue += dma_block("kv", sMB, 0, sK, "K", (vgK0, vgK1))
            issue = split_m0(issue)
            if pos == 0: issue += [x_piece(0, sXI, sN), x_piece(1, sXI, sN)]; nvm += 2
            if pos == 1: issue = [x_piece(2, sXI, sN)] + issue; nvm += 1
            a("s_waitcnt lgkmcnt(0)")
            if pos == 3: a("s_barrier")
            proj_pipe3(a, pos & 1, issue, [] if final else proj_reads((pos + 1) & 1, 4096))
            if not final:
                slot_rotate(a)
                if last and pos >= 1: nvm = 8
                a("s_waitcnt vmcnt(%d)" % nvm)
        group_advance(a, False)
    a.label("L_B_p1")
    p1_body(False)
    a("s_add_u32 s%d, s%d, 1\ns_cmp_lt_u32 s%d, 3\ns_cbranch_scc1 L_B_p1" % (sCnt, sCnt, sCnt))
    p1_body(True)
    stamp(a, 1)
    q_final(a, False)
    stamp(a, 2)
    if dbg: debug_dump(a, 0)
    b_kv_params(a)
    a("v_add_u32 v%d, s%d, v%d" % (vT, sMB, vT))
    a("v_add_u32 v%d, s%d, v%d" % (vK, sMB, vK))
    chunk_reset(a)
    a("s_mov_b32 s%d, 0" % sCnt)
    a("s_waitcnt vmcnt(8)")
    a.label("L_B_p2")
    a("s_add_u32 s%d, s%d, 1\ns_and_b32 s%d, s%d, 15" % (sRot, sRot, sRot, sRot))
    def alt_issue(kvlist, k):
        return either(a, sCnt, 15, w_off_first("wo", k) + "\n" + "\n".join(dma_block("wo", sMB, k * SETSZ, sWO, False)),
                      kv_off() + "\n" + "\n".join(kvlist))
    a("s_barrier")
    for r in k_reads(0): a(r)
    cond(a, sCnt, 0, lambda: att_zero(a))
    kiss = skip_if(a, sCnt, 7, alt_issue(dma_block("kv", sMB, 0, sK, "K", (vgK0, vgK1)), 0))
    lateB = "nolateB" not in ARGS
    qk_softmax(a, extra=[] if lateB else [kiss])
    if lateB: a(kiss)
    cond(a, sCnt, 7, lambda: a("s_waitcnt vmcnt(0)"))
    a("s_waitcnt vmcnt(8)")
    a("s_barrier")
    rd = tr_reads(SETSZ)
    for r in rd[:14]: a(r)
    for m in l_list(): a(m)
    a("s_waitcnt lgkmcnt(12)")
    for r in rd[14:]: a(r)
    for t in range(4):
        if t: a("s_waitcnt lgkmcnt(%d)" % (14 - 2 * t))
        for m in pv_list([t]): a(m)
    a("s_waitcnt lgkmcnt(0)")
    viss = alt_issue(dma_block("kv", sMB, SETSZ, sV, "V", (vgV, vgV)), 1)
    if not lateB: a(viss)
    for m in pv_list(range(4, 8)): a(m)
    if lateB:
        if opt("vsl"): a("s_sleep %s" % opt("vsl"))
        a(viss)
    a("s_waitcnt vmcnt(8)")
    def idle8():
        stamp(a, 3)
        a("s_and_b32 s%d, s%d, 1\ns_cmp_eq_u32 s%d, 1" % (sT0, sW, sT0))
        a("s_cselect_b32 s%d, s%d, s%d\ns_cselect_b32 s%d, s%d, s%d" % (sXI, sPtr + 4, sPtr + 2, sXI + 1, sPtr + 5, sPtr + 3))
        a("s_mov_b32 s%d, 0x%x" % (sXI + 2, SZ["Ak"]))
        a("s_cselect_b64 vcc, -1, 0")
        a("v_cndmask_b32 v%d, v%d, v%d, vcc\nv_cndmask_b32 v%d, v%d, v%d, vcc" % (vTmpA, vgK0, vgV, vTmpB, vgK1, vgV))
        a_kv_params(a, sN, sSet)
        a("s_add_u32 s%d, s%d, 2\ns_and_b32 s%d, s%d, 7" % (sSet, sSet, sSet, sSet))
        for j in range(8):
            a("s_barrier")
            if j <= 5 and "noakv" not in ARGS:
                a("s_lshl_b32 s%d, s%d, 14\ns_add_u32 s%d, s%d, s%d\ns_add_u32 s%d, s%d, 1\ns_and_b32 s%d, s%d, 7" % (sOff, sSet, sOff, sOff, sN, sSet, sSet, sSet, sSet))
                for g_ in dma_block("kv", sMA, ((j + 2) % 3) * SETSZ, sXI, "A", (vTmpA, vTmpB)): a(g_)
            if j == 6:
                a(kv_off())
                for g_ in dma_block("kv", sMB, 0, sK, "K", (vgK0, vgK1)): a(g_)
            a("s_waitcnt vmcnt(%d)" % (8 if j < 7 else 0))
        stamp(a, 4)
    cond(a, sCnt, 7, idle8)
    a("s_add_u32 s%d, s%d, 1\ns_cmp_lt_u32 s%d, 16\ns_cbranch_scc1 L_B_p2" % (sCnt, sCnt, sCnt))
    stamp(a, 5)
    o_final(a)
    if dbg: debug_dump(a, 1)
    a("s_mul_i32 s%d, s%d, 12288\ns_add_u32 s%d, s%d, %d" % (sT0, sW, sT0, sT0, OB))
    publish(a, sT0)
    a("v_subrev_u32 v%d, s%d, v%d" % (vT, sMB, vT))
    a("s_mov_b32 s%d, s%d\ns_add_u32 s%d, s%d, %d\ns_add_u32 s%d, s%d, %d" % (sSl0, sMB, sSl1, sMB, SETSZ, sSl2, sMA, SETSZ))
    a("s_mov_b32 s%d, 0" % sCnt)
    a("s_mul_i32 s%d, s%d, 12288\ns_add_u32 s%d, s%d, %d" % (sN, sCh, sN, sN, OB))
    oaddr(a, 0, sN)
    a("v_add_u32 v%d, s%d, v%d" % (vTc, sSl0, vT))
    a("s_waitcnt lgkmcnt(0)\ns_barrier")
    stamp(a, 6)
    a("s_waitcnt vmcnt(8)")
    for r in proj_reads(0, 1024): a(r)
    a(w_off_first("wo", 2))
    for g in dma_block("wo", sSl2, 0, sWO, False): a(g)
    zero_acc(a)
    a("s_waitcnt vmcnt(8)")
    def p3_body(last):
        for pos in range(4):
            final = last and pos == 3
            if pos == 3 and not final:
                a("s_mul_i32 s%d, s%d, 12288\ns_add_u32 s%d, s%d, %d" % (sN, sChN, sN, sN, OB))
            if not final:
                oaddr(a, (pos + 1) & 3, sN)
                a("v_add_u32 v%d, s%d, v%d" % (vTc, sSl1, vT))
            issue = []
            if not last or pos == 0:
                a(w_off("wo", pos, 3))
                issue = split_m0(dma_block("wo", sSl0, 0, sWO, False))
            a("s_waitcnt lgkmcnt(0)")
            proj_pipe3(a, pos & 1, issue, [] if final else proj_reads((pos + 1) & 1, 1024))
            if not final:
                slot_rotate(a)
                a("s_waitcnt vmcnt(%d)" % (8 if issue else 0))
        group_advance(a, False)
    a.label("L_B_p3")
    p3_body(False)
    a("s_add_u32 s%d, s%d, 1\ns_cmp_lt_u32 s%d, 3\ns_cbranch_scc1 L_B_p3" % (sCnt, sCnt, sCnt))
    p3_body(True)
    stamp(a, 7)
    a("s_waitcnt lgkmcnt(0)")
    store_partial(a, 1)
    if INK:
        tail(a, True)
    if STAMP: a("s_waitcnt vmcnt(0)")
    stamp(a, 9 if INK else 8)
    stamp_out(a, 10 if INK else 9)
    a("s_endpgm")

    a.label("L_A")
    if INK:
        a("v_mov_b32 v16, %d\nv_mov_b32 v18, 0\nv_mov_b32 v19, 0\nv_mov_b32 v20, 0\nv_mov_b32 v21, 0" % SYNC)
        a("s_lshl_b32 s%d, s2, 7\ns_add_u32 s%d, s%d, 0x%x" % (sT1, sT1, sT1, GO))
        a("buffer_load_dword v20, v18, %s, s%d offen sc1" % (srd(sWS), sT1))
        a("s_waitcnt vmcnt(0)")
        a("ds_write_b128 v16, v[18:21]\ns_waitcnt lgkmcnt(0)")
    def touch():
        a("v_lshlrev_b32 v16, 7, v0")
        a("s_lshl_b32 s%d, s%d, 14\ns_add_u32 s%d, s%d, s%d" % (sT0, sW, sT0, sT0, sXB))
        a("buffer_load_dword v17, v16, %s, s%d offen" % (srd(sXI), sT0))
        a("s_add_u32 s%d, s%d, 8192" % (sT0, sT0))
        a("buffer_load_dword v18, v16, %s, s%d offen" % (srd(sXI), sT0))
    if "touch0" in ARGS: cond(a, sW, 3, touch, eq=False)
    if "nocodepf" not in ARGS:
        def codepf():
            a("s_getpc_b64 s[%d:%d]" % (sRet, sRet + 1))
            a.label("L_pc")
            a("s_sub_u32 s%d, s%d, L_pc-%s\ns_subb_u32 s%d, s%d, 0" % (sRet, sRet, KNAME, sRet + 1, sRet + 1))
            a("s_lshl_b32 s%d, s%d, 11" % (sT0, sB))
            a("v_lshlrev_b32 v16, 7, v0\nv_add_u32 v16, s%d, v16" % sT0)
            a("v_cmp_gt_u32 vcc, L_code_end-%s, v16" % KNAME)
            a("s_and_b64 exec, vcc, 0xffff")
            lx = a.newlabel("L_x")
            a("s_cbranch_execz %s" % lx)
            a("global_load_dword v17, v16, s[%d:%d]" % (sRet, sRet + 1))
            a.label(lx)
            a("s_mov_b64 exec, -1")
        cond(a, sW, 3, codepf)
    a_kv_params(a, sKV, sRot)
    def oddw():
        a("s_mov_b32 s%d, s%d\ns_mov_b32 s%d, s%d" % (sK, sV, sK + 1, sV + 1))
        a("v_mov_b32 v%d, v%d\nv_mov_b32 v%d, v%d" % (vgK0, vgV, vgK1, vgV))
    a("s_and_b32 s%d, s%d, 1" % (sT0, sW))
    cond(a, sT0, 1, oddw)
    def akv_issue(m0add):
        pre = "s_lshl_b32 s%d, s%d, 14\ns_add_u32 s%d, s%d, s%d\ns_add_u32 s%d, s%d, 1\ns_and_b32 s%d, s%d, 7" % (sOff, sRot, sOff, sOff, sKV, sRot, sRot, sRot, sRot)
        return [pre] + dma_block("kv", sMA, m0add, sK, "A", (vgK0, vgK1))
    a("s_barrier")
    if "touch1" in ARGS: cond(a, sW, 3, touch, eq=False)
    a("s_barrier\ns_barrier\ns_barrier")
    a("s_waitcnt vmcnt(0)")
    zero_acc(a)
    a("v_add_u32 v%d, s%d, v%d" % (vT, sMA, vT))
    a("s_barrier")
    for k in range(2):
        a(w_off_first("wq", k))
        for g in dma_block("wq", sMA, k * SETSZ, sWQ, False): a(g)
    a("s_mov_b32 s%d, 0" % sCnt)
    a("s_waitcnt vmcnt(8)")
    a.label("L_A_q")
    a("s_xor_b32 s%d, s%d, 12288\ns_lshl_b32 s%d, s%d, 10\ns_add_u32 s%d, s%d, s%d" % (sN, sBuf, sT0, sW, sN, sN, sT0))
    for pos in range(4):
        a("s_barrier")
        xaddr(a, pos)
        issue = []
        if pos < 3: issue.append(skip_if(a, sCnt, 3, x_piece(pos, sX, sN)))
        wl = [w_off("wq", pos)] + dma_block("wq", sMA, (pos & 1) * SETSZ, sWQ, False)
        if pos >= 2:
            issue.append(either(a, sCnt, 3, "\n".join(akv_issue((pos & 1) * SETSZ)), "\n".join(wl)))
        else:
            issue += wl
        proj_compute(a, (pos & 1) * SETSZ, 4096, issue)
        if pos < 3: a("s_waitcnt vmcnt(8)")
    group_advance(a)
    a("s_add_u32 s%d, s%d, 1\ns_cmp_lt_u32 s%d, 4" % (sCnt, sCnt, sCnt))
    a("s_cbranch_scc0 L_A_q_done")
    a("s_waitcnt vmcnt(8)")
    a("s_branch L_A_q")
    a.label("L_A_q_done")
    stamp(a, 1)
    q_final(a)
    stamp(a, 2)
    if dbg: debug_dump(a, 0)
    a("s_sub_u32 s%d, %d, s%d" % (sT0, ARING, sMA))
    a("v_add_u32 v%d, s%d, v%d" % (vT, sT0, vT))
    a("v_add_u32 v%d, %d, v%d" % (vK, ARING, vK))
    chunk_reset(a)
    a("s_mov_b32 s%d, 0" % sCnt)
    a("s_mov_b32 s%d, 0" % sSet)
    a("s_waitcnt vmcnt(8)")
    a.label("L_A_att")
    a("s_barrier")
    for r in k_reads(0): a(r)
    def wo0():
        a(w_off_first("wo", 0))
        for g in dma_block("wo", sMA, 0, sWO, False): a(g)
    cond(a, sCnt, 7, wo0)
    tile_fast(a, BLK, 2 * BLK)
    tile_fast(a, 3 * BLK, None)
    a("s_add_u32 s%d, s%d, 1\ns_cmp_eq_u32 s%d, 3" % (sSet, sSet, sSet))
    a("s_mov_b32 s%d, %d\ns_cselect_b32 s%d, %d, s%d\ns_cselect_b32 s%d, 0, s%d" % (sT0, SETSZ, sT0, -2 * SETSZ, sT0, sSet, sSet))
    a("v_add_u32 v%d, s%d, v%d\nv_add_u32 v%d, s%d, v%d" % (vT, sT0, vT, vK, sT0, vK))
    a("s_add_u32 s%d, s%d, 1\ns_cmp_lt_u32 s%d, 8" % (sCnt, sCnt, sCnt))
    a("s_cbranch_scc0 L_A_att_done")
    a("s_waitcnt vmcnt(0)")
    a("s_branch L_A_att")
    a.label("L_A_att_done")
    stamp(a, 3)
    o_final(a)
    if dbg: debug_dump(a, 1)
    a("s_mov_b32 s%d, 12288" % sBuf)
    l = a.newlabel("L_p")
    a("s_cmp_eq_u32 s%d, s%d\ns_cbranch_scc0 %s" % (sW, sCh, l))
    publish(a, sBuf)
    a.label(l)
    stamp(a, 4)
    a("s_sub_u32 s%d, s%d, %d" % (sT0, sMA, ARING + 2 * SETSZ))
    a("v_add_u32 v%d, s%d, v%d" % (vT, sT0, vT))
    a("s_mov_b32 s%d, 0" % sCnt)
    a("s_waitcnt vmcnt(0) lgkmcnt(0)")
    a.label("L_A_o")
    for pos in range(4):
        a("s_barrier")
        if pos == 0:
            def first():
                a(w_off_first("wo", 1))
                for g in dma_block("wo", sMA, SETSZ, sWO, False): a(g)
                zero_acc(a)
            cond(a, sCnt, 0, first)
            l = a.newlabel("L_p")
            a("s_cmp_eq_u32 s%d, 3\ns_cbranch_scc1 %s" % (sCnt, l))
            a("s_cmp_eq_u32 s%d, s%d\ns_cbranch_scc0 %s" % (sW, sChN, l))
            a("s_xor_b32 s%d, s%d, 12288" % (sT1, sBuf))
            publish(a, sT1)
            a("s_waitcnt lgkmcnt(0)")
            a.label(l)
        oaddr(a, pos, sBuf)
        wl = [w_off("wo", pos)] + dma_block("wo", sMA, (pos & 1) * SETSZ, sWO, False)
        issue = [skip_if(a, sCnt, 3, "\n".join(wl))] if pos >= 2 else wl
        proj_compute(a, (pos & 1) * SETSZ, 1024, issue)
        if pos == 2:
            cond(a, sCnt, 3, lambda: a("s_waitcnt vmcnt(0)"))
        if pos < 3: a("s_waitcnt vmcnt(8)")
    group_advance(a)
    a("s_add_u32 s%d, s%d, 1\ns_cmp_lt_u32 s%d, 4" % (sCnt, sCnt, sCnt))
    a("s_waitcnt vmcnt(8)")
    a("s_cbranch_scc1 L_A_o")
    stamp(a, 5)
    store_partial(a, 0)
    a("s_barrier")
    if INK:
        tail(a, False)
        if STAMP: a("s_waitcnt vmcnt(0)")
    stamp(a, 6)
    stamp_out(a, 9)
    a("s_endpgm")
    slow_path(a)
    a.label("L_code_end")
    a("s_endpgm")

def gen_reduce(a):
    kernel_begin(a, "red_kernel")
    a("s_cmp_lt_u32 s2, 768\ns_cbranch_scc1 R_start\ns_endpgm")
    a.label("R_start")
    a("s_load_dwordx2 s[4:5], s[0:1], 80\ns_load_dwordx2 s[6:7], s[0:1], 96")
    a("v_lshrrev_b32 v1, 6, v0\ns_nop 0\nv_readfirstlane_b32 s3, v1")
    a("v_and_b32 v0, 63, v0\nv_lshlrev_b32 v1, 4, v0")
    a("s_lshl_b32 s16, s2, 2\ns_add_u32 s16, s16, s3")
    a("s_lshl_b32 s17, s16, 13\ns_add_u32 s18, s17, 4096")
    a("s_waitcnt lgkmcnt(0)")
    a("s_mov_b32 s8, s4\ns_mov_b32 s9, s5\ns_mov_b32 s10, 0x%x\ns_mov_b32 s11, 0x20000" % SZ["out"])
    a("s_mov_b32 s12, s6\ns_mov_b32 s13, s7\ns_mov_b32 s14, 0x%x\ns_mov_b32 s15, 0x20000" % SZ["ws"])
    for g in range(8):
        a("buffer_load_dwordx4 v[%d:%d], v1, s[12:15], s%d offen offset:%d" % (8 + 4 * g, 11 + 4 * g, 17 + g // 4, (g & 3) * 1024))
    a("s_mul_i32 s19, s16, 43691\ns_lshr_b32 s19, s19, 19")
    a("s_mul_i32 s20, s19, 12\ns_sub_u32 s20, s16, s20")
    a("s_mul_i32 s21, s20, 11\ns_lshr_b32 s21, s21, 5")
    a("s_mul_i32 s22, s21, 3\ns_sub_u32 s22, s20, s22")
    a("s_and_b32 s23, s19, 3\ns_bfe_u32 s24, s19, 0x50002\ns_lshr_b32 s25, s19, 7")
    a("s_mul_i32 s26, s24, 48\ns_lshl_b32 s27, s22, 4\ns_add_u32 s26, s26, s27\ns_lshl_b32 s26, s26, 11")
    a("s_lshl_b32 s27, s25, 10\ns_add_u32 s26, s26, s27\ns_lshl_b32 s27, s23, 8\ns_add_u32 s26, s26, s27")
    a("s_lshl_b32 s27, s21, 6\ns_add_u32 s26, s26, s27")
    a("v_and_b32 v2, 15, v0\nv_lshrrev_b32 v3, 4, v0\nv_lshlrev_b32 v2, 11, v2\nv_lshl_add_u32 v2, v3, 4, v2")
    for g in range(8):
        a("s_waitcnt vmcnt(%d)" % (7 - g))
        for d in range(4):
            src = 8 + 4 * g + d
            if g == 0:
                a("v_lshlrev_b32 v%d, 16, v%d" % (40 + 2 * d, src))
                a("v_and_b32 v%d, 0xffff0000, v%d" % (41 + 2 * d, src))
            else:
                a("v_lshlrev_b32 v48, 16, v%d" % src)
                a("v_and_b32 v49, 0xffff0000, v%d" % src)
                a("v_add_f32 v%d, v%d, v48" % (40 + 2 * d, 40 + 2 * d))
                a("v_add_f32 v%d, v%d, v49" % (41 + 2 * d, 41 + 2 * d))
    for d in range(4):
        a("v_cvt_pk_bf16_f32 v%d, v%d, v%d" % (4 + d, 40 + 2 * d, 41 + 2 * d))
    a("v_permlane32_swap_b32 v4, v6\nv_permlane32_swap_b32 v5, v7")
    a("v_permlane16_swap_b32 v4, v6\nv_permlane16_swap_b32 v5, v7")
    a("buffer_store_dwordx4 v[4:7], v2, s[8:11], s26 offen")
    a("s_endpgm")

HDR = open("cdna_kernels/%s.s.ref" % NAME).read().split("; Override launch")[0]

def make(dbg=False):
    a = Asm()
    gen_main(a, dbg)
    if not INK: gen_reduce(a)
    rep = []
    lines = hazard.run(a.l, rep)
    probs = hazard.check_all_edges(lines)
    for p in probs: print("EDGE HAZARD", p)
    if INK:
        src = HDR + "; @launch grid=(256,1,1) block=(512,1,1) lds=%d\n" % LDS_BYTES
    else:
        src = HDR + "; @launch kernel=main_kernel grid=(256,1,1) block=(512,1,1) lds=%d\n" % LDS_BYTES
        src += "; @launch kernel=red_kernel grid=(768,1,1) block=(256,1,1) lds=0\n"
    src += ".amdgcn_target \"amdgcn-amd-amdhsa--gfx950\"\n" + "\n".join(lines) + "\n"
    src += kernel_desc(KNAME, NVGPR) + ("" if INK else kernel_desc("red_kernel", 56, 40))
    print("nops inserted", rep, "lines", len(lines), "lds", LDS_BYTES)
    return src

if __name__ == "__main__":
    dbg = "dbg" in ARGS
    out = opt("o", "k_dbg" if dbg else "k_st" if STAMP else "k")
    build(make(dbg), out, NAME + "_kernel")
```

```python
def make_sched(cap=14, pre=48, capA=16, aq_steps=16, boost=0, alt=0, cap3=None, bcap=16):
    issued_at = {}
    I = {0: 0, 1: 24 * 16}
    END = {0: 24 * 16, 1: 40 * 16}
    for k in range(pre):
        issued_at[k] = -2
    I[0] = pre
    cons_step = {}
    steps = []
    C = 0
    s = 0
    while C < 40:
        st = dict(cons=None, iss={0: [], 1: []}, when={0: "post", 1: "post"})
        ready = all(issued_at.get(C * 16 + p, 10**9) <= s - 2 for p in range(16))
        if C == 16 and s < aq_steps: ready = False
        if ready:
            st["cons"] = C; cons_step[C] = s; C += 1
        inA = st["cons"] is not None and 16 <= st["cons"] < 24
        budget = capA if inA else cap
        if not inA and s < 16 and alt: budget = cap + (alt if s & 1 else -alt)
        if not inA and C > 24 and cap3: budget = cap3
        if boost and 16 - boost <= C <= 16 and not inA: budget = bcap
        for who in (0, 1):
            n = 0
            while n < budget and I[who] < END[who]:
                row = I[who] // 16
                prev = row - 3
                if prev >= 0:
                    if prev not in cons_step: break
                    owner = 0 if prev < 16 else 1 if prev >= 24 else None
                    if cons_step[prev] == s and owner != who: break
                issued_at[I[who]] = s
                st["iss"][who].append((row, I[who] % 16)); I[who] += 1; n += 1
            budget -= n
        steps.append(st); s += 1
    return steps
if __name__ == "__main__":
    for cap in (13, 14, 15):
        for pre in (0, 3, 5, 8):
            S = make_sched(cap, 48, boost=pre)
            print(cap, pre, len(S), " ".join("%s/%d" % ("-" if x["cons"] is None else x["cons"], len(x["iss"][0]) + len(x["iss"][1])) for x in S))
```

```python
import sys, math, struct
from asmlib import *
import hazard
from sched import make_sched

NAME = "concat_heads__gqa_block_cached__mha_block_cached__near_ridge"
KNAME = NAME + "_kernel"
ARGS = set(sys.argv[1:])
def opt(name, default=None):
    for x in sys.argv[1:]:
        if x.startswith(name + "="): return x[len(name) + 1:]
    return default

BLK = 8448
PIECE = 1056
SETSZ = 4 * BLK
XC = 6144
SP = 24576
KVB = 28672
WR = KVB + 3 * SETSZ
LDS_BYTES = WR + SETSZ
assert LDS_BYTES == 163840
SYNC = WR + 3 * BLK + 7 * PIECE + 1024
HO = WR
assert HO + 24576 <= SYNC

vLane16, vT, vK, vgK0, vgK1, vgV, vgWo = 1, 2, 3, 4, 5, 6, 7
ACC, QF, F, S, P, NM, L, ON, T = 8, 104, 152, 184, 208, 220, 232, 244, 248
VWQ = S
vXr, vgWq, vgX = 245, 244, 246
vXa, vTc, vTmpA, vTmpB = T, T + 1, T + 2, T + 3
LB = (152, 184)
FR = 216
BFR = 232
AF0, BF0 = 200, 232
def acc(t, qt): return ACC + (t * 3 + qt) * 4
def qf(s, qt): return QF + (s * 3 + qt) * 4
def sreg(kt, qt): return S + (kt * 3 + qt) * 4
def preg(qt): return P + qt * 4
def v4(r): return "v[%d:%d]" % (r, r + 3)
def v2(r): return "v[%d:%d]" % (r, r + 1)

sSelLo, sThr = 0, 1
sWave, sB, sG, sW = 3, 4, 5, 6
sX, sK, sV, sWQ, sWO, sWS, sXI = 8, 12, 16, 20, 24, 28, 32
sPtr = 36
sCyc, sSelHi = 60, 61
sKV, sRot, sOff, sT0, sT1, sT2, sCnt = 62, 63, 64, 65, 66, 67, 68
sWqB, sWoB, sXB, sCh, sChN, sBuf = 69, 70, 71, 72, 73, 74
sMW, sMK = 75, 76
sFloor = 77
sRet, sRet2 = 78, 80
sSp = 82
sH0, sN, sC, sSet = 86, 87, 88, 89
sSl0, sSl1, sSl2 = 7, 62, 63
def srd(r): return "s[%d:%d]" % (r, r + 3)

SCALE = (128 ** -0.5) * math.log2(math.e)
BIAS = 7.0
def fbits(x): return struct.unpack("<I", struct.pack("<f", x))[0]
STAMP = "stamp" in ARGS
GO = 48 << 20

def mf(d, a, b, c):
    return "v_mfma_f32_16x16x32_bf16 %s, %s, %s, %s" % (v4(d), v4(a), v4(b), v4(c) if c is not None else "0")

def weave(a, main, *streams):
    pos = [0] * len(streams)
    for i, m in enumerate(main):
        a(m)
        for k, (lst, st, en) in enumerate(streams):
            if i >= st:
                want = len(lst) if i >= en - 1 else (len(lst) * (i - st + 1) + (en - st) - 1) // (en - st)
                while pos[k] < want:
                    a(lst[pos[k]]); pos[k] += 1
    for k, (lst, st, en) in enumerate(streams):
        while pos[k] < len(lst):
            a(lst[pos[k]]); pos[k] += 1

def pol(k): return (" " + opt("pol" + k, "nt").replace("+", " ").replace("plain", "")).rstrip()

def kv_piece(m0base, m0add, j, isv, sk=sK, sv=sV):
    vg = vgV if isv else (vgK0 if j < 4 else vgK1)
    return ["s_add_u32 m0, s%d, %d" % (m0base, m0add + j * (PIECE - 256)),
            "buffer_load_dwordx4 v%d, %s, s%d offen offset:%d nt lds" % (vg, srd(sv if isv else sk), sOff, j * 256)]

def wqT(m0base, m0add):
    out = []
    for j in range(8):
        if j & 3 == 0: out.append("s_add_u32 m0, s%d, %d" % (m0base, m0add + j * PIECE))
        out.append("buffer_load_dwordx4 v%d, %s, s%d offen offset:%d lds" % (VWQ + j, srd(sWQ), sOff, (j & 3) * PIECE))
    return out
def woT(m0base, m0add):
    out = []
    for j in range(8):
        out.append("s_add_u32 m0, s%d, %d" % (m0base, m0add + j * PIECE - (j & 3) * 1024) + ("\ns_add_u32 s%d, s%d, 4096" % (sOff, sOff) if j == 4 else ""))
        out.append("buffer_load_dwordx4 v%d, %s, s%d offen offset:%d lds" % (vgWo, srd(sWO), sOff, (j & 3) * 1024))
    return out
def emit(a, lst):
    prev = ""
    for x in lst:
        if x.startswith("buffer") and x.endswith("lds") and prev.split("\n")[-1].startswith("s_add_u32 m0"): a("s_nop 0")
        a(x); prev = x

def tr_reads(off, tiles=range(8), dst0=F, va=vT):
    return ["ds_read_b64_tr_b16 %s, v%d offset:%d" % (v2(dst0 + t * 4 + h * 2), va, off + 256 * h + 32 * t) for t in tiles for h in range(2)]
def k_reads(off, kts=(0, 1)):
    return ["ds_read_b128 %s, v%d offset:%d" % (v4(F + (kt * 4 + s) * 4), vK, off + 512 * kt + 64 * s) for kt in kts for s in range(4)]

def sm_chain(kt, qt):
    t0 = T + ((kt * 3 + qt) & 1) * 4
    s = sreg(kt, qt)
    out = ["v_exp_f32 v%d, v%d" % (t0 + r, s + r) for r in range(4)]
    out.append("v_cvt_pk_bf16_f32 v%d, v%d, v%d" % (preg(qt) + 2 * kt, t0, t0 + 1))
    out.append("v_cvt_pk_bf16_f32 v%d, v%d, v%d" % (preg(qt) + 2 * kt + 1, t0 + 2, t0 + 3))
    return out
def qk_chain(kt, qt):
    return [mf(sreg(kt, qt), F + (kt * 4 + s) * 4, qf(s, qt), sreg(kt, qt) if s else NM + qt * 4) for s in range(4)]
def pv_list(tiles): return [mf(acc(t, qt), F + t * 4, preg(qt), acc(t, qt)) for t in tiles for qt in range(3)]
def l_list(): return [mf(L + qt * 4, ON, preg(qt), L + qt * 4) for qt in range(3)]

def tile_fast(a, vo, knext):
    c = [qk_chain(kt, qt) for kt in range(2) for qt in range(3)]
    sm = [sm_chain(kt, qt) for kt in range(2) for qt in range(3)]
    v0 = tr_reads(vo, range(4)); v1 = tr_reads(vo, range(4, 8))
    for s in range(4):
        a("s_waitcnt lgkmcnt(%d)" % (7 - s))
        a(c[0][s])
    for m in c[1]: a(m)
    weave(a, c[2], (sm[0], 1, 4))
    a("s_waitcnt lgkmcnt(0)")
    weave(a, c[3], (sm[1], 0, 4), (v0[:4], 0, 4))
    weave(a, c[4], (sm[2], 0, 4), (v0[4:], 0, 4))
    s5 = sreg(1, 2)
    O1, O2 = P + 10, P + 11
    pre = ["v_or3_b32 v%d, v%d, v%d, v%d" % (O1, P, P + 1, P + 4), "v_or3_b32 v%d, v%d, v%d, v%d" % (O2, P + 5, P + 8, P + 9)]
    weave(a, c[5], (pre, 0, 2), (sm[3], 0, 4))
    a(sm[4][0]); a(sm[4][1])
    a("v_or3_b32 v%d, v%d, v%d, v%d" % (O1, O1, P + 2, P + 3))
    a(sm[4][2]); a(sm[4][3])
    a("v_or_b32 v%d, v%d, v%d" % (O1, O1, O2))
    a(sm[4][4]); a(sm[4][5])
    a("v_max3_f32 v%d, v%d, v%d, v%d" % (O2, s5, s5 + 1, s5 + 2))
    a("v_or3_b32 v%d, v%d, v%d, v%d" % (O1, O1, P + 6, P + 7))
    a("v_lshl_or_b32 v%d, v%d, 16, v%d" % (O1, O1, O1))
    a("v_and_b32 v%d, 0x40000000, v%d" % (O1, O1))
    a("v_max3_f32 v%d, v%d, v%d, v%d" % (O2, O2, s5 + 3, O1))
    a("v_cmp_le_f32 vcc, s%d, v%d" % (sThr, O2))
    ok = a.newlabel("L_ok")
    a("s_cbranch_vccz %s" % ok)
    a("s_call_b64 s[%d:%d], L_slow" % (sRet, sRet + 1))
    a.label(ok)
    ll = l_list()
    a("s_waitcnt lgkmcnt(0)")
    m1 = [ll[0], ll[1]] + [mf(acc(t, qt), F + t * 4, preg(qt), acc(t, qt)) for t in range(4) for qt in range(2)]
    weave(a, m1, (sm[5], 0, 5), (v1, 0, 8))
    a(ll[2])
    for t in range(4): a(mf(acc(t, 2), F + t * 4, preg(2), acc(t, 2)))
    m2 = pv_list(range(4, 8))
    if knext is not None:
        for r in k_reads(knext, (0,)): a(r)
        a("s_waitcnt lgkmcnt(4)")
        for m in m2: a(m)
        for r in k_reads(knext, (1,)): a(r)
    else:
        a("s_waitcnt lgkmcnt(0)")
        for m in m2: a(m)

def xlane(a, op, r, t):
    a("v_mov_b32 v%d, v%d" % (t, r))
    a("v_permlane32_swap_b32 v%d, v%d" % (t, r))
    a("%s v%d, v%d, v%d" % (op, r, r, t))
    a("v_mov_b32 v%d, v%d" % (t, r))
    a("v_permlane16_swap_b32 v%d, v%d" % (t, r))
    a("%s v%d, v%d, v%d" % (op, r, r, t))

def slow_path(a):
    a.label("L_slow")
    a("s_nop 7")
    for qt in range(3):
        s0, s1 = sreg(0, qt), sreg(1, qt)
        x = T
        a("v_max3_f32 v%d, v%d, v%d, v%d" % (x, s0, s0 + 1, s0 + 2))
        a("v_max3_f32 v%d, v%d, v%d, v%d" % (x, x, s0 + 3, s1))
        a("v_max3_f32 v%d, v%d, v%d, v%d" % (x, x, s1 + 1, s1 + 2))
        a("v_max_f32 v%d, v%d, v%d" % (x, x, s1 + 3))
        xlane(a, "v_max_f32", x, T + 1)
        a("v_max_f32 v%d, s%d, v%d" % (x, sFloor, x))
        a("v_add_f32 v%d, 0x%x, v%d" % (x, fbits(BIAS), x))
        a("v_sub_f32 v%d, 0, v%d" % (T + 1, x))
        a("v_min_f32 v%d, 0, v%d" % (T + 1, T + 1))
        a("v_exp_f32 v%d, v%d" % (T + 1, T + 1))
        for r in range(4):
            a("v_sub_f32 v%d, v%d, v%d" % (NM + qt * 4 + r, NM + qt * 4 + r, x))
            a("v_sub_f32 v%d, v%d, v%d" % (s0 + r, s0 + r, x))
            a("v_sub_f32 v%d, v%d, v%d" % (s1 + r, s1 + r, x))
        lsk = a.newlabel("L_nors")
        a("s_cmp_lg_u32 s%d, 1.0\ns_cbranch_scc1 %s" % (sThr, lsk))
        for r in range(4):
            a("v_mul_f32 v%d, v%d, v%d" % (L + qt * 4 + r, L + qt * 4 + r, T + 1))
        for t in range(8):
            for r in range(4):
                a("v_mul_f32 v%d, v%d, v%d" % (acc(t, qt) + r, acc(t, qt) + r, T + 1))
        a.label(lsk)
    for kt in range(2):
        for qt in range(3):
            for s in sm_chain(kt, qt): a(s)
    a("s_mov_b32 s%d, 0x%x" % (sFloor, fbits(-BIAS)))
    a("s_mov_b32 s%d, 1.0" % sThr)
    a("s_nop 1")
    a("s_setpc_b64 s[%d:%d]" % (sRet, sRet + 1))

def zero(a, base, n):
    for r in range(n): a("v_mov_b32 v%d, 0" % (base + r))

def att_init(a):
    zero(a, ACC, 96); zero(a, NM, 24)
    for r in range(4): a("v_mov_b32 v%d, 0x3f803f80" % (ON + r))
    a("s_mov_b32 s%d, 0x%x\ns_mov_b32 s%d, 0xff800000" % (sFloor, fbits(-3e38), sThr))

def scale_acc(a, sc):
    for t in range(8):
        for qt in range(3):
            for r in (0, 2):
                x = acc(t, qt) + r
                a("v_pk_mul_f32 %s, %s, %s%s" % (v2(x), v2(x), sc(qt), " op_sel_hi:[1,0]" if sc(qt)[0] == "s" else ""))

def pack_T(a):
    for s in range(4):
        for qt in range(3):
            d = qf(s, qt)
            for hh in range(2):
                src = acc(2 * s + hh, qt)
                a("v_cvt_pk_bf16_f32 v%d, v%d, v%d" % (d + 2 * hh, src, src + 1))
                a("v_cvt_pk_bf16_f32 v%d, v%d, v%d" % (d + 2 * hh + 1, src + 2, src + 3))
def pack_R(a):
    for s in range(4):
        for qt in range(3):
            for p in range(4):
                a("v_cvt_pk_bf16_f32 v%d, v%d, v%d" % (qf(s, qt) + p, acc(2 * p, qt) + s, acc(2 * p + 1, qt) + s))

def q_final_T(a):
    a("s_nop 7")
    scale_acc(a, lambda qt: "s[%d:%d]" % (sC, sC + 1))
    pack_T(a)
    for op in ("v_permlane32_swap_b32", "v_permlane16_swap_b32"):
        for i in range(12):
            d = QF + 4 * i
            a("%s v%d, v%d" % (op, d, d + 2)); a("%s v%d, v%d" % (op, d + 1, d + 3))
def q_final_R(a):
    a("s_nop 7")
    scale_acc(a, lambda qt: "s[%d:%d]" % (sC, sC + 1))
    pack_R(a)
    for qt in range(3):
        for (x, y) in ((0, 2), (1, 3)):
            for p in range(4): a("v_permlane32_swap_b32 v%d, v%d" % (qf(x, qt) + p, qf(y, qt) + p))
    for qt in range(3):
        for (x, y) in ((0, 1), (2, 3)):
            for p in range(4): a("v_permlane16_swap_b32 v%d, v%d" % (qf(x, qt) + p, qf(y, qt) + p))
def o_final(a):
    a("s_nop 7")
    for qt in range(3):
        a("v_rcp_f32 v%d, v%d" % (L + qt * 4, L + qt * 4))
        a("v_rcp_f32 v%d, v%d" % (L + qt * 4 + 1, L + qt * 4 + 1))
    scale_acc(a, lambda qt: v2(L + qt * 4))
    pack_T(a)

def publish(a, base_sgpr, src=QF, n=12):
    a("v_add_u32 v%d, s%d, v%d" % (vTmpA, base_sgpr, vLane16))
    for i in range(n):
        a("ds_write_b128 v%d, %s offset:%d" % (vTmpA, v4(src + i * 4), i * 1024))

def debug_dump(a, which, isB):
    a("s_lshl_b32 s%d, s2, 2\ns_add_u32 s%d, s%d, s%d" % (sT0, sT0, sT0, sW))
    if isB: a("s_add_u32 s%d, s%d, 1024" % (sT0, sT0))
    a("s_mul_i32 s%d, s%d, 12288" % (sT0, sT0))
    a("s_add_u32 s%d, s%d, 0x%x" % (sT0, sT0, (64 + 32 * which) << 20))
    for i in range(12):
        a("s_add_u32 s%d, s%d, %d" % (sT1, sT0, i * 1024))
        a("buffer_store_dwordx4 %s, v%d, %s, s%d offen" % (v4(QF + i * 4), vLane16, srd(sWS), sT1))
    a("s_waitcnt vmcnt(0)")

def store_partial(a, br, cb):
    a("s_nop 7")
    a("s_add_u32 s%d, s%d, %d" % (sT0, sB, br * 32))
    a("s_lshl_b32 s%d, s%d, 2\ns_add_u32 s%d, s%d, s%d" % (sT0, sT0, sT0, sT0, cb))
    a("s_mul_i32 s%d, s%d, %d" % (sT0, sT0, 12 * 8192))
    a("s_lshl_b32 s%d, s%d, 10\ns_add_u32 s%d, s%d, s%d" % (sT1, sG, sT0, sT0, sT1))
    for s in range(4):
        for qt in range(3):
            d = qf(s, qt); i = s * 3 + qt
            if br:
                for hh in range(2):
                    src = acc(2 * s + hh, qt)
                    a("v_cvt_pk_bf16_f32 v%d, v%d, v%d" % (d + 2 * hh, src, src + 1))
                    a("v_cvt_pk_bf16_f32 v%d, v%d, v%d" % (d + 2 * hh + 1, src + 2, src + 3))
            else:
                for p in range(4):
                    a("v_cvt_pk_bf16_f32 v%d, v%d, v%d" % (d + p, acc(2 * p, qt) + s, acc(2 * p + 1, qt) + s))
            a("s_add_u32 s%d, s%d, %d" % (sT1, sT0, i * 8192))
            a("buffer_store_dwordx4 %s, v%d, %s, s%d offen sc1" % (v4(d), vLane16, srd(sWS), sT1))

def cond(a, reg, val, body, eq=True):
    l = a.newlabel("L_c")
    a("s_cmp_eq_u32 s%d, %d" % (reg, val))
    a("s_cbranch_scc%d %s" % (0 if eq else 1, l))
    body()
    a.label(l)
def cond_lt(a, reg, val, body):
    l = a.newlabel("L_c")
    a("s_cmp_lt_u32 s%d, %d\ns_cbranch_scc0 %s" % (reg, val, l))
    body()
    a.label(l)

FS = int(opt("fs", -1))
SB = int(opt("sb", -1))
def sbst(a, s_):
    if SB >= 0 and SB <= s_ < SB + 9: stamp(a, 1 + s_ - SB, True)
def stamp(a, k, fine=False):
    if not STAMP: return
    if (FS >= 0 or SB >= 0) and not fine and k >= 1: return
    a("s_memrealtime s[90:91]\ns_waitcnt lgkmcnt(0)\ns_mov_b32 s%d, s90" % (92 + k))
def stamp_out(a, n):
    if not STAMP: return
    a("s_lshl_b32 s%d, s2, 3\ns_add_u32 s%d, s%d, s%d\ns_lshl_b32 s%d, s%d, 6\ns_add_u32 s%d, s%d, 0x%x" % (sT0, sT0, sT0, sWave, sT0, sT0, sT0, sT0, 536870912 - (1 << 20)))
    a("s_mov_b64 exec, 1")
    a("v_mov_b32 v15, 0")
    for k in range(n):
        a("v_mov_b32 v14, s%d" % (92 + k))
        a("buffer_store_dword v14, v15, %s, s%d offen offset:%d" % (srd(sWS), sT0, 4 * k))
        a("s_nop 1")

def dbg_srd(a, q=sXI):
    a("s_mov_b32 s%d, s%d\ns_mov_b32 s%d, s%d\ns_mov_b32 s%d, 256\ns_mov_b32 s%d, 0x20000" % (q, sPtr + 22, q + 1, sPtr + 23, q + 2, q + 3))

def arrive(a):
    ld = a.newlabel("L_d"); lw = a.newlabel("L_w"); lp = a.newlabel("L_poll")
    a("v_mov_b32 v%d, %d\nv_mov_b32 v%d, 1" % (T, SYNC, T + 1))
    a("v_lshlrev_b32 v%d, 7, v0" % (T + 4))
    a("s_lshl_b32 s%d, s%d, 10\ns_add_u32 s%d, s%d, 0x%x" % (sOff, sB, sOff, sOff, GO))
    a("s_lshl_b32 s%d, s2, 7\ns_add_u32 s%d, s%d, 0x%x" % (sT1, sT1, sT1, GO))
    a("s_mov_b64 exec, 1")
    a("ds_read_b32 v%d, v%d offset:8" % (T + 5, T))
    a("v_mov_b32 v%d, 0" % (T + 3))
    a("s_waitcnt vmcnt(0)")
    a("ds_add_rtn_u32 v%d, v%d, v%d" % (T + 2, T, T + 1))
    a("s_waitcnt lgkmcnt(0)")
    a("v_readfirstlane_b32 s%d, v%d" % (sT0, T + 2))
    a("s_cmp_eq_u32 s%d, 7\ns_cbranch_scc0 %s" % (sT0, ld))
    a("s_mov_b64 exec, 0xff")
    a("buffer_atomic_add v%d, v%d, %s, s%d offen sc1" % (T + 1, T + 4, srd(sWS), sOff))
    a("s_mov_b64 exec, 1")
    a("v_readfirstlane_b32 s%d, v%d" % (sN, T + 5))
    a("s_add_u32 s%d, s%d, 8" % (sN, sN))
    a("s_mov_b32 s%d, 200000" % sT2)
    a.label(lp)
    a("s_sub_u32 s%d, s%d, 1\ns_cbranch_scc1 %s" % (sT2, sT2, lw))
    a("buffer_load_dword v%d, v%d, %s, s%d offen sc1" % (T + 2, T + 3, srd(sWS), sT1))
    a("s_waitcnt vmcnt(0)")
    a("v_readfirstlane_b32 s%d, v%d" % (sT0, T + 2))
    a("s_cmp_eq_u32 s%d, s%d\ns_cbranch_scc1 %s" % (sT0, sN, lw))
    a("s_sleep 1\ns_branch %s" % lp)
    a.label(lw)
    a("ds_write_b32 v%d, v%d offset:4" % (T, T + 1))
    a("s_waitcnt lgkmcnt(0)")
    a.label(ld)
    a("s_mov_b64 exec, -1")

def wait_flag(a, sl):
    lp = a.newlabel("L_f"); ld = a.newlabel("L_g")
    a("v_mov_b32 v%d, %d" % (T, SYNC))
    a("s_mov_b32 s%d, 4000000" % sT2)
    a.label(lp)
    a("s_sub_u32 s%d, s%d, 1\ns_cbranch_scc1 %s" % (sT2, sT2, ld))
    a("ds_read_b32 v%d, v%d offset:4" % (T + 1, T))
    a("s_waitcnt lgkmcnt(0)")
    a("v_readfirstlane_b32 s%d, v%d" % (sT0, T + 1))
    a("s_cmp_lg_u32 s%d, 0\ns_cbranch_scc1 %s" % (sT0, ld))
    a("s_sleep %d\ns_branch %s" % (sl, lp))
    a.label(ld)

def reduce_prep(a, it, br, ld, so):
    a("s_mul_i32 s%d, s%d, 6\ns_add_u32 s%d, s%d, s%d" % (sT0, sG, sT0, sT0, it))
    a("s_add_u32 s%d, s%d, %d\ns_mul_i32 s%d, s%d, 48\ns_add_u32 s%d, s%d, s%d" % (sT1, sB, 32 * br, sT1, sT1, sT1, sT1, sT0))
    a("s_lshl_b32 s%d, s%d, 13" % (ld, sT1))
    a("s_mul_i32 s%d, s%d, 43\ns_lshr_b32 s%d, s%d, 7" % (sT1, sT0, sT1, sT1))
    a("s_mul_i32 s%d, s%d, 3\ns_sub_u32 s%d, s%d, s%d" % (sT2, sT1, sT2, sT0, sT2))
    a("s_mul_i32 s%d, s%d, 3\ns_add_u32 s%d, s%d, s%d\ns_lshl_b32 s%d, s%d, 15" % (so, sB, so, so, sT2, so, so))
    if br:
        a("s_lshl_b32 s%d, s%d, 6\ns_add_u32 s%d, s%d, s%d\ns_add_u32 s%d, s%d, 1024" % (sT1, sT1, so, so, sT1, so, so))
    else:
        a("s_lshr_b32 s%d, s%d, 2\ns_lshl_b32 s%d, s%d, 8\ns_add_u32 s%d, s%d, s%d" % (sT2, sT1, sT2, sT2, so, so, sT2))
        a("s_and_b32 s%d, s%d, 3\ns_lshl_b32 s%d, s%d, 4\ns_add_u32 s%d, s%d, s%d" % (sT1, sT1, sT1, sT1, so, so, sT1))
def reduce_issue(a, D, ld):
    for g_ in range(8):
        if g_ == 4: a("s_add_u32 s%d, s%d, 4096" % (ld, ld))
        a("buffer_load_dwordx4 %s, v%d, %s, s%d offen offset:%d sc1" % (v4(D + 4 * g_), vLane16, srd(sWS), ld, (g_ & 3) * 1024))
RA, RX, RADB, RADA, RO = 200, 208, 212, 213, 216
def reduce_fin(a, D, br, so, younger, k):
    O_ = RO + 4 * k
    for g_ in range(8):
        a("s_waitcnt vmcnt(%d)" % (7 - g_ + younger))
        for d in range(4):
            src = D + 4 * g_ + d
            if g_ == 0:
                a("v_lshlrev_b32 v%d, 16, v%d" % (RA + 2 * d, src))
                a("v_and_b32 v%d, 0xffff0000, v%d" % (RA + 2 * d + 1, src))
            else:
                X = RX + (d & 1) * 2
                a("v_lshlrev_b32 v%d, 16, v%d" % (X, src))
                a("v_and_b32 v%d, 0xffff0000, v%d" % (X + 1, src))
                a("v_pk_add_f32 %s, %s, %s" % (v2(RA + 2 * d), v2(RA + 2 * d), v2(X)))
    for d in range(4):
        a("v_cvt_pk_bf16_f32 v%d, v%d, v%d" % (O_ + d, RA + 2 * d, RA + 2 * d + 1))
    if br:
        a("v_permlane32_swap_b32 v%d, v%d\nv_permlane32_swap_b32 v%d, v%d" % (O_, O_ + 2, O_ + 1, O_ + 3))
        a("v_permlane16_swap_b32 v%d, v%d\nv_permlane16_swap_b32 v%d, v%d" % (O_, O_ + 2, O_ + 1, O_ + 3))
    return "buffer_store_dwordx4 %s, v%d, %s, s%d offen sc1" % (v4(O_), RADB if br else RADA, srd(sK), so)

def tail(a, isB):
    arrive(a)
    a("v_and_b32 v%d, 15, v0\nv_lshrrev_b32 v%d, 4, v0\nv_lshlrev_b32 v%d, 11, v%d" % (RADB, RX, RADB, RADB))
    a("v_lshl_add_u32 v%d, v%d, 6, v%d\nv_lshl_add_u32 v%d, v%d, 4, v%d" % (RADA, RX, RADB, RADB, RX, RADB))
    a("s_mov_b32 s%d, s%d\ns_mov_b32 s%d, s%d\ns_mov_b32 s%d, 0x%x\ns_mov_b32 s%d, 0x20000" % (sK, sPtr + 20, sK + 1, sPtr + 21, sK + 2, SZ["out"], sK + 3))
    if isB:
        reduce_prep(a, sW, 1, sBuf, sCh)
        reduce_prep(a, sW, 0, sSet, sChN)
        wait_flag(a, 1)
        stamp(a, 8)
        reduce_issue(a, ACC, sBuf); reduce_issue(a, ACC + 32, sSet)
        st = [reduce_fin(a, ACC, 1, sCh, 8, 0), reduce_fin(a, ACC + 32, 0, sChN, 0, 1)]
        for s_ in st: a(s_)
    else:
        l2 = a.newlabel("L_ta")
        a("s_cmp_ge_u32 s%d, 2\ns_cbranch_scc1 %s" % (sW, l2))
        for br, add in ((1, 4), (0, 2)):
            if br == 0: a.label(l2)
            a("s_add_u32 s%d, s%d, %d" % (sN, sW, add))
            reduce_prep(a, sN, br, sBuf, sCh)
            wait_flag(a, 2)
            stamp(a, 8)
            reduce_issue(a, ACC, sBuf)
            a(reduce_fin(a, ACC, br, sCh, 0, 0))
            if br == 1: a("s_branch L_fin")
    if isB: a("s_branch L_fin")
    else:
        a.label("L_fin")
        if STAMP: a("s_waitcnt vmcnt(0)")
        stamp(a, 9)
        stamp_out(a, 10)
        a("s_endpgm")

def x_piece(p_sgpr_off, p, srdq, ch, ldsbase):
    pass

def xp(a_list, ch_sgpr, p, srdq, lds_const, wave_sgpr=None):
    ls = ["s_lshl_b32 s%d, s%d, 7" % (sT2, ch_sgpr), "s_add_u32 s%d, s%d, s%d" % (sT2, sT2, sXB)]
    ls.append("s_add_u32 m0, s%d, %d" % (sN, lds_const + p * 1024))
    ls.append("s_add_u32 s%d, s%d, %d" % (sT2, sT2, p * 8192))
    ls.append("buffer_load_dwordx4 v%d, %s, s%d offen lds" % (vgX, srd(srdq), sT2))
    a_list.append("\n".join(ls))

def wq_off(chreg, add, par):
    return ["s_add_u32 s%d, s%d, %d\ns_and_b32 s%d, s%d, 7" % (sOff, chreg, add, sOff, sOff),
            "s_lshl_b32 s%d, s%d, 1\ns_add_u32 s%d, s%d, s%d" % (sOff, sOff, sOff, sOff, sSp + par),
            "s_lshl_b32 s%d, s%d, 18\ns_add_u32 s%d, s%d, s%d" % (sOff, sOff, sOff, sOff, sWqB)]
def xaddr(par, bufreg=None, bufconst=0):
    out = ["s_lshl_b32 s%d, s%d, 6" % (sT0, sSp + par), "v_xor_b32 v%d, s%d, v%d" % (vXa, sT0, vXr)]
    if bufreg is not None: out.append("v_add_u32 v%d, s%d, v%d" % (vXa, bufreg, vXa))
    return out

def projT(a, bimm, aoff, va, issue, accf=acc, af=F, bf=P):
    for qt in range(3): a("ds_read_b128 %s, v%d offset:%d" % (v4(bf + 4 * qt), vXa, bimm[qt]))
    rd = tr_reads(aoff, range(8), af, va)
    for r in rd[:12]: a(r)
    a("s_waitcnt lgkmcnt(10)")
    for r in rd[12:]: a(r)
    a("s_waitcnt lgkmcnt(0)")
    issue()
    for t in range(8):
        for qt in range(3): a(mf(accf(t, qt), af + t * 4, bf + 4 * qt, accf(t, qt)))

def projR(a, bimm, lb, issue):
    for qt in range(3): a("ds_read_b128 %s, v%d offset:%d" % (v4(BFR + 4 * qt), vXa, bimm[qt]))
    def perms(i):
        d = FR + (i & 3) * 4
        return ["v_perm_b32 v%d, v%d, v%d, s%d" % (d + p, lb + (2 * p + 1) * 4 + (i >> 1), lb + 2 * p * 4 + (i >> 1), sSelHi if i & 1 else sSelLo) for p in range(4)]
    for i in range(4):
        for x in perms(i): a(x)
    a("s_waitcnt lgkmcnt(0)")
    for i in range(4):
        for qt in range(3): a(mf(acc(i, qt), FR + i * 4, BFR + 4 * qt, acc(i, qt)))
        for x in perms(i + 4): a(x)
    issue()
    for i in range(4, 8):
        for qt in range(3): a(mf(acc(i, qt), FR + (i & 3) * 4, BFR + 4 * qt, acc(i, qt)))

def perm_all(a, lb, fr):
    for i in range(8):
        for p in range(4):
            a("v_perm_b32 v%d, v%d, v%d, s%d" % (fr + 4 * i + p, lb + (2 * p + 1) * 4 + (i >> 1), lb + 2 * p * 4 + (i >> 1), sSelHi if i & 1 else sSelLo))

def projR2(a, bimm, fr, bf, vxa, issue, nfirst):
    for qt in range(3): a("ds_read_b128 %s, v%d offset:%d" % (v4(bf[qt]), vxa, bimm[qt]))
    ms = [mf(acc(i, qt), fr + i * 4, bf[qt], acc(i, qt)) for i in range(8) for qt in range(3)]
    if nfirst == 0:
        issue()
        a("s_waitcnt lgkmcnt(0)")
        for m in ms: a(m)
        return
    a("s_waitcnt lgkmcnt(0)")
    for m in ms[:nfirst]: a(m)
    issue()
    for m in ms[nfirst:]: a(m)

def wqR(lb, dummy=None):
    out = []
    for r in range(8):
        if r: out.append("s_add_u32 s%d, s%d, 8192" % (sOff, sOff))
        out.append("buffer_load_dwordx4 %s, v%d, %s, s%d offen" % (v4(lb + 4 * r), vgWq, srd(sWQ), sOff))
    return out
def woR(lb):
    out = []
    for r in range(8):
        if r == 4: out.append("s_add_u32 s%d, s%d, 16384" % (sOff, sOff))
        out.append("buffer_load_dwordx4 %s, v%d, %s, s%d offen offset:%d" % (v4(lb + 4 * r), 2, srd(sWO), sOff, (r & 3) * 1024))
    return out

def b_kv_params(a, wadd=0):
    a("s_lshl_b32 s%d, s2, 2\ns_add_u32 s%d, s%d, s%d" % (sT0, sT0, sT0, sW))
    if wadd: a("s_sub_u32 s%d, s%d, %d" % (sT0, sT0, -wadd))
    a("s_lshl_b32 s%d, s%d, 17" % (sKV, sT0))
    a("s_mul_i32 s%d, s%d, 5\ns_lshr_b32 s%d, s%d, 4\ns_add_u32 s%d, s%d, s%d\ns_and_b32 s%d, s%d, 15" % (sRot, sT0, sT1, sT0, sRot, sRot, sT1, sRot, sRot))

def row_off(row):
    if 16 <= row < 24:
        return "s_add_u32 s%d, s%d, %d\ns_and_b32 s%d, s%d, 7\ns_lshl_b32 s%d, s%d, 14\ns_add_u32 s%d, s%d, s%d" % (sOff, sSet, row - 16, sOff, sOff, sOff, sOff, sOff, sOff, sBuf)
    r = row if row < 16 else row - 24
    return "s_add_u32 s%d, s%d, %d\ns_and_b32 s%d, s%d, 15\ns_lshl_b32 s%d, s%d, 13\ns_add_u32 s%d, s%d, s%d" % (sOff, sRot, r, sOff, sOff, sOff, sOff, sOff, sOff, sKV)

def issue_pieces(a, lst):
    cur = None
    out = []
    for (row, p) in lst:
        if row != cur: out.append(row_off(row)); cur = row
        isA = 16 <= row < 24
        out += kv_piece(sMK, (row % 3) * SETSZ + (p >> 3) * BLK, p & 7, p >> 3, sX if isA else sK, sXI if isA else sV)
    emit(a, out)

def gen_main(a, dbg=False):
    SCH = make_sched(int(opt("cap", 14)), 48, boost=int(opt("boost", 3)))
    p3_0 = [i for i, x in enumerate(SCH) if x["cons"] == 23][0] + 1
    while len(SCH) - p3_0 < 18:
        SCH.insert(p3_0, dict(cons=None, iss={0: [], 1: []}))
    NS = len(SCH)
    cstep = {x["cons"]: i for i, x in enumerate(SCH) if x["cons"] is not None}
    print("steps", NS, "p3_0", p3_0)
    B2 = "nob2" not in ARGS
    NF = int(opt("nf", 24))
    OLDR = "oldR" in ARGS
    def hasB(s_): return B2 and (s_ < 16 or p3_0 <= s_ < p3_0 + 18)

    kernel_begin(a, KNAME)
    a("s_cmp_lt_u32 s2, 256\ns_cbranch_scc1 L_start\ns_endpgm")
    a.label("L_start")
    a("s_load_dwordx16 s[%d:%d], s[0:1], 0" % (sPtr, sPtr + 15))
    a("s_load_dwordx8 s[%d:%d], s[0:1], 64" % (sPtr + 16, sPtr + 23))
    a("s_load_dwordx2 s[%d:%d], s[0:1], 96" % (sPtr + 24, sPtr + 25))
    a("v_lshrrev_b32 v14, 6, v0\ns_nop 0\nv_readfirstlane_b32 s%d, v14" % sWave)
    a("v_and_b32 v0, 63, v0")
    a("s_lshr_b32 s%d, s2, 3\ns_and_b32 s%d, s2, 7\ns_and_b32 s%d, s%d, 3" % (sB, sG, sW, sWave))
    a("v_lshrrev_b32 v14, 4, v0\nv_and_b32 v15, 15, v0")
    a("v_lshlrev_b32 v%d, 4, v0" % vLane16)
    a("v_bfe_u32 v16, v0, 2, 3")
    a("v_mul_u32_u24 v%d, %d, v16" % (vT, PIECE))
    a("v_lshrrev_b32 v16, 5, v0\nv_lshlrev_b32 v16, 9, v16")
    a("v_add_u32 v%d, v%d, v16" % (vT, vT))
    a("v_and_b32 v16, 3, v0\nv_lshlrev_b32 v16, 3, v16")
    a("v_add_u32 v%d, v%d, v16" % (vT, vT))
    a("v_lshrrev_b32 v16, 3, v15\nv_and_b32 v17, 3, v15\nv_lshl_add_u32 v17, v16, 2, v17")
    a("v_mul_u32_u24 v%d, %d, v17" % (vK, PIECE))
    a("v_bfe_u32 v17, v15, 2, 1\nv_xor_b32 v17, v17, v16\nv_lshlrev_b32 v17, 8, v17")
    a("v_add_u32 v%d, v%d, v17" % (vK, vK))
    a("v_lshl_add_u32 v%d, v14, 4, v%d" % (vK, vK))
    a("v_and_b32 v16, 6, v15\nv_xor_b32 v16, v16, v14\nv_lshlrev_b32 v16, 4, v16\nv_lshl_add_u32 v%d, v15, 7, v16" % vXr)
    a("v_lshrrev_b32 v16, 3, v0\nv_and_b32 v17, 6, v16\nv_and_b32 v18, 7, v0\nv_xor_b32 v17, v17, v18\nv_lshlrev_b32 v17, 4, v17\nv_lshl_add_u32 v%d, v16, 10, v17" % vgX)
    a("v_and_b32 v16, 1, v14\nv_lshrrev_b32 v17, 1, v14\nv_lshlrev_b32 v18, 4, v15")
    a("v_lshlrev_b32 v19, 12, v17\nv_add_u32 v19, v19, v18")
    a("v_lshl_add_u32 v%d, v16, 10, v19" % vgK0)
    a("v_lshlrev_b32 v20, 10, v16\nv_sub_u32 v20, 2048, v20\nv_add_u32 v%d, v19, v20" % vgK1)
    a("v_lshlrev_b32 v19, 4, v16\nv_lshl_add_u32 v19, v17, 3, v19")
    a("v_lshl_add_u32 v%d, v19, 8, v18" % vgV)
    a("v_lshl_add_u32 v%d, v19, 10, v18" % vgWo)
    a("v_lshlrev_b32 v19, 2, v16\nv_lshl_add_u32 v19, v17, 4, v19")
    a("v_lshl_add_u32 v19, v19, 13, v18")
    for j in range(8):
        a("v_add_u32 v%d, %d, v19" % (VWQ + j, ((j & 3) + 8 * (j >> 2)) * 8192 - (j & 3) * PIECE))
    a("s_mov_b32 s%d, 0x%x" % (sC, fbits(SCALE)))
    a("s_add_u32 s%d, s%d, s%d\ns_and_b32 s%d, s%d, 7" % (sH0, sB, sG, sH0, sH0))
    a("s_bfe_u32 s%d, s%d, 0x10003\ns_xor_b32 s%d, s%d, 1" % (sSp, sB, sSp + 1, sSp))
    a("s_mul_i32 s%d, s%d, 49152" % (sXB, sB))
    a("s_lshl_b32 s%d, s%d, 2\ns_add_u32 s%d, s%d, s%d" % (sT0, sG, sT0, sT0, sW))
    a("s_lshl_b32 s%d, s%d, 8" % (sWqB, sT0))
    a("s_and_b32 s%d, s%d, 1\ns_mul_i32 s%d, s%d, %d" % (sT1, sW, sT1, sT1, 2 * BLK))
    a("s_add_u32 s%d, s%d, %d\ns_add_u32 s%d, s%d, %d" % (sMW, sT1, WR, sMK, sT1, KVB))
    a("s_waitcnt lgkmcnt(0)")
    pA = dict(x=0, k=2, v=4, wq=6, wo=8); pB = dict(x=10, k=12, v=14, wq=16, wo=18)
    a("s_cmp_ge_u32 s%d, 4" % sWave)
    for nm, q, sz in (("wq", sWQ, SZ["Awq"]), ("x", sX, SZ["Ax"]), ("wo", sWO, SZ["Awo"])):
        a("s_cselect_b32 s%d, s%d, s%d" % (q, sPtr + pA[nm], sPtr + pB[nm]))
        a("s_cselect_b32 s%d, s%d, s%d" % (q + 1, sPtr + pA[nm] + 1, sPtr + pB[nm] + 1))
        a("s_mov_b32 s%d, 0x%x\ns_mov_b32 s%d, 0x20000" % (q + 2, sz, q + 3))
    for q, k_, sz in ((sK, 12, SZ["Bk"]), (sV, 14, SZ["Bv"]), (sWS, 24, SZ["ws"]), (sXI, 4, SZ["Av"])):
        a("s_mov_b32 s%d, s%d\ns_mov_b32 s%d, s%d\ns_mov_b32 s%d, 0x%x\ns_mov_b32 s%d, 0x20000" % (q, sPtr + k_, q + 1, sPtr + k_ + 1, q + 2, sz, q + 3))
    stamp(a, 0)
    a("s_cmp_ge_u32 s%d, 4\ns_cbranch_scc1 L_A" % sWave)
    a("s_cmp_ge_u32 s%d, 2\ns_cbranch_scc1 L_G1" % sWave)

    a("s_mul_i32 s%d, s%d, %d\ns_add_u32 s%d, s%d, s%d" % (sT0, sW, 3 * 8192, sXB, sXB, sT0))
    a("s_mul_i32 s%d, s%d, 3072" % (sN, sW))
    def xchunk(add, buf):
        out = ["s_add_u32 s%d, s%d, %d\ns_and_b32 s%d, s%d, 7" % (sChN, sCh, add, sChN, sChN)]
        for p in range(3): xp(out, sChN, p, sX, buf * XC)
        return out
    a("s_mov_b32 s%d, s%d" % (sCh, sH0))
    a("s_mov_b32 s%d, s%d\ns_add_u32 s%d, s%d, %d\ns_add_u32 s%d, s%d, %d" % (sSl0, sMW, sSl1, sMK, 2 * SETSZ, sSl2, sMW, BLK))
    for x in wq_off(sCh, 0, 0): a(x)
    d0 = wqT(sSl0, 0)
    emit(a, d0)
    for x in xchunk(0, 0): a(x)
    zero(a, ACC, 96)
    for x in wq_off(sCh, 0, 1): a(x)
    emit(a, wqT(sSl1, 0))
    for x in xchunk(1, 1): a(x)
    for x in wq_off(sCh, 1, 0): a(x)
    emit(a, wqT(sSl2, 0))
    for x in xchunk(2, 2): a(x)
    def fset(k): return (F, P) if k == 0 else (QF, QF + 32)
    def preads(k, bufc):
        fa, fb = fset(k)
        return ["ds_read_b128 %s, v%d offset:%d" % (v4(fb + qt * 4), vXa, bufc + qt * 2048) for qt in range(3)] + tr_reads(0, range(8), fa, vTc)
    for x in xaddr(0): a(x)
    a("v_add_u32 v%d, s%d, v%d" % (vTc, sSl0, vT))
    a("s_waitcnt vmcnt(22)\ns_barrier")
    for r in preads(0, 0): a(r)
    for x in xaddr(1): a(x)
    a("v_add_u32 v%d, s%d, v%d" % (vTc, sSl1, vT))
    a("s_waitcnt vmcnt(14)")
    vq = ["w0"] * 8 + ["x0"] * 3 + ["w1"] * 8 + ["x1"] * 3 + ["w2"] * 8 + ["x2"] * 3
    def vneed(tags):
        idx = max(i for i, t in enumerate(vq) if t in tags)
        return len(vq) - 1 - idx
    SL = (sSl0, sSl1, sSl2)
    for n in range(16):
        issue = []
        if n + 3 < 16:
            issue += wq_off(sCh, (n + 3) >> 1, (n + 3) & 1) + wqT(SL[n % 3], 0); vq += ["w%d" % (n + 3)] * 8
        if n & 1 and (n >> 1) + 3 < 8:
            c_ = (n >> 1) + 3
            issue += xchunk(c_, c_ & 3); vq += ["x%d" % c_] * 3
        a("s_waitcnt lgkmcnt(0)")
        if n & 1: a("s_barrier")
        fa, fb = fset(n & 1)
        main = [mf(acc(t, qt), fa + t * 4, fb + qt * 4, acc(t, qt)) for t in range(8) for qt in range(3)]
        tw = xaddr(n & 1) + ["v_add_u32 v%d, s%d, v%d" % (vTc, SL[(n + 2) % 3], vT)] if n < 14 else []
        weave(a, main, (preads((n + 1) & 1, (((n + 1) >> 1) & 3) * XC) if n < 15 else [], 0, 17), (issue, 0, 24), (tw, 18, 24))
        if n < 14:
            need = ["w%d" % (n + 2)]
            if not n & 1: need.append("x%d" % ((n >> 1) + 1))
            a("s_waitcnt vmcnt(%d)" % vneed(need))
    stamp(a, 1)
    q_final_T(a)
    if dbg: debug_dump(a, 0, True)
    b_kv_params(a)
    a("s_lshl_b32 s%d, s2, 17\ns_lshl_b32 s%d, s%d, 13\ns_add_u32 s%d, s%d, s%d" % (sBuf, sT0, sW, sBuf, sBuf, sT0))
    a("s_mul_i32 s%d, s2, 3\ns_add_u32 s%d, s%d, s%d\ns_and_b32 s%d, s%d, 7" % (sSet, sSet, sSet, sB, sSet, sSet))
    a("s_mov_b32 s%d, s%d\ns_mov_b32 s%d, s%d\ns_mov_b32 s%d, 0x%x" % (sX, sPtr + 2, sX + 1, sPtr + 3, sX + 2, SZ["Ak"]))
    a("v_add_u32 v%d, s%d, v%d\nv_add_u32 v%d, s%d, v%d" % (vT, sMK, vT, vK, sMK, vK))
    a("s_lshl_b32 s%d, s%d, 19\ns_lshl_b32 s%d, s%d, 9\ns_add_u32 s%d, s%d, s%d" % (sWoB, sG, sT1, sW, sWoB, sWoB, sT1))
    a("s_and_b32 s%d, s%d, 7" % (sH0, sB))
    stamp(a, 2)
    def setdelta(row):
        d = SETSZ if row % 3 < 2 else -2 * SETSZ
        a("v_add_u32 v%d, %d, v%d\nv_add_u32 v%d, %d, v%d" % (vT, d, vT, vK, d, vK))
    def wo_off(add, hh, kbase=0):
        return ["s_add_u32 s%d, s%d, %d\ns_and_b32 s%d, s%d, 7" % (sOff, sH0, add, sOff, sOff),
                "s_lshl_b32 s%d, s%d, 15\ns_add_u32 s%d, s%d, s%d" % (sOff, sOff, sOff, sOff, sWoB)] + (["s_add_u32 s%d, s%d, %d" % (sOff, sOff, hh * 256 + kbase)] if hh or kbase else [])
    for s_ in range(p3_0):
        st = SCH[s_]
        a("s_barrier")
        sbst(a, s_)
        fk = 1 + 4 * (s_ - FS) if FS >= 0 and FS <= s_ <= FS + 1 else None
        if fk: stamp(a, fk, True)
        if FS >= 0 and s_ == FS + 2: stamp(a, 9, True)
        n_iss = len(st["iss"][0])
        c = st["cons"]
        if c is not None and c < 16:
            if c == 0: att_init(a)
            a("s_call_b64 s[%d:%d], L_tile" % (sRet2, sRet2 + 1))
            setdelta(c)
        if fk: stamp(a, fk + 1, True)
        if hasB(s_): a("s_barrier")
        issue_pieces(a, st["iss"][0])
        if fk: stamp(a, fk + 2, True)
        if c == 15: stamp(a, 3)
        s15 = max(cstep[15], 16)
        if s_ == cstep[15] + 1:
            o_final(a)
            if dbg: debug_dump(a, 1, True)
        if s_ == s15 + 2:
            a("s_mul_i32 s%d, s%d, 12288" % (sT0, sW))
            publish(a, sT0)
            a("s_waitcnt lgkmcnt(0)")
            zero(a, ACC, 96)
        if s_ == s15 + 3:
            zero(a, ACC + 96, 96)
            a("v_subrev_u32 v%d, s%d, v%d" % (vTc, sMK, vT))
            a("s_sub_u32 s%d, s%d, %d" % (sT0, sMW, SETSZ))
            a("v_add_u32 v%d, s%d, v%d" % (vTc, sT0, vTc))
        if s_ == p3_0 - 2:
            emit(a, wo_off(0, 0) + woT(sMW, 0) + wo_off(0, 1) + woT(sMW, BLK)); n_iss += 16
        if dbg and s_ == cstep[15] + 1: n_iss = 0
        a("s_waitcnt vmcnt(%d)" % n_iss)
        if fk: stamp(a, fk + 3, True)
    stamp(a, 4)
    a("s_mov_b32 s%d, 0" % sCnt)
    a.label("L_G0_o")
    for hh in range(2):
        a("s_barrier")
        if hh == 0:
            a("s_add_u32 s%d, s%d, s%d\ns_and_b32 s%d, s%d, 7\ns_mul_i32 s%d, s%d, 3072" % (sT0, sH0, sCnt, sT0, sT0, sT0, sT0))
            a("v_add_u32 v%d, s%d, v%d" % (vXa, sT0, vLane16))
        def iss():
            def body():
                a("s_add_u32 s%d, s%d, s%d\ns_add_u32 s%d, s%d, 1\ns_and_b32 s%d, s%d, 7" % (sOff, sH0, sCnt, sOff, sOff, sOff, sOff))
                a("s_lshl_b32 s%d, s%d, 15\ns_add_u32 s%d, s%d, s%d" % (sOff, sOff, sOff, sOff, sWoB))
                if hh: a("s_add_u32 s%d, s%d, 256" % (sOff, sOff))
                emit(a, woT(sMW, hh * BLK))
            cond(a, sCnt, 7, body, eq=False)
            if B2: a("s_barrier")
        projT(a, (0, 1024, 2048), hh * BLK, vTc, iss, lambda t, qt: acc(t, qt) + 96 * hh, AF0, BF0)
        if hh == 0: cond(a, sCnt, 7, lambda: a("s_waitcnt vmcnt(0)"))
        a("s_waitcnt vmcnt(8)")
    a("s_add_u32 s%d, s%d, 1\ns_cmp_lt_u32 s%d, 8\ns_cbranch_scc1 L_G0_o" % (sCnt, sCnt, sCnt))
    a("s_nop 7")
    for s in range(4):
        for qt in range(3):
            d = AF0 + (s * 3 + qt) * 4
            for h2 in range(2):
                src = acc(2 * s + h2, qt) + 96
                a("v_cvt_pk_bf16_f32 v%d, v%d, v%d" % (d + 2 * h2, src, src + 1))
                a("v_cvt_pk_bf16_f32 v%d, v%d, v%d" % (d + 2 * h2 + 1, src + 2, src + 3))
    def tail_params(cbexpr):
        a(cbexpr)
        a("s_lshl_b32 s%d, s%d, 19\ns_lshl_b32 s%d, s%d, 8\ns_add_u32 s%d, s%d, s%d\ns_add_u32 s%d, s%d, %d" % (sWoB, sG, sT1, sChN, sWoB, sWoB, sT1, sWoB, sWoB, 256 * 1024))
        a("s_mul_i32 s%d, s%d, %d\ns_add_u32 s%d, s%d, %d" % (sMW, sW, BLK, sMW, sMW, KVB))
    tail_params("s_lshl_b32 s%d, s%d, 1" % (sChN, sW))
    def tail_blk(j): return wo_off(j, 0) + woT(sMW, ((37 + j) % 3) * SETSZ)
    for s_ in range(p3_0 + 16, NS):
        a("s_barrier")
        if s_ == p3_0 + 16:
            a("s_mul_i32 s%d, s%d, 12288\ns_add_u32 s%d, s%d, %d" % (sT0, sW, sT0, sT0, HO))
            publish(a, sT0, AF0)
            a("s_waitcnt lgkmcnt(0)")
        for j in range(2):
            if s_ == max(cstep[37 + j] + 1, p3_0 + 16): emit(a, tail_blk(j))
        if hasB(s_): a("s_barrier")
    stamp(a, 5)
    a("s_barrier")
    a.label("L_P3")
    a("v_bfe_u32 v%d, v0, 2, 3" % T)
    a("v_mul_u32_u24 v%d, %d, v%d" % (vT, PIECE, T))
    a("v_lshrrev_b32 v%d, 5, v0\nv_lshl_add_u32 v%d, v%d, 9, v%d" % (T, vT, T, vT))
    a("v_and_b32 v%d, 3, v0\nv_lshl_add_u32 v%d, v%d, 3, v%d" % (T, vT, T, vT))
    a("v_add_u32 v%d, s%d, v%d" % (vT, sMW, vT))
    a("v_add_u32 v%d, %d, v%d" % (vK, 2 * SETSZ, vT))
    def oad(j):
        return ["s_add_u32 s%d, s%d, %d\ns_and_b32 s%d, s%d, 7" % (sT0, sH0, j, sT0, sT0), "s_mul_i32 s%d, s%d, 3072" % (sT0, sT0),
                "v_add_u32 v%d, s%d, v%d" % (vXa, sT0, vLane16)]
    def treads(j):
        fa, fb = fset(j & 1)
        se = (37 + j) % 3
        return ["ds_read_b128 %s, v%d offset:%d" % (v4(fb + qt * 4), vXa, qt * 1024) for qt in range(3)] + tr_reads(SETSZ * se if se < 2 else 0, range(8), fa, vT if se < 2 else vK)
    for x in oad(0): a(x)
    a("s_waitcnt vmcnt(8) lgkmcnt(0)\ns_barrier")
    stamp(a, 6)
    for r in treads(0): a(r)
    for x in oad(1): a(x)
    emit(a, tail_blk(2))
    a("s_waitcnt vmcnt(8)")
    for j in range(8):
        issue = tail_blk(j + 3) if j + 3 < 8 else []
        a("s_waitcnt lgkmcnt(0)")
        fa, fb = fset(j & 1)
        main = [mf(acc(t, qt), fa + t * 4, fb + qt * 4, acc(t, qt)) for t in range(8) for qt in range(3)]
        weave(a, main, (treads(j + 1) if j < 7 else [], 0, 17), (issue, 0, 24), (oad(j + 2) if j < 6 else [], 18, 24))
        if j < 6: a("s_waitcnt vmcnt(%d)" % (8 if issue else 0))
        if j == 5 and int(opt("ast", 0)) == 2: a("s_barrier")
    stamp(a, 7)
    store_partial(a, 1, sChN)
    tail(a, True)

    a.label("L_G1")
    b_kv_params(a, -2)
    rows_at = [int(c) for c in opt("pf", "599")]
    for i_ in range(9):
        a("s_barrier")
        for r_ in range(3):
            if rows_at[r_] == i_: issue_pieces(a, [(r_, p) for p in range(16)])
        if i_ == 0: zero(a, ACC, 96)
    assert rows_at[2] >= 7
    a("s_add_u32 s%d, s%d, 6\ns_and_b32 s%d, s%d, 7" % (sCh, sH0, sCh, sCh))
    for k in range(2):
        for x in wq_off(sCh, 0, k): a(x)
        emit(a, wqT(sMW, k * BLK))
    late_rows = [r_ for r_ in range(3) if rows_at[r_] == 9]
    for r_ in late_rows: issue_pieces(a, [(r_, p) for p in range(16)])
    a("s_and_b32 s%d, s%d, 1\ns_mul_i32 s%d, s%d, %d\ns_add_u32 s%d, s%d, s%d" % (sT1, sW, sT0, sT1, 3 * 8192, sXB, sXB, sT0))
    a("s_mul_i32 s%d, s%d, 3072" % (sWoB, sT1))
    a("v_add_u32 v%d, s%d, v%d" % (vTc, sMW, vT))
    a("s_mov_b32 s%d, %d\ns_mov_b32 s%d, 0" % (sBuf, 2 * XC, sCnt))
    assert 0 not in late_rows
    a("s_waitcnt vmcnt(%d)" % (8 + 16 * len(late_rows)))
    def qloop(lab, regpath):
        a.label(lab)
        for par in range(2):
            a("s_barrier")
            def fst(k):
                if FS >= 0: cond(a, sCnt, FS // 2, lambda: stamp(a, 1 + 4 * par + k, True))
            fst(0)
            for x in xaddr(par, sBuf): a(x)
            xlate = "xlate" in ARGS
            def xs():
                a("s_xor_b32 s%d, s%d, %d\ns_add_u32 s%d, s%d, s%d" % (sN, sBuf, XC if regpath else (2 * XC) ^ (3 * XC), sN, sN, sWoB))
                out = ["s_add_u32 s%d, s%d, 1\ns_and_b32 s%d, s%d, 7" % (sChN, sCh, sChN, sChN)]
                if regpath:
                    xp(out, sChN, 0, sX, 0)
                    for x in out: a(x)
                    o2 = []; xp(o2, sChN, 4, sX, 0)
                    cond_lt(a, sW, 2, lambda: a(o2[0]))
                else:
                    for p in range(3): xp(out, sChN, p, sX, 0)
                    for x in out: a(x)
            def xcond():
                l = a.newlabel("L_nx")
                a("s_sub_u32 s%d, s%d, 1\ns_cmp_lt_u32 s%d, 6\ns_cbranch_scc0 %s" % (sT0, sCnt, sT0, l))
                xs()
                a.label(l)
            def iss():
                if par == 0 and not xlate: xcond()
                def body():
                    for x in wq_off(sCh, 1, par): a(x)
                    emit(a, wqR(LB[par]) if regpath else wqT(sMW, par * BLK))
                fst(1)
                cond(a, sCnt, 7, body, eq=False)
                fst(2)
                if B2: a("s_barrier")
                if par == 0 and xlate: xcond()
            if regpath and OLDR: projR(a, (0, 2048, 4096), LB[par], iss)
            elif regpath: projR2(a, (0, 2048, 4096), QF, (232, 236, 240), vXa, iss, NF)
            else: projT(a, (0, 2048, 4096), par * BLK, vTc, iss)
            if par == 0 and xlate:
                l1_ = a.newlabel("L_v"); l2_ = a.newlabel("L_v")
                a("s_sub_u32 s%d, s%d, 1\ns_cmp_lt_u32 s%d, 6\ns_cbranch_scc0 %s" % (sT0, sCnt, sT0, l1_))
                a("s_waitcnt vmcnt(%d)\ns_branch %s" % (9 if regpath else 11, l2_))
                a.label(l1_)
                cond(a, sCnt, 7, lambda: a("s_waitcnt vmcnt(0)"))
                a("s_waitcnt vmcnt(8)")
                a.label(l2_)
            else:
                if par == 0: cond(a, sCnt, 7, lambda: a("s_waitcnt vmcnt(0)"))
                a("s_waitcnt vmcnt(8)")
            if regpath and not OLDR:
                if par == 0: perm_all(a, LB[1], QF)
                else: cond(a, sCnt, 7, lambda: perm_all(a, LB[0], QF), eq=False)
            fst(3)
        a("s_add_u32 s%d, s%d, 1\ns_and_b32 s%d, s%d, 7" % (sCh, sCh, sCh, sCh))
        a("s_xor_b32 s%d, s%d, %d" % (sBuf, sBuf, XC if regpath else (2 * XC) ^ (3 * XC)))
        a("s_add_u32 s%d, s%d, 1\ns_cmp_lt_u32 s%d, 8\ns_cbranch_scc1 %s" % (sCnt, sCnt, sCnt, lab))
    qloop("L_G1_q", False)
    stamp(a, 1)
    assert not SCH[16]["iss"][1] and not SCH[17]["iss"][1] and not SCH[18]["iss"][1]
    a("s_barrier")
    q_final_T(a)
    if dbg: debug_dump(a, 0, True)
    a("s_barrier")
    att_init(a)
    def chk():
        lp = a.newlabel("L_st"); le = a.newlabel("L_se")
        dbg_srd(a)
        a("s_lshl_b32 s%d, s%d, 3" % (sT1, sB))
        a("v_mov_b32 v%d, 0\ns_mov_b32 s%d, 200000" % (T + 2, sT2))
        a.label(lp)
        a("s_sub_u32 s%d, s%d, 1\ns_cbranch_scc1 %s" % (sT2, sT2, le))
        a("buffer_load_dword v%d, v%d, %s, s%d offen sc1" % (T + 3, T + 2, srd(sXI), sT1))
        a("s_waitcnt vmcnt(0)")
        a("v_readfirstlane_b32 s%d, v%d" % (sT0, T + 3))
        a("s_and_b32 s%d, s%d, 7\ns_cbranch_scc0 %s" % (sT0, sT0, le))
        a("s_sleep 8\ns_branch %s" % lp)
        a.label(le)
    cond(a, sW, 2, chk)
    b_kv_params(a)
    a("v_add_u32 v%d, s%d, v%d\nv_add_u32 v%d, s%d, v%d" % (vT, sMK, vT, vK, sMK, vK))
    a("s_and_b32 s%d, s%d, 7" % (sH0, sB))
    tail_params("s_lshl_b32 s%d, s%d, 1\ns_sub_u32 s%d, s%d, 3" % (sChN, sW, sChN, sChN))
    stamp(a, 2)
    for s_ in range(18, NS):
        st = SCH[s_]
        a("s_barrier")
        sbst(a, s_)
        c = st["cons"]
        n_iss = len(st["iss"][1])
        for j in range(2):
            if s_ == max(cstep[37 + j] + 1, p3_0 + 16): emit(a, tail_blk(j)); n_iss += 8
        if c is not None and c >= 24:
            if c == 24: stamp(a, 4)
            a("s_call_b64 s[%d:%d], L_tile" % (sRet2, sRet2 + 1))
            if c < 39: setdelta(c)
        if hasB(s_): a("s_barrier")
        issue_pieces(a, st["iss"][1])
        if s_ < cstep[39]: a("s_waitcnt vmcnt(%d)" % n_iss)
    stamp(a, 5)
    o_final(a)
    if dbg: debug_dump(a, 1, True)
    a("s_and_b32 s%d, s%d, 1\ns_mul_i32 s%d, s%d, 12288\ns_add_u32 s%d, s%d, %d" % (sT0, sW, sT0, sT0, sT1, sT0, HO))
    a("v_add_u32 v%d, s%d, v%d" % (vTmpB, sT1, vLane16))
    HB_ = F
    for i in range(12): a("ds_read_b128 %s, v%d offset:%d" % (v4(HB_ + 4 * i), vTmpB, i * 1024))
    a("s_barrier")
    publish(a, sT0)
    for s in range(4):
        a("s_waitcnt lgkmcnt(%d)" % min(15, 12 + 9 - 3 * s))
        for qt in range(3):
            d = HB_ + (s * 3 + qt) * 4
            for h2 in range(2):
                dst = acc(2 * s + h2, qt)
                for e in range(2):
                    a("v_lshlrev_b32 v%d, 16, v%d" % (dst + 2 * e, d + 2 * h2 + e))
                    a("v_and_b32 v%d, 0xffff0000, v%d" % (dst + 2 * e + 1, d + 2 * h2 + e))
    a("s_branch L_P3")

    a.label("L_A")
    def g0():
        a("v_mov_b32 v16, %d\nv_mov_b32 v18, 0\nv_mov_b32 v19, 0\nv_mov_b32 v21, 0" % SYNC)
        a("s_lshl_b32 s%d, s2, 7\ns_add_u32 s%d, s%d, 0x%x" % (sT1, sT1, sT1, GO))
        a("buffer_load_dword v20, v18, %s, s%d offen sc1" % (srd(sWS), sT1))
        dbg_srd(a)
        a("s_lshl_b32 s%d, s%d, 3" % (sT1, sB))
        a("v_mov_b32 v22, 1")
        a("s_waitcnt vmcnt(0)")
        a("ds_write_b128 v16, v[18:21]")
        a("s_mov_b64 exec, 1")
        a("buffer_atomic_add v22, v18, %s, s%d offen sc1" % (srd(sXI), sT1))
        a("s_mov_b64 exec, -1")
        a("s_waitcnt lgkmcnt(0)")
    cond(a, sW, 0, g0)
    def codepf():
        a("s_getpc_b64 s[%d:%d]" % (sRet, sRet + 1))
        a.label("L_pc")
        a("s_sub_u32 s%d, s%d, L_pc-%s\ns_subb_u32 s%d, s%d, 0" % (sRet, sRet, KNAME, sRet + 1, sRet + 1))
        a("s_lshl_b32 s%d, s%d, 11" % (sT0, sB))
        a("v_lshlrev_b32 v16, 7, v0\nv_add_u32 v16, s%d, v16" % sT0)
        a("v_cmp_gt_u32 vcc, L_code_end-%s, v16" % KNAME)
        a("s_and_b64 exec, vcc, 0xffff")
        lx = a.newlabel("L_x")
        a("s_cbranch_execz %s" % lx)
        a("global_load_dword v17, v16, s[%d:%d]" % (sRet, sRet + 1))
        a.label(lx)
        a("s_mov_b64 exec, -1")
    cond(a, sW, 3, codepf)
    a("s_mov_b32 s%d, 0x05040100\ns_mov_b32 s%d, 0x07060302" % (sSelLo, sSelHi))
    a("v_lshrrev_b32 v24, 4, v0\nv_and_b32 v25, 15, v0\nv_lshlrev_b32 v25, 4, v25")
    a("v_lshl_add_u32 v%d, v24, 16, v25\nv_lshl_add_u32 v%d, v24, 12, v25" % (vgWq, vgWo))
    a("s_lshl_b32 s%d, s%d, 13\ns_add_u32 s%d, s%d, s%d" % (sT0, sW, sXB, sXB, sT0))
    a("s_lshl_b32 s%d, s%d, 10" % (sWoB, sW))
    a("s_mov_b32 s%d, s%d" % (sCh, sH0))
    aw = int(opt("aw", 3))
    for i_ in range(9):
        a("s_barrier")
        if i_ == 1:
            a("s_waitcnt vmcnt(0)")
            zero(a, ACC, 96)
        if i_ == int(opt("xt", -1)):
            def touch():
                a("v_lshlrev_b32 v%d, 7, v0" % T)
                a("s_lshl_b32 s%d, s%d, 13\ns_add_u32 s%d, s%d, s%d" % (sT0, sW, sT0, sT0, sXB))
                a("buffer_load_dword v%d, v%d, %s, s%d offen" % (T + 1, T, srd(sX), sT0))
                a("s_add_u32 s%d, s%d, 8192" % (sT0, sT0))
                a("buffer_load_dword v%d, v%d, %s, s%d offen" % (T + 2, T, srd(sX), sT0))
            cond(a, sW, 3, touch, eq=False)
        if i_ == 6:
            for c_ in range(2):
                a("s_add_u32 s%d, s%d, %d" % (sN, sWoB, c_ * XC))
                out = ["s_add_u32 s%d, s%d, %d\ns_and_b32 s%d, s%d, 7" % (sChN, sCh, c_, sChN, sChN)]
                xp(out, sChN, 0, sX, 0)
                for x in out: a(x)
                o2 = []; xp(o2, sChN, 4, sX, 0)
                cond_lt(a, sW, 2, lambda: a(o2[0]))
        if i_ == aw:
            for k in range(2):
                for x in wq_off(sCh, 0, k): a(x)
                emit(a, wqR(LB[k]))
    a("s_mov_b32 s%d, 0\ns_mov_b32 s%d, 0" % (sBuf, sCnt))
    a("s_waitcnt vmcnt(8)")
    perm_all(a, LB[0], QF)
    qloop("L_A_q", True)
    stamp(a, 1)
    a0 = 16
    if cstep[16] > 16:
        a("s_barrier"); a0 = 17
    q_final_R(a)
    if dbg: debug_dump(a, 0, False)
    att_init(a)
    a("v_add_u32 v%d, %d, v%d\nv_add_u32 v%d, %d, v%d" % (vT, KVB + SETSZ, vT, vK, KVB + SETSZ, vK))
    a("s_lshl_b32 s%d, s%d, 19\ns_lshl_b32 s%d, s%d, 8\ns_add_u32 s%d, s%d, s%d" % (sWoB, sG, sT1, sW, sWoB, sWoB, sT1))
    a("s_and_b32 s%d, s%d, 3" % (sH0, sB))
    a("s_lshr_b32 s%d, s%d, 2" % (sSp, sB))
    a("s_and_b32 s%d, s%d, 7\ns_mul_i32 s%d, s%d, 3072" % (sChN, sB, sChN, sChN))
    stamp(a, 2)
    for s_ in range(a0, p3_0):
        a("s_barrier")
        c = SCH[s_]["cons"]
        if c is not None and 16 <= c < 24:
            a("s_call_b64 s[%d:%d], L_att" % (sRet2, sRet2 + 1))
            if c < 23: setdelta(c)
    stamp(a, 3)
    def ks_calc(jreg, jadd):
        a("s_add_u32 s%d, s%d, %d" % (sT2, jreg, jadd))
        a("s_lshr_b32 s%d, s%d, 2\ns_add_u32 s%d, s%d, s%d\ns_and_b32 s%d, s%d, 3" % (sT0, sT2, sT0, sT0, sH0, sT0, sT0))
        a("s_add_u32 s%d, s%d, s%d\ns_and_b32 s%d, s%d, 3" % (sT1, sT2, sSp, sT1, sT1))
    def wo_issue(jadd, lb):
        ks_calc(sCnt, jadd)
        a("s_lshl_b32 s%d, s%d, 2\ns_add_u32 s%d, s%d, s%d\ns_lshl_b32 s%d, s%d, 15\ns_add_u32 s%d, s%d, s%d" % (sOff, sT0, sOff, sOff, sT1, sOff, sOff, sOff, sOff, sWoB))
        emit(a, woR(lb))
    def jit(jadd, bufY):
        ks_calc(sCnt, jadd)
        a("s_mov_b32 s%d, %s" % (sN, ("s%d" % sChN) if bufY else str(SP)))
        a("s_call_b64 s[%d:%d], L_jit" % (sRet2, sRet2 + 1))
    a("s_barrier")
    a("v_mov_b32 v2, v%d" % vgWo)
    a("s_mov_b32 s%d, 0" % sCnt)
    wo_issue(0, LB[0]); wo_issue(1, LB[1])
    if B2: a("s_barrier")
    o_final(a)
    if dbg: debug_dump(a, 1, False)
    stamp(a, 4)
    a("s_barrier")
    jit(0, False)
    if B2: a("s_barrier")
    zero(a, ACC, 96)
    a("s_waitcnt vmcnt(0)")
    perm_all(a, LB[0], FR)
    a.label("L_A_o")
    for par in range(2):
        a("s_barrier")
        a("v_add_u32 v3, %s, v%d" % (("s%d" % sChN) if par else str(SP), vLane16))
        if par == 0: jit(1, True)
        else: cond(a, sCnt, 14, lambda: jit(2, False), eq=False)
        def issA():
            cond(a, sCnt, 14, lambda: wo_issue(2 + par, LB[par]), eq=False)
            if B2: a("s_barrier")
        if OLDR:
            a("v_mov_b32 v%d, v3" % vXa)
            projR(a, (0, 1024, 2048), LB[par], issA)
        else: projR2(a, (0, 1024, 2048), FR, (248, 252, 4), 3, issA, NF)
        if par == 0: cond(a, sCnt, 14, lambda: a("s_waitcnt vmcnt(0)"))
        a("s_waitcnt vmcnt(8)")
        if OLDR: pass
        elif par == 0: perm_all(a, LB[1], FR)
        else: cond(a, sCnt, 14, lambda: perm_all(a, LB[0], FR), eq=False)
    a("s_add_u32 s%d, s%d, 2\ns_cmp_lt_u32 s%d, 16\ns_cbranch_scc1 L_A_o" % (sCnt, sCnt, sCnt))
    stamp(a, 5)
    a("v_lshrrev_b32 v0, 4, v%d" % vLane16)
    ast = int(opt("ast", 0))
    if ast == 0: store_partial(a, 0, sW)
    for s_ in range(p3_0 + 18, NS): a("s_barrier")
    a("s_barrier\ns_barrier")
    if ast == 2: a("s_barrier")
    if ast: store_partial(a, 0, sW)
    tail(a, False)

    a.label("L_tile")
    if "noprio" not in ARGS: a("s_setprio 1")
    for r in k_reads(0): a(r)
    tile_fast(a, BLK, None)
    if "noprio" not in ARGS: a("s_setprio 0")
    a("s_setpc_b64 s[%d:%d]" % (sRet2, sRet2 + 1))
    a.label("L_att")
    for r in k_reads(0): a(r)
    tile_fast(a, BLK, 2 * BLK)
    tile_fast(a, 3 * BLK, None)
    a("s_setpc_b64 s[%d:%d]" % (sRet2, sRet2 + 1))
    a.label("L_jit")
    a("s_cmp_eq_u32 s%d, s%d\ns_cbranch_scc0 L_jit_r" % (sT0, sW))
    a("v_add_u32 v0, s%d, v%d" % (sN, vLane16))
    for sp in range(4):
        l = a.newlabel("L_j")
        if sp < 3: a("s_cmp_eq_u32 s%d, %d\ns_cbranch_scc0 %s" % (sT1, sp, l))
        for qt in range(3): a("ds_write_b128 v0, %s offset:%d" % (v4(qf(sp, qt)), qt * 1024))
        if sp < 3:
            a("s_branch L_jit_w")
            a.label(l)
    a.label("L_jit_w")
    a("s_waitcnt lgkmcnt(0)")
    a.label("L_jit_r")
    a("s_setpc_b64 s[%d:%d]" % (sRet2, sRet2 + 1))
    slow_path(a)
    a.label("L_code_end")
    a("s_endpgm")

HDR = open("cdna_kernels/%s.s.ref" % NAME).read().split("; Override launch")[0]

def make(dbg=False):
    a = Asm()
    gen_main(a, dbg)
    rep = []
    lines = hazard.run(a.l, rep)
    for p in hazard.check_all_edges(lines): print("EDGE HAZARD", p)
    src = HDR + "; @launch grid=(256,1,1) block=(512,1,1) lds=%d\n" % LDS_BYTES
    src += ".amdgcn_target \"amdgcn-amd-amdhsa--gfx950\"\n" + "\n".join(lines) + "\n" + kernel_desc(KNAME, 256)
    print("nops inserted", rep, "lines", len(lines))
    return src

if __name__ == "__main__":
    dbg = "dbg" in ARGS
    out = opt("o", "k_dbg" if dbg else "k_st" if STAMP else "k")
    build(make(dbg), out, KNAME)
```

```python
import sys, math, struct
from asmlib import *
import hazard
from sched import make_sched

NAME = "concat_heads__gqa_block_cached__mha_block_cached__near_ridge"
KNAME = NAME + "_kernel"
ARGS = set(sys.argv[1:])
def opt(name, default=None):
    for x in sys.argv[1:]:
        if x.startswith(name + "="): return x[len(name) + 1:]
    return default

BLK = 8448
PIECE = 1056
SETSZ = 4 * BLK
XC = 6144
SP = 24576
KVB = 28672
WR = KVB + 3 * SETSZ
LDS_BYTES = WR + SETSZ
assert LDS_BYTES == 163840
SYNC = WR + 3 * BLK + 7 * PIECE + 1024
HO = WR
assert HO + 24576 <= SYNC

vLane16, vT, vK, vgK0, vgK1, vgV, vgWo = 1, 2, 3, 4, 5, 6, 7
ACC, QF, F, S, P, NM, L, ON, T = 8, 104, 152, 184, 208, 220, 232, 244, 248
VWQ = S
vXr, vgWq, vgX = 245, 244, 246
vXa, vTc, vTmpA, vTmpB = T, T + 1, T + 2, T + 3
LB = (152, 184)
FR = 216
BFR = 232
AF0, BF0 = 200, 232
def acc(t, qt): return ACC + (t * 3 + qt) * 4
def qf(s, qt): return QF + (s * 3 + qt) * 4
def sreg(kt, qt): return S + (kt * 3 + qt) * 4
def preg(qt): return P + qt * 4
def v4(r): return "v[%d:%d]" % (r, r + 3)
def v2(r): return "v[%d:%d]" % (r, r + 1)

sSelLo, sThr = 0, 1
sWave, sB, sG, sW = 3, 4, 5, 6
sX, sK, sV, sWQ, sWO, sWS, sXI = 8, 12, 16, 20, 24, 28, 32
sPtr = 36
sCyc, sSelHi = 60, 61
sKV, sRot, sOff, sT0, sT1, sT2, sCnt = 62, 63, 64, 65, 66, 67, 68
sWqB, sWoB, sXB, sCh, sChN, sBuf = 69, 70, 71, 72, 73, 74
sMW, sMK = 75, 76
sFloor = 77
sRet, sRet2 = 78, 80
sSp = 82
sH0, sN, sC, sSet = 86, 87, 88, 89
sSl0, sSl1, sSl2 = 7, 62, 63
sMsk = 7
def srd(r): return "s[%d:%d]" % (r, r + 3)

SCALE = (128 ** -0.5) * math.log2(math.e)
BIAS = 7.0
def fbits(x): return struct.unpack("<I", struct.pack("<f", x))[0]
STAMP = "stamp" in ARGS
GO = 48 << 20
OWN = "noown" not in ARGS
XNT = " nt" if "xnt" in ARGS else ""

def mf(d, a, b, c):
    return "v_mfma_f32_16x16x32_bf16 %s, %s, %s, %s" % (v4(d), v4(a), v4(b), v4(c) if c is not None else "0")

def weave(a, main, *streams):
    pos = [0] * len(streams)
    for i, m in enumerate(main):
        a(m)
        for k, (lst, st, en) in enumerate(streams):
            if i >= st:
                want = len(lst) if i >= en - 1 else (len(lst) * (i - st + 1) + (en - st) - 1) // (en - st)
                while pos[k] < want:
                    a(lst[pos[k]]); pos[k] += 1
    for k, (lst, st, en) in enumerate(streams):
        while pos[k] < len(lst):
            a(lst[pos[k]]); pos[k] += 1

def pol(k): return (" " + opt("pol" + k, "nt").replace("+", " ").replace("plain", "")).rstrip()

def kv_piece(m0base, m0add, j, isv, sk=sK, sv=sV):
    vg = vgV if isv else (vgK0 if j < 4 else vgK1)
    return ["s_add_u32 m0, s%d, %d" % (m0base, m0add + j * (PIECE - 256)),
            "buffer_load_dwordx4 v%d, %s, s%d offen offset:%d nt lds" % (vg, srd(sv if isv else sk), sOff, j * 256)]

def wqT(m0base, m0add):
    out = []
    for j in range(8):
        if j & 3 == 0: out.append("s_add_u32 m0, s%d, %d" % (m0base, m0add + j * PIECE))
        out.append("buffer_load_dwordx4 v%d, %s, s%d offen offset:%d lds" % (VWQ + j, srd(sWQ), sOff, (j & 3) * PIECE))
    return out
def woT(m0base, m0add):
    out = []
    for j in range(8):
        out.append("s_add_u32 m0, s%d, %d" % (m0base, m0add + j * PIECE - (j & 3) * 1024) + ("\ns_add_u32 s%d, s%d, 4096" % (sOff, sOff) if j == 4 else ""))
        out.append("buffer_load_dwordx4 v%d, %s, s%d offen offset:%d lds" % (vgWo, srd(sWO), sOff, (j & 3) * 1024))
    return out
def emit(a, lst):
    prev = ""
    for x in lst:
        if x.startswith("buffer") and x.endswith("lds") and prev.split("\n")[-1].startswith("s_add_u32 m0"): a("s_nop 0")
        a(x); prev = x

def tr_reads(off, tiles=range(8), dst0=F, va=vT):
    return ["ds_read_b64_tr_b16 %s, v%d offset:%d" % (v2(dst0 + t * 4 + h * 2), va, off + 256 * h + 32 * t) for t in tiles for h in range(2)]
def k_reads(off, kts=(0, 1)):
    return ["ds_read_b128 %s, v%d offset:%d" % (v4(F + (kt * 4 + s) * 4), vK, off + 512 * kt + 64 * s) for kt in kts for s in range(4)]

def sm_chain(kt, qt):
    t0 = T + ((kt * 3 + qt) & 1) * 4
    s = sreg(kt, qt)
    out = ["v_exp_f32 v%d, v%d" % (t0 + r, s + r) for r in range(4)]
    out.append("v_cvt_pk_bf16_f32 v%d, v%d, v%d" % (preg(qt) + 2 * kt, t0, t0 + 1))
    out.append("v_cvt_pk_bf16_f32 v%d, v%d, v%d" % (preg(qt) + 2 * kt + 1, t0 + 2, t0 + 3))
    return out
def qk_chain(kt, qt):
    return [mf(sreg(kt, qt), F + (kt * 4 + s) * 4, qf(s, qt), sreg(kt, qt) if s else NM + qt * 4) for s in range(4)]
def pv_list(tiles): return [mf(acc(t, qt), F + t * 4, preg(qt), acc(t, qt)) for t in tiles for qt in range(3)]
def l_list(): return [mf(L + qt * 4, ON, preg(qt), L + qt * 4) for qt in range(3)]

def tile_old(a, vo, knext):
    c = [qk_chain(kt, qt) for kt in range(2) for qt in range(3)]
    sm = [sm_chain(kt, qt) for kt in range(2) for qt in range(3)]
    v0 = tr_reads(vo, range(4)); v1 = tr_reads(vo, range(4, 8))
    for s in range(4):
        a("s_waitcnt lgkmcnt(%d)" % (7 - s))
        a(c[0][s])
    for m in c[1]: a(m)
    weave(a, c[2], (sm[0], 1, 4))
    a("s_waitcnt lgkmcnt(0)")
    weave(a, c[3], (sm[1], 0, 4), (v0[:4], 0, 4))
    weave(a, c[4], (sm[2], 0, 4), (v0[4:], 0, 4))
    s5 = sreg(1, 2)
    O1, O2 = P + 10, P + 11
    pre = ["v_or3_b32 v%d, v%d, v%d, v%d" % (O1, P, P + 1, P + 4), "v_or3_b32 v%d, v%d, v%d, v%d" % (O2, P + 5, P + 8, P + 9)]
    weave(a, c[5], (pre, 0, 2), (sm[3], 0, 4))
    a(sm[4][0]); a(sm[4][1])
    a("v_or3_b32 v%d, v%d, v%d, v%d" % (O1, O1, P + 2, P + 3))
    a(sm[4][2]); a(sm[4][3])
    a("v_or_b32 v%d, v%d, v%d" % (O1, O1, O2))
    a(sm[4][4]); a(sm[4][5])
    a("v_max3_f32 v%d, v%d, v%d, v%d" % (O2, s5, s5 + 1, s5 + 2))
    a("v_or3_b32 v%d, v%d, v%d, v%d" % (O1, O1, P + 6, P + 7))
    a("v_lshl_or_b32 v%d, v%d, 16, v%d" % (O1, O1, O1))
    a("v_and_b32 v%d, 0x40000000, v%d" % (O1, O1))
    a("v_max3_f32 v%d, v%d, v%d, v%d" % (O2, O2, s5 + 3, O1))
    a("v_cmp_le_f32 vcc, s%d, v%d" % (sThr, O2))
    ok = a.newlabel("L_ok")
    a("s_cbranch_vccz %s" % ok)
    a("s_call_b64 s[%d:%d], L_slow" % (sRet, sRet + 1))
    a.label(ok)
    ll = l_list()
    a("s_waitcnt lgkmcnt(0)")
    m1 = [ll[0], ll[1]] + [mf(acc(t, qt), F + t * 4, preg(qt), acc(t, qt)) for t in range(4) for qt in range(2)]
    weave(a, m1, (sm[5], 0, 5), (v1, 0, 8))
    a(ll[2])
    for t in range(4): a(mf(acc(t, 2), F + t * 4, preg(2), acc(t, 2)))
    m2 = pv_list(range(4, 8))
    if knext is not None:
        for r in k_reads(knext, (0,)): a(r)
        a("s_waitcnt lgkmcnt(4)")
        for m in m2: a(m)
        for r in k_reads(knext, (1,)): a(r)
    else:
        a("s_waitcnt lgkmcnt(0)")
        for m in m2: a(m)

STUBS = []
def tile_fast(a, vo, knext):
    c = [qk_chain(kt, qt) for kt in range(2) for qt in range(3)]
    sm = [sm_chain(kt, qt) for kt in range(2) for qt in range(3)]
    v0 = tr_reads(vo, range(4)); v1 = tr_reads(vo, range(4, 8))
    k1 = k_reads(vo - BLK, (1,))
    def chk(qt):
        t = T + 4 * (qt & 1); p = preg(qt)
        return ["v_or3_b32 v%d, v%d, v%d, v%d" % (t, p, p + 1, p + 2),
                "v_bitop3_b32 v%d, v%d, v%d, s%d bitop3:0xa8" % (t, t, p + 3, sMsk),
                "v_cmp_le_u32 vcc, s%d, v%d" % (sThr, t)]
    def br(qt):
        ok = a.newlabel("L_ok"); st = a.newlabel("L_stub")
        a("s_cbranch_vccnz %s" % st)
        a.label(ok)
        STUBS.append((st, ok, qt))
    def pvq(qt): return [l_list()[qt]] + [mf(acc(t, qt), F + t * 4, preg(qt), acc(t, qt)) for t in range(4)]
    for s in range(4):
        a("s_waitcnt lgkmcnt(3)")
        a(c[0][s])
        a(k1[s])
    for m in c[1]: a(m)
    weave(a, c[2], (sm[0], 0, 4))
    a("s_waitcnt lgkmcnt(0)")
    weave(a, c[3], (sm[1], 0, 4), (v0[:4], 0, 4))
    weave(a, c[4], (sm[2], 0, 4), (v0[4:], 0, 4))
    weave(a, c[5], (sm[3] + chk(0), 0, 3))
    a("s_waitcnt lgkmcnt(0)")
    br(0)
    weave(a, pvq(0), (sm[4] + chk(1), 0, 4))
    br(1)
    weave(a, pvq(1), (sm[5] + chk(2), 0, 4), (v1[:2], 3, 5))
    br(2)
    weave(a, pvq(2), (v1[2:], 0, 4))
    m2 = pv_list(range(4, 8))
    kn = k_reads(knext, (0,)) if knext is not None else []
    for t in range(4):
        a("s_waitcnt lgkmcnt(%d)" % (6 - 2 * t + (min(2 * t, 4) if kn else 0)))
        for i, m in enumerate(m2[3 * t:3 * t + 3]):
            a(m)
            if kn and t < 2 and i < 2: a(kn[2 * t + i])

def emit_stubs(a):
    for st, ok, qt in STUBS:
        a.label(st)
        a("s_call_b64 s[%d:%d], L_slow%d" % (sRet, sRet + 1, qt))
        a("s_branch %s" % ok)

def xlane(a, op, r, t):
    a("v_mov_b32 v%d, v%d" % (t, r))
    a("v_permlane32_swap_b32 v%d, v%d" % (t, r))
    a("%s v%d, v%d, v%d" % (op, r, r, t))
    a("v_mov_b32 v%d, v%d" % (t, r))
    a("v_permlane16_swap_b32 v%d, v%d" % (t, r))
    a("%s v%d, v%d, v%d" % (op, r, r, t))

def slow_old(a):
    a.label("L_slow")
    a("s_nop 7")
    for qt in range(3):
        s0, s1 = sreg(0, qt), sreg(1, qt)
        x = T
        a("v_max3_f32 v%d, v%d, v%d, v%d" % (x, s0, s0 + 1, s0 + 2))
        a("v_max3_f32 v%d, v%d, v%d, v%d" % (x, x, s0 + 3, s1))
        a("v_max3_f32 v%d, v%d, v%d, v%d" % (x, x, s1 + 1, s1 + 2))
        a("v_max_f32 v%d, v%d, v%d" % (x, x, s1 + 3))
        xlane(a, "v_max_f32", x, T + 1)
        a("v_max_f32 v%d, s%d, v%d" % (x, sFloor, x))
        a("v_add_f32 v%d, 0x%x, v%d" % (x, fbits(BIAS), x))
        a("v_sub_f32 v%d, 0, v%d" % (T + 1, x))
        a("v_min_f32 v%d, 0, v%d" % (T + 1, T + 1))
        a("v_exp_f32 v%d, v%d" % (T + 1, T + 1))
        for r in range(4):
            a("v_sub_f32 v%d, v%d, v%d" % (NM + qt * 4 + r, NM + qt * 4 + r, x))
            a("v_sub_f32 v%d, v%d, v%d" % (s0 + r, s0 + r, x))
            a("v_sub_f32 v%d, v%d, v%d" % (s1 + r, s1 + r, x))
        lsk = a.newlabel("L_nors")
        a("s_cmp_lg_u32 s%d, 1.0\ns_cbranch_scc1 %s" % (sThr, lsk))
        for r in range(4):
            a("v_mul_f32 v%d, v%d, v%d" % (L + qt * 4 + r, L + qt * 4 + r, T + 1))
        for t in range(8):
            for r in range(4):
                a("v_mul_f32 v%d, v%d, v%d" % (acc(t, qt) + r, acc(t, qt) + r, T + 1))
        a.label(lsk)
    for kt in range(2):
        for qt in range(3):
            for s in sm_chain(kt, qt): a(s)
    a("s_mov_b32 s%d, 0x%x" % (sFloor, fbits(-BIAS)))
    a("s_mov_b32 s%d, 1.0" % sThr)
    a("s_nop 1")
    a("s_setpc_b64 s[%d:%d]" % (sRet, sRet + 1))

def slow_path(a):
    if "oldtile" in ARGS: return slow_old(a)
    for qt in range(3):
        a.label("L_slow%d" % qt)
        s0, s1 = sreg(0, qt), sreg(1, qt)
        x = T
        a("v_max3_f32 v%d, v%d, v%d, v%d" % (x, s0, s0 + 1, s0 + 2))
        a("v_max3_f32 v%d, v%d, v%d, v%d" % (x + 1, s0 + 3, s1, s1 + 1))
        a("v_max3_f32 v%d, v%d, v%d, v%d" % (x, x, s1 + 2, s1 + 3))
        a("v_max_f32 v%d, v%d, v%d" % (x, x, x + 1))
        xlane(a, "v_max_f32", x, T + 1)
        a("v_max_f32 v%d, s%d, v%d" % (x, sFloor, x))
        a("v_add_f32 v%d, 0x%x, v%d" % (x, fbits(BIAS), x))
        for r in range(4):
            a("v_sub_f32 v%d, v%d, v%d" % (s0 + r, s0 + r, x))
            a("v_sub_f32 v%d, v%d, v%d" % (s1 + r, s1 + r, x))
            a("v_sub_f32 v%d, v%d, v%d" % (NM + qt * 4 + r, NM + qt * 4 + r, x))
        lsk = a.newlabel("L_nors")
        a("s_cmp_eq_u32 s%d, 0\ns_cbranch_scc1 %s" % (sThr, lsk))
        a("v_sub_f32 v%d, 0, v%d" % (T + 1, x))
        a("v_exp_f32 v%d, v%d" % (T + 1, T + 1))
        for r in range(4):
            a("v_mul_f32 v%d, v%d, v%d" % (L + qt * 4 + r, L + qt * 4 + r, T + 1))
        for t in range(8):
            for r in range(4):
                a("v_mul_f32 v%d, v%d, v%d" % (acc(t, qt) + r, acc(t, qt) + r, T + 1))
        a.label(lsk)
        for kt in range(2):
            t0 = T + 4 * kt; s = sreg(kt, qt)
            for r in range(4): a("v_exp_f32 v%d, v%d" % (t0 + r, s + r))
        for kt in range(2):
            t0 = T + 4 * kt
            a("v_cvt_pk_bf16_f32 v%d, v%d, v%d" % (preg(qt) + 2 * kt, t0, t0 + 1))
            a("v_cvt_pk_bf16_f32 v%d, v%d, v%d" % (preg(qt) + 2 * kt + 1, t0 + 2, t0 + 3))
        if qt == 2:
            a("s_mov_b32 s%d, 0x%x" % (sFloor, fbits(-BIAS)))
            a("s_mov_b32 s%d, 1" % sThr)
        a("s_nop 1")
        a("s_setpc_b64 s[%d:%d]" % (sRet, sRet + 1))

def zero(a, base, n):
    for r in range(n): a("v_mov_b32 v%d, 0" % (base + r))

def att_init(a):
    zero(a, ACC, 96); zero(a, NM, 24)
    for r in range(4): a("v_mov_b32 v%d, 0x3f803f80" % (ON + r))
    a("s_mov_b32 s%d, 0x%x\ns_mov_b32 s%d, %s" % (sFloor, fbits(-3e38), sThr, "0xff800000" if "oldtile" in ARGS else "0"))
    a("s_mov_b32 s%d, 0x40004000" % sMsk)

def scale_acc(a, sc):
    for t in range(8):
        for qt in range(3):
            for r in (0, 2):
                x = acc(t, qt) + r
                a("v_pk_mul_f32 %s, %s, %s%s" % (v2(x), v2(x), sc(qt), " op_sel_hi:[1,0]" if sc(qt)[0] == "s" else ""))

def pack_T(a):
    for s in range(4):
        for qt in range(3):
            d = qf(s, qt)
            for hh in range(2):
                src = acc(2 * s + hh, qt)
                a("v_cvt_pk_bf16_f32 v%d, v%d, v%d" % (d + 2 * hh, src, src + 1))
                a("v_cvt_pk_bf16_f32 v%d, v%d, v%d" % (d + 2 * hh + 1, src + 2, src + 3))
def pack_R(a):
    for s in range(4):
        for qt in range(3):
            for p in range(4):
                a("v_cvt_pk_bf16_f32 v%d, v%d, v%d" % (qf(s, qt) + p, acc(2 * p, qt) + s, acc(2 * p + 1, qt) + s))

def q_final_T(a):
    a("s_nop 7")
    scale_acc(a, lambda qt: "s[%d:%d]" % (sC, sC + 1))
    pack_T(a)
    for op in ("v_permlane32_swap_b32", "v_permlane16_swap_b32"):
        for i in range(12):
            d = QF + 4 * i
            a("%s v%d, v%d" % (op, d, d + 2)); a("%s v%d, v%d" % (op, d + 1, d + 3))
def q_final_R(a):
    a("s_nop 7")
    scale_acc(a, lambda qt: "s[%d:%d]" % (sC, sC + 1))
    pack_R(a)
    xpose_R(a)
def xpose_R(a):
    for qt in range(3):
        for (x, y) in ((0, 2), (1, 3)):
            for p in range(4): a("v_permlane32_swap_b32 v%d, v%d" % (qf(x, qt) + p, qf(y, qt) + p))
    for qt in range(3):
        for (x, y) in ((0, 1), (2, 3)):
            for p in range(4): a("v_permlane16_swap_b32 v%d, v%d" % (qf(x, qt) + p, qf(y, qt) + p))
def o_final(a):
    a("s_nop 7")
    for qt in range(3):
        a("v_rcp_f32 v%d, v%d" % (L + qt * 4, L + qt * 4))
        a("v_rcp_f32 v%d, v%d" % (L + qt * 4 + 1, L + qt * 4 + 1))
    scale_acc(a, lambda qt: v2(L + qt * 4))
    pack_T(a)

def publish(a, base_sgpr, src=QF, n=12):
    a("v_add_u32 v%d, s%d, v%d" % (vTmpA, base_sgpr, vLane16))
    for i in range(n):
        a("ds_write_b128 v%d, %s offset:%d" % (vTmpA, v4(src + i * 4), i * 1024))

def debug_dump(a, which, isB):
    a("s_lshl_b32 s%d, s2, 2\ns_add_u32 s%d, s%d, s%d" % (sT0, sT0, sT0, sW))
    if isB: a("s_add_u32 s%d, s%d, 1024" % (sT0, sT0))
    a("s_mul_i32 s%d, s%d, 12288" % (sT0, sT0))
    a("s_add_u32 s%d, s%d, 0x%x" % (sT0, sT0, (64 + 32 * which) << 20))
    for i in range(12):
        a("s_add_u32 s%d, s%d, %d" % (sT1, sT0, i * 1024))
        a("buffer_store_dwordx4 %s, v%d, %s, s%d offen" % (v4(QF + i * 4), vLane16, srd(sWS), sT1))
    a("s_waitcnt vmcnt(0)")

def store_partial(a, br, cb):
    a("s_nop 7")
    a("s_add_u32 s%d, s%d, %d" % (sT0, sB, br * 32))
    a("s_lshl_b32 s%d, s%d, 2\ns_add_u32 s%d, s%d, s%d" % (sT0, sT0, sT0, sT0, cb))
    a("s_mul_i32 s%d, s%d, %d" % (sT0, sT0, 12 * 8192))
    a("s_lshl_b32 s%d, s%d, 10\ns_add_u32 s%d, s%d, s%d" % (sT1, sG, sT0, sT0, sT1))
    if not br:
        pack_R(a); xpose_R(a)
    if OWN:
        a("s_lshr_b32 s%d, s%d, 1\ns_and_b32 s%d, s%d, 1\ns_cmp_eq_u32 s%d, s%d\ns_cselect_b32 s%d, s%d, 2" % (sT1, sG, sRot, sG, sT1, cb, sRot, sRot))
    for half in range(2):
        def body():
            for i in range(6 * half, 6 * half + 6):
                a("s_add_u32 s%d, s%d, %d" % (sT1, sT0, i * 8192))
                a("buffer_store_dwordx4 %s, v%d, %s, s%d offen sc1" % (v4(QF + 4 * i), vLane16, srd(sWS), sT1))
        if br:
            for i in range(6 * half, 6 * half + 6):
                s, qt = i // 3, i % 3
                d = qf(s, qt)
                for hh in range(2):
                    src = acc(2 * s + hh, qt)
                    a("v_cvt_pk_bf16_f32 v%d, v%d, v%d" % (d + 2 * hh, src, src + 1))
                    a("v_cvt_pk_bf16_f32 v%d, v%d, v%d" % (d + 2 * hh + 1, src + 2, src + 3))
        if OWN: cond(a, sRot, half, body, eq=False)
        else: body()

def own_write(a, br):
    if not OWN: return
    for half in range(2):
        def body():
            a("v_add_u32 v%d, %d, v%d" % (vTmpA, WR + 6144 * br, vLane16))
            for i in range(6):
                a("ds_write_b128 v%d, %s offset:%d" % (vTmpA, v4(QF + 4 * (6 * half + i)), i * 1024))
        cond(a, sRot, half, body)

def cond(a, reg, val, body, eq=True):
    l = a.newlabel("L_c")
    a("s_cmp_eq_u32 s%d, %d" % (reg, val))
    a("s_cbranch_scc%d %s" % (0 if eq else 1, l))
    body()
    a.label(l)
def cond_lt(a, reg, val, body):
    l = a.newlabel("L_c")
    a("s_cmp_lt_u32 s%d, %d\ns_cbranch_scc0 %s" % (reg, val, l))
    body()
    a.label(l)

FS = int(opt("fs", -1))
SB = int(opt("sb", -1))
def sbst(a, s_):
    if SB >= 0 and SB <= s_ < SB + 9: stamp(a, 1 + s_ - SB, True)
def stamp(a, k, fine=False):
    if not STAMP: return
    if (FS >= 0 or SB >= 0 or opt("f3")) and not fine and k >= 1: return
    if "cyc" in ARGS:
        a("s_memtime s[90:91]\ns_waitcnt lgkmcnt(0)")
        if k == 0: a("s_mov_b32 s%d, s90\ns_mov_b32 s92, 1" % sCyc)
        else: a("s_sub_u32 s%d, s90, s%d\ns_lshr_b32 s%d, s%d, 4" % (92 + k, sCyc, 92 + k, 92 + k))
        return
    a("s_memrealtime s[90:91]\ns_waitcnt lgkmcnt(0)\ns_mov_b32 s%d, s90" % (92 + k))
def stamp_out(a, n):
    if not STAMP: return
    a("s_lshl_b32 s%d, s2, 3\ns_add_u32 s%d, s%d, s%d\ns_lshl_b32 s%d, s%d, 6\ns_add_u32 s%d, s%d, 0x%x" % (sT0, sT0, sT0, sWave, sT0, sT0, sT0, sT0, 536870912 - (1 << 20)))
    a("s_mov_b64 exec, 1")
    a("v_mov_b32 v15, 0")
    for k in range(n):
        a("v_mov_b32 v14, s%d" % (92 + k))
        a("buffer_store_dword v14, v15, %s, s%d offen offset:%d" % (srd(sWS), sT0, 4 * k))
        a("s_nop 1")

def dbg_srd(a, q=sXI):
    a("s_mov_b32 s%d, s%d\ns_mov_b32 s%d, s%d\ns_mov_b32 s%d, 256\ns_mov_b32 s%d, 0x20000" % (q, sPtr + 22, q + 1, sPtr + 23, q + 2, q + 3))

SEP = "sep" in ARGS
def arrive(a, ev=0, sl=1):
    ld = a.newlabel("L_d"); lw = a.newlabel("L_w"); lp = a.newlabel("L_poll")
    a("v_mov_b32 v%d, %d\nv_mov_b32 v%d, 1" % (T, SYNC + 16 * ev, T + 1))
    a("v_lshlrev_b32 v%d, 7, v0" % (T + 4))
    a("s_lshl_b32 s%d, s%d, 10\ns_add_u32 s%d, s%d, 0x%x" % (sOff, sB, sOff, sOff, GO))
    a("s_lshl_b32 s%d, s2, 7\ns_add_u32 s%d, s%d, 0x%x" % (sT1, sT1, sT1, GO))
    a("s_mov_b64 exec, 1")
    a("ds_read_b32 v%d, v%d offset:8" % (T + 5, T))
    a("v_mov_b32 v%d, 0" % (T + 3))
    a("s_waitcnt vmcnt(0)")
    a("ds_add_rtn_u32 v%d, v%d, v%d" % (T + 2, T, T + 1))
    a("s_waitcnt lgkmcnt(0)")
    a("v_readfirstlane_b32 s%d, v%d" % (sT0, T + 2))
    a("s_cmp_eq_u32 s%d, %d\ns_cbranch_scc0 %s" % (sT0, 3 if SEP else 7, ld))
    a("s_mov_b64 exec, 0xff")
    a("buffer_atomic_add v%d, v%d, %s, s%d offen offset:%d sc1" % (T + 1, T + 4, srd(sWS), sOff, 4 * ev))
    a("s_mov_b64 exec, 1")
    a("v_readfirstlane_b32 s%d, v%d" % (sN, T + 5))
    a("s_add_u32 s%d, s%d, 8" % (sN, sN))
    a("s_mov_b32 s%d, 200000" % sT2)
    a.label(lp)
    a("s_sub_u32 s%d, s%d, 1\ns_cbranch_scc1 %s" % (sT2, sT2, lw))
    a("buffer_load_dword v%d, v%d, %s, s%d offen offset:%d sc1" % (T + 2, T + 3, srd(sWS), sT1, 4 * ev))
    a("s_waitcnt vmcnt(0)")
    a("v_readfirstlane_b32 s%d, v%d" % (sT0, T + 2))
    a("s_cmp_eq_u32 s%d, s%d\ns_cbranch_scc1 %s" % (sT0, sN, lw))
    a("s_sleep %d\ns_branch %s" % (sl, lp))
    a.label(lw)
    a("ds_write_b32 v%d, v%d offset:4" % (T, T + 1))
    a("s_waitcnt lgkmcnt(0)")
    a.label(ld)
    a("s_mov_b64 exec, -1")

def wait_flag(a, sl, ev=0):
    lp = a.newlabel("L_f"); ld = a.newlabel("L_g")
    a("v_mov_b32 v%d, %d" % (T, SYNC + 16 * ev))
    a("s_mov_b32 s%d, 4000000" % sT2)
    a.label(lp)
    a("s_sub_u32 s%d, s%d, 1\ns_cbranch_scc1 %s" % (sT2, sT2, ld))
    a("ds_read_b32 v%d, v%d offset:4" % (T + 1, T))
    a("s_waitcnt lgkmcnt(0)")
    a("v_readfirstlane_b32 s%d, v%d" % (sT0, T + 1))
    a("s_cmp_lg_u32 s%d, 0\ns_cbranch_scc1 %s" % (sT0, ld))
    a("s_sleep %d\ns_branch %s" % (sl, lp))
    a.label(ld)

def reduce_prep(a, it, br, ld, so):
    a("s_mul_i32 s%d, s%d, 6\ns_add_u32 s%d, s%d, s%d" % (sT0, sG, sT0, sT0, it))
    a("s_add_u32 s%d, s%d, %d\ns_mul_i32 s%d, s%d, 48\ns_add_u32 s%d, s%d, s%d" % (sT1, sB, 32 * br, sT1, sT1, sT1, sT1, sT0))
    a("s_lshl_b32 s%d, s%d, 13" % (ld, sT1))
    a("s_mul_i32 s%d, s%d, 43\ns_lshr_b32 s%d, s%d, 7" % (sT1, sT0, sT1, sT1))
    a("s_mul_i32 s%d, s%d, 3\ns_sub_u32 s%d, s%d, s%d" % (sT2, sT1, sT2, sT0, sT2))
    a("s_mul_i32 s%d, s%d, 3\ns_add_u32 s%d, s%d, s%d\ns_lshl_b32 s%d, s%d, 15" % (so, sB, so, so, sT2, so, so))
    a("s_lshl_b32 s%d, s%d, 6\ns_add_u32 s%d, s%d, s%d" % (sT1, sT1, so, so, sT1))
    if br: a("s_add_u32 s%d, s%d, 1024" % (so, so))
def reduce_issue(a, D, ld, br=0, it=None, k=0):
    if OWN:
        a("s_lshl_b32 s%d, s%d, 10\ns_add_u32 s%d, s%d, %d" % (sT0, it, sT0, sT0, WR + 6144 * br))
        a("v_add_u32 v%d, s%d, v%d" % (RX, sT0, vLane16))
        a("ds_read_b128 %s, v%d" % (v4(RW + 4 * k), RX))
    for g_ in range(7 if OWN else 8):
        if OWN:
            a("s_add_u32 s%d, s%d, %d\ns_and_b32 s%d, s%d, 7\ns_lshl_b32 s%d, s%d, 10\ns_add_u32 s%d, s%d, s%d" % (sT0, sG, g_ + 1, sT0, sT0, sT0, sT0, sT0, sT0, ld))
            a("buffer_load_dwordx4 %s, v%d, %s, s%d offen sc1" % (v4(D + 4 * g_), vLane16, srd(sWS), sT0))
        else:
            if g_ == 4: a("s_add_u32 s%d, s%d, 4096" % (ld, ld))
            a("buffer_load_dwordx4 %s, v%d, %s, s%d offen offset:%d sc1" % (v4(D + 4 * g_), vLane16, srd(sWS), ld, (g_ & 3) * 1024))
RA, RX, RADB, RADA, RO, RW = 200, 208, 212, 213, 216, 224
def reduce_fin(a, D, br, so, younger, k):
    O_ = RO + 4 * k
    NL = 7 if OWN else 8
    if OWN and younger: younger = 7
    for g_ in range(8):
        if OWN and g_ == 0: a("s_waitcnt lgkmcnt(0)")
        else: a("s_waitcnt vmcnt(%d)" % (7 - g_ + younger))
        for d in range(4):
            src = D + 4 * g_ + d
            if OWN: src = (RW + 4 * k + d) if g_ == 0 else (D + 4 * (g_ - 1) + d)
            if g_ == 0:
                a("v_lshlrev_b32 v%d, 16, v%d" % (RA + 2 * d, src))
                a("v_and_b32 v%d, 0xffff0000, v%d" % (RA + 2 * d + 1, src))
            else:
                X = RX + (d & 1) * 2
                a("v_lshlrev_b32 v%d, 16, v%d" % (X, src))
                a("v_and_b32 v%d, 0xffff0000, v%d" % (X + 1, src))
                a("v_pk_add_f32 %s, %s, %s" % (v2(RA + 2 * d), v2(RA + 2 * d), v2(X)))
    for d in range(4):
        a("v_cvt_pk_bf16_f32 v%d, v%d, v%d" % (O_ + d, RA + 2 * d, RA + 2 * d + 1))
    if br:
        a("v_permlane32_swap_b32 v%d, v%d\nv_permlane32_swap_b32 v%d, v%d" % (O_, O_ + 2, O_ + 1, O_ + 3))
        a("v_permlane16_swap_b32 v%d, v%d\nv_permlane16_swap_b32 v%d, v%d" % (O_, O_ + 2, O_ + 1, O_ + 3))
    return "buffer_store_dwordx4 %s, v%d, %s, s%d offen sc1" % (v4(O_), RADB, srd(sK), so)

def tail_joint(a, isB):
    arrive(a)
    a("v_and_b32 v%d, 15, v0\nv_lshrrev_b32 v%d, 4, v0\nv_lshlrev_b32 v%d, 11, v%d" % (RADB, RX, RADB, RADB))
    a("v_lshl_add_u32 v%d, v%d, 4, v%d" % (RADB, RX, RADB))
    a("s_mov_b32 s%d, s%d\ns_mov_b32 s%d, s%d\ns_mov_b32 s%d, 0x%x\ns_mov_b32 s%d, 0x20000" % (sK, sPtr + 20, sK + 1, sPtr + 21, sK + 2, SZ["out"], sK + 3))
    if isB:
        reduce_prep(a, sW, 1, sBuf, sCh)
        reduce_prep(a, sW, 0, sSet, sChN)
        wait_flag(a, 1)
        stamp(a, 8)
        reduce_issue(a, ACC, sBuf, 1, sW, 0); reduce_issue(a, ACC + 32, sSet, 0, sW, 1)
        st = [reduce_fin(a, ACC, 1, sCh, 8, 0), reduce_fin(a, ACC + 32, 0, sChN, 0, 1)]
        for s_ in st: a(s_)
    else:
        l2 = a.newlabel("L_ta")
        a("s_cmp_ge_u32 s%d, 2\ns_cbranch_scc1 %s" % (sW, l2))
        for br, add in ((1, 4), (0, 2)):
            if br == 0: a.label(l2)
            a("s_add_u32 s%d, s%d, %d" % (sN, sW, add))
            reduce_prep(a, sN, br, sBuf, sCh)
            wait_flag(a, 2)
            stamp(a, 8)
            reduce_issue(a, ACC, sBuf, br, sN, 0)
            a(reduce_fin(a, ACC, br, sCh, 0, 0))
            if br == 1: a("s_branch L_fin")
    if isB: a("s_branch L_fin")
    else:
        a.label("L_fin")
        if STAMP: a("s_waitcnt vmcnt(0)")
        stamp(a, 9)
        stamp_out(a, 10)
        a("s_endpgm")

def tail(a, isB):
    if not SEP: return tail_joint(a, isB)
    arrive(a, 0 if isB else 1, 1 if isB else 4)
    a("v_and_b32 v%d, 15, v0\nv_lshrrev_b32 v%d, 4, v0\nv_lshlrev_b32 v%d, 11, v%d" % (RADB, RX, RADB, RADB))
    a("v_lshl_add_u32 v%d, v%d, 4, v%d" % (RADB, RX, RADB))
    a("s_mov_b32 s%d, s%d\ns_mov_b32 s%d, s%d\ns_mov_b32 s%d, 0x%x\ns_mov_b32 s%d, 0x20000" % (sK, sPtr + 20, sK + 1, sPtr + 21, sK + 2, SZ["out"], sK + 3))
    if isB:
        a("s_mov_b32 s%d, s%d" % (sN, sW))
        a.label("L_bitem")
        reduce_prep(a, sN, 1, sBuf, sCh)
        wait_flag(a, 1)
        stamp(a, 8)
        reduce_issue(a, ACC, sBuf)
        a(reduce_fin(a, ACC, 1, sCh, 0, 0))
        a("s_branch L_fin")
    else:
        l2 = a.newlabel("L_ta")
        reduce_prep(a, sW, 0, sBuf, sCh)
        a("s_cmp_ge_u32 s%d, 2\ns_cbranch_scc1 %s" % (sW, l2))
        wait_flag(a, 2, 1)
        reduce_issue(a, ACC, sBuf)
        a(reduce_fin(a, ACC, 0, sCh, 0, 1))
        stamp(a, 7)
        a("s_add_u32 s%d, s%d, 4" % (sN, sW))
        a("s_branch L_bitem")
        a.label(l2)
        a("s_add_u32 s%d, s%d, 2" % (sN, sW))
        reduce_prep(a, sN, 0, sSet, sChN)
        wait_flag(a, 2, 1)
        reduce_issue(a, ACC, sBuf); reduce_issue(a, ACC + 32, sSet)
        st = [reduce_fin(a, ACC, 0, sCh, 8, 0), reduce_fin(a, ACC + 32, 0, sChN, 0, 1)]
        for s_ in st: a(s_)
        stamp(a, 7)
        a.label("L_fin")
        if STAMP: a("s_waitcnt vmcnt(0)")
        stamp(a, 9)
        stamp_out(a, 10)
        a("s_endpgm")

def x_piece(p_sgpr_off, p, srdq, ch, ldsbase):
    pass

def xp(a_list, ch_sgpr, p, srdq, lds_const, fl=""):
    ls = ["s_lshl_b32 s%d, s%d, 7" % (sT2, ch_sgpr), "s_add_u32 s%d, s%d, s%d" % (sT2, sT2, sXB)]
    ls.append("s_add_u32 m0, s%d, %d" % (sN, lds_const + p * 1024))
    ls.append("s_add_u32 s%d, s%d, %d" % (sT2, sT2, p * 8192))
    ls.append("buffer_load_dwordx4 v%d, %s, s%d offen%s lds" % (vgX, srd(srdq), sT2, fl))
    a_list.append("\n".join(ls))

def wq_off(chreg, add, par):
    return ["s_add_u32 s%d, s%d, %d\ns_and_b32 s%d, s%d, 7" % (sOff, chreg, add, sOff, sOff),
            "s_lshl_b32 s%d, s%d, 1\ns_add_u32 s%d, s%d, s%d" % (sOff, sOff, sOff, sOff, sSp + par),
            "s_lshl_b32 s%d, s%d, 18\ns_add_u32 s%d, s%d, s%d" % (sOff, sOff, sOff, sOff, sWqB)]
def xaddr(par, bufreg=None, bufconst=0):
    out = ["s_lshl_b32 s%d, s%d, 6" % (sT0, sSp + par), "v_xor_b32 v%d, s%d, v%d" % (vXa, sT0, vXr)]
    if bufreg is not None: out.append("v_add_u32 v%d, s%d, v%d" % (vXa, bufreg, vXa))
    return out

def projT(a, bimm, aoff, va, issue, accf=acc, af=F, bf=P):
    for qt in range(3): a("ds_read_b128 %s, v%d offset:%d" % (v4(bf + 4 * qt), vXa, bimm[qt]))
    rd = tr_reads(aoff, range(8), af, va)
    for r in rd[:12]: a(r)
    a("s_waitcnt lgkmcnt(10)")
    for r in rd[12:]: a(r)
    a("s_waitcnt lgkmcnt(0)")
    issue()
    for t in range(8):
        for qt in range(3): a(mf(accf(t, qt), af + t * 4, bf + 4 * qt, accf(t, qt)))

def projR(a, bimm, lb, issue):
    for qt in range(3): a("ds_read_b128 %s, v%d offset:%d" % (v4(BFR + 4 * qt), vXa, bimm[qt]))
    def perms(i):
        d = FR + (i & 3) * 4
        return ["v_perm_b32 v%d, v%d, v%d, s%d" % (d + p, lb + (2 * p + 1) * 4 + (i >> 1), lb + 2 * p * 4 + (i >> 1), sSelHi if i & 1 else sSelLo) for p in range(4)]
    for i in range(4):
        for x in perms(i): a(x)
    a("s_waitcnt lgkmcnt(0)")
    for i in range(4):
        for qt in range(3): a(mf(acc(i, qt), FR + i * 4, BFR + 4 * qt, acc(i, qt)))
        for x in perms(i + 4): a(x)
    issue()
    for i in range(4, 8):
        for qt in range(3): a(mf(acc(i, qt), FR + (i & 3) * 4, BFR + 4 * qt, acc(i, qt)))

def perm_all(a, lb, fr):
    for i in range(8):
        for p in range(4):
            a("v_perm_b32 v%d, v%d, v%d, s%d" % (fr + 4 * i + p, lb + (2 * p + 1) * 4 + (i >> 1), lb + 2 * p * 4 + (i >> 1), sSelHi if i & 1 else sSelLo))

def projR2(a, bimm, fr, bf, vxa, issue, nfirst, bar=None):
    for qt in range(3): a("ds_read_b128 %s, v%d offset:%d" % (v4(bf[qt]), vxa, bimm[qt]))
    ms = [mf(acc(i, qt), fr + i * 4, bf[qt], acc(i, qt)) for i in range(8) for qt in range(3)]
    if nfirst < 0:
        issue()
        a("s_waitcnt lgkmcnt(0)")
        for m in ms: a(m)
        bar()
        return
    if nfirst == 0:
        issue()
        a("s_waitcnt lgkmcnt(0)")
        for m in ms: a(m)
        return
    if "aprio" in ARGS: a("s_setprio 2")
    a("s_waitcnt lgkmcnt(0)")
    for m in ms[:nfirst]: a(m)
    issue()
    if "aprio" in ARGS: a("s_setprio 0")
    for m in ms[nfirst:]: a(m)

def wqR(lb, dummy=None):
    out = []
    for r in range(8):
        if r: out.append("s_add_u32 s%d, s%d, 8192" % (sOff, sOff))
        out.append("buffer_load_dwordx4 %s, v%d, %s, s%d offen" % (v4(lb + 4 * r), vgWq, srd(sWQ), sOff))
    return out
def woR(lb):
    out = []
    for r in range(8):
        if r == 4: out.append("s_add_u32 s%d, s%d, 16384" % (sOff, sOff))
        out.append("buffer_load_dwordx4 %s, v%d, %s, s%d offen offset:%d" % (v4(lb + 4 * r), 2, srd(sWO), sOff, (r & 3) * 1024))
    return out

def b_kv_params(a, wadd=0):
    a("s_lshl_b32 s%d, s2, 2\ns_add_u32 s%d, s%d, s%d" % (sT0, sT0, sT0, sW))
    if wadd: a("s_sub_u32 s%d, s%d, %d" % (sT0, sT0, -wadd))
    a("s_lshl_b32 s%d, s%d, 17" % (sKV, sT0))
    rk = int(opt("rk", 1))
    if rk == 0:
        a("s_mul_i32 s%d, s%d, 5\ns_lshr_b32 s%d, s%d, 4\ns_add_u32 s%d, s%d, s%d\ns_and_b32 s%d, s%d, 15" % (sRot, sT0, sT1, sT0, sRot, sRot, sT1, sRot, sRot))
    elif rk == 1:
        a("s_and_b32 s%d, s%d, 15" % (sRot, sT0))
    elif rk == 2:
        a("s_lshl_b32 s%d, s%d, 3\ns_add_u32 s%d, s%d, s%d\ns_and_b32 s%d, s%d, 15" % (sRot, sW, sRot, sRot, sG, sRot, sRot))
    elif rk == 3:
        a("s_and_b32 s%d, s%d, 1\ns_lshl_b32 s%d, s%d, 1\ns_add_u32 s%d, s%d, s%d" % (sT1, sW, sRot, sG, sRot, sRot, sT1))
    elif rk == 4:
        a("s_and_b32 s%d, s%d, 1\ns_lshl_b32 s%d, s%d, 1\ns_add_u32 s%d, s%d, s%d\ns_add_u32 s%d, s%d, s%d\ns_and_b32 s%d, s%d, 15" % (sT1, sW, sRot, sG, sRot, sRot, sT1, sRot, sRot, sB, sRot, sRot))
    elif rk == 5:
        a("s_lshl_b32 s%d, s%d, 3\ns_add_u32 s%d, s%d, s%d\ns_and_b32 s%d, s%d, 15" % (sRot, sW, sRot, sRot, sB, sRot, sRot))
    elif rk == 6:
        a("s_lshl_b32 s%d, s%d, 3\ns_add_u32 s%d, s%d, s%d\ns_mul_i32 s%d, s%d, 3\ns_add_u32 s%d, s%d, s%d\ns_and_b32 s%d, s%d, 15" % (sRot, sW, sRot, sRot, sG, sT1, sB, sRot, sRot, sT1, sRot, sRot))
    elif rk == 7:
        a("s_and_b32 s%d, s%d, 1\ns_lshl_b32 s%d, s%d, 1\ns_lshl_b32 s%d, s%d, 2\ns_add_u32 s%d, s%d, s%d\ns_lshr_b32 s%d, s%d, 2\ns_add_u32 s%d, s%d, s%d\ns_and_b32 s%d, s%d, 15" % (sT1, sW, sT1, sT1, sRot, sG, sRot, sRot, sT1, sT1, sG, sRot, sRot, sT1, sRot, sRot))
    elif rk == 8:
        a("s_lshr_b32 s%d, s%d, 4\ns_xor_b32 s%d, s%d, s%d\ns_and_b32 s%d, s%d, 15" % (sT1, sT0, sRot, sT0, sT1, sRot, sRot))
    elif rk == 9:
        a("s_andn2_b32 s%d, 15, s%d" % (sRot, sT0))
    elif rk == 10:
        a("s_mul_i32 s%d, s%d, 3\ns_and_b32 s%d, s%d, 15" % (sRot, sT0, sRot, sRot))

def row_off(row):
    if 16 <= row < 24:
        return "s_add_u32 s%d, s%d, %d\ns_and_b32 s%d, s%d, 7\ns_lshl_b32 s%d, s%d, 14\ns_add_u32 s%d, s%d, s%d" % (sOff, sSet, row - 16, sOff, sOff, sOff, sOff, sOff, sOff, sBuf)
    r = row if row < 16 else row - 24
    return "s_add_u32 s%d, s%d, %d\ns_and_b32 s%d, s%d, 15\ns_lshl_b32 s%d, s%d, 13\ns_add_u32 s%d, s%d, s%d" % (sOff, sRot, r, sOff, sOff, sOff, sOff, sOff, sOff, sKV)

def issue_pieces(a, lst):
    cur = None
    out = []
    for (row, p) in lst:
        if row != cur: out.append(row_off(row)); cur = row
        isA = 16 <= row < 24
        out += kv_piece(sMK, (row % 3) * SETSZ + (p >> 3) * BLK, p & 7, p >> 3, sX if isA else sK, sXI if isA else sV)
    emit(a, out)

def gen_main(a, dbg=False):
    SCH = make_sched(int(opt("cap", 14)), 48, boost=int(opt("boost", 3)), alt=int(opt("alt", 0)), cap3=int(opt("cap3", 0)))
    p3_0 = [i for i, x in enumerate(SCH) if x["cons"] == 23][0] + 1
    while len(SCH) - p3_0 < 18:
        SCH.insert(p3_0, dict(cons=None, iss={0: [], 1: []}))
    NS = len(SCH)
    cstep = {x["cons"]: i for i, x in enumerate(SCH) if x["cons"] is not None}
    print("steps", NS, "p3_0", p3_0)
    ASELF = "noself" not in ARGS
    for st in SCH:
        st["aiss"] = None
        c = st["cons"]
        if ASELF and c is not None and 16 <= c < 24 and len(st["iss"][0]) == 16 and st["iss"][0][0][1] == 0:
            st["aiss"] = st["iss"][0][0][0]; st["iss"][0] = []
    B2 = "nob2" not in ARGS
    NF = int(opt("nf", 24))
    OLDR = "oldR" in ARGS
    LATEB = NF < 0
    def hasB(s_): return B2 and (s_ < 16 or p3_0 <= s_ < p3_0 + 18)

    kernel_begin(a, KNAME)
    a("s_cmp_lt_u32 s2, 256\ns_cbranch_scc1 L_start\ns_endpgm")
    a.label("L_start")
    a("s_load_dwordx16 s[%d:%d], s[0:1], 0" % (sPtr, sPtr + 15))
    a("s_load_dwordx8 s[%d:%d], s[0:1], 64" % (sPtr + 16, sPtr + 23))
    a("s_load_dwordx2 s[%d:%d], s[0:1], 96" % (sPtr + 24, sPtr + 25))
    a("s_getpc_b64 s[%d:%d]" % (sRet, sRet + 1))
    a.label("L_pc")
    a("s_sub_u32 s%d, s%d, L_pc-%s\ns_subb_u32 s%d, s%d, 0" % (sRet, sRet, KNAME, sRet + 1, sRet + 1))
    a("s_lshr_b32 s%d, s2, 3\ns_lshl_b32 s%d, s%d, 4\ns_sub_u32 s%d, s%d, 448" % (sT0, sT0, sT0, sT0, sT0))
    a("v_add_u32 v30, s%d, v0\nv_lshlrev_b32 v30, 7, v30" % sT0)
    a("v_and_b32 v31, 0x1f0, v0")
    a("v_cmp_eq_u32 s[%d:%d], 0x1c0, v31" % (sRet2, sRet2 + 1) if False else "v_cmp_eq_u32 vcc, 0x1c0, v31")
    a("s_mov_b64 s[%d:%d], vcc" % (sRet2, sRet2 + 1))
    a("v_cmp_gt_u32 vcc, L_code_end-%s, v30" % KNAME)
    a("s_and_b64 exec, vcc, s[%d:%d]" % (sRet2, sRet2 + 1))
    a("s_cbranch_execz L_nopf")
    a("global_load_dword v31, v30, s[%d:%d]" % (sRet, sRet + 1))
    a.label("L_nopf")
    a("s_mov_b64 exec, -1")
    a("v_lshrrev_b32 v14, 6, v0\ns_nop 0\nv_readfirstlane_b32 s%d, v14" % sWave)
    a("v_and_b32 v0, 63, v0")
    a("s_lshr_b32 s%d, s2, 3\ns_and_b32 s%d, s2, 7\ns_and_b32 s%d, s%d, 3" % (sB, sG, sW, sWave))
    a("v_lshrrev_b32 v14, 4, v0\nv_and_b32 v15, 15, v0")
    a("v_lshlrev_b32 v%d, 4, v0" % vLane16)
    a("v_bfe_u32 v16, v0, 2, 3")
    a("v_mul_u32_u24 v%d, %d, v16" % (vT, PIECE))
    a("v_lshrrev_b32 v16, 5, v0\nv_lshlrev_b32 v16, 9, v16")
    a("v_add_u32 v%d, v%d, v16" % (vT, vT))
    a("v_and_b32 v16, 3, v0\nv_lshlrev_b32 v16, 3, v16")
    a("v_add_u32 v%d, v%d, v16" % (vT, vT))
    a("v_lshrrev_b32 v16, 3, v15\nv_and_b32 v17, 3, v15\nv_lshl_add_u32 v17, v16, 2, v17")
    a("v_mul_u32_u24 v%d, %d, v17" % (vK, PIECE))
    a("v_bfe_u32 v17, v15, 2, 1\nv_xor_b32 v17, v17, v16\nv_lshlrev_b32 v17, 8, v17")
    a("v_add_u32 v%d, v%d, v17" % (vK, vK))
    a("v_lshl_add_u32 v%d, v14, 4, v%d" % (vK, vK))
    a("v_and_b32 v16, 6, v15\nv_xor_b32 v16, v16, v14\nv_lshlrev_b32 v16, 4, v16\nv_lshl_add_u32 v%d, v15, 7, v16" % vXr)
    a("v_lshrrev_b32 v16, 3, v0\nv_and_b32 v17, 6, v16\nv_and_b32 v18, 7, v0\nv_xor_b32 v17, v17, v18\nv_lshlrev_b32 v17, 4, v17\nv_lshl_add_u32 v%d, v16, 10, v17" % vgX)
    a("v_and_b32 v16, 1, v14\nv_lshrrev_b32 v17, 1, v14\nv_lshlrev_b32 v18, 4, v15")
    a("v_lshlrev_b32 v19, 12, v17\nv_add_u32 v19, v19, v18")
    a("v_lshl_add_u32 v%d, v16, 10, v19" % vgK0)
    a("v_lshlrev_b32 v20, 10, v16\nv_sub_u32 v20, 2048, v20\nv_add_u32 v%d, v19, v20" % vgK1)
    a("v_lshlrev_b32 v19, 4, v16\nv_lshl_add_u32 v19, v17, 3, v19")
    a("v_lshl_add_u32 v%d, v19, 8, v18" % vgV)
    a("v_lshl_add_u32 v%d, v19, 10, v18" % vgWo)
    a("v_lshlrev_b32 v19, 2, v16\nv_lshl_add_u32 v19, v17, 4, v19")
    a("v_lshl_add_u32 v19, v19, 13, v18")
    for j in range(8):
        a("v_add_u32 v%d, %d, v19" % (VWQ + j, ((j & 3) + 8 * (j >> 2)) * 8192 - (j & 3) * PIECE))
    a("s_mov_b32 s%d, 0x%x" % (sC, fbits(SCALE)))
    a("s_add_u32 s%d, s%d, s%d\ns_and_b32 s%d, s%d, 7" % (sH0, sB, sG, sH0, sH0))
    a("s_bfe_u32 s%d, s%d, 0x10003\ns_xor_b32 s%d, s%d, 1" % (sSp, sB, sSp + 1, sSp))
    a("s_mul_i32 s%d, s%d, 49152" % (sXB, sB))
    a("s_lshl_b32 s%d, s%d, 2\ns_add_u32 s%d, s%d, s%d" % (sT0, sG, sT0, sT0, sW))
    a("s_lshl_b32 s%d, s%d, 8" % (sWqB, sT0))
    a("s_and_b32 s%d, s%d, 1\ns_mul_i32 s%d, s%d, %d" % (sT1, sW, sT1, sT1, 2 * BLK))
    a("s_add_u32 s%d, s%d, %d\ns_add_u32 s%d, s%d, %d" % (sMW, sT1, WR, sMK, sT1, KVB))
    a("s_waitcnt lgkmcnt(0)")
    pA = dict(x=0, k=2, v=4, wq=6, wo=8); pB = dict(x=10, k=12, v=14, wq=16, wo=18)
    a("s_cmp_ge_u32 s%d, 4" % sWave)
    for nm, q, sz in (("wq", sWQ, SZ["Awq"]), ("x", sX, SZ["Ax"]), ("wo", sWO, SZ["Awo"])):
        a("s_cselect_b32 s%d, s%d, s%d" % (q, sPtr + pA[nm], sPtr + pB[nm]))
        a("s_cselect_b32 s%d, s%d, s%d" % (q + 1, sPtr + pA[nm] + 1, sPtr + pB[nm] + 1))
        a("s_mov_b32 s%d, 0x%x\ns_mov_b32 s%d, 0x20000" % (q + 2, sz, q + 3))
    for q, k_, sz in ((sK, 12, SZ["Bk"]), (sV, 14, SZ["Bv"]), (sWS, 24, SZ["ws"]), (sXI, 4, SZ["Av"])):
        a("s_mov_b32 s%d, s%d\ns_mov_b32 s%d, s%d\ns_mov_b32 s%d, 0x%x\ns_mov_b32 s%d, 0x20000" % (q, sPtr + k_, q + 1, sPtr + k_ + 1, q + 2, sz, q + 3))
    stamp(a, 0)
    a("s_cmp_ge_u32 s%d, 4\ns_cbranch_scc1 L_A" % sWave)
    a("s_cmp_ge_u32 s%d, 2\ns_cbranch_scc1 L_G1" % sWave)

    a("s_mul_i32 s%d, s%d, %d\ns_add_u32 s%d, s%d, s%d" % (sT0, sW, 3 * 8192, sXB, sXB, sT0))
    a("s_mul_i32 s%d, s%d, 3072" % (sN, sW))
    def xchunk(add, buf):
        out = ["s_add_u32 s%d, s%d, %d\ns_and_b32 s%d, s%d, 7" % (sChN, sCh, add, sChN, sChN)]
        for p in range(3): xp(out, sChN, p, sX, buf * XC)
        return out
    a("s_mov_b32 s%d, s%d" % (sCh, sH0))
    a("s_mov_b32 s%d, s%d\ns_add_u32 s%d, s%d, %d\ns_add_u32 s%d, s%d, %d" % (sSl0, sMW, sSl1, sMK, 2 * SETSZ, sSl2, sMW, BLK))
    for x in wq_off(sCh, 0, 0): a(x)
    d0 = wqT(sSl0, 0)
    emit(a, d0)
    for x in xchunk(0, 0): a(x)
    zero(a, ACC, 96)
    for x in wq_off(sCh, 0, 1): a(x)
    emit(a, wqT(sSl1, 0))
    for x in xchunk(1, 1): a(x)
    for x in wq_off(sCh, 1, 0): a(x)
    emit(a, wqT(sSl2, 0))
    for x in xchunk(2, 2): a(x)
    def fset(k): return (F, P) if k == 0 else (QF, QF + 32)
    def preads(k, bufc):
        fa, fb = fset(k)
        return ["ds_read_b128 %s, v%d offset:%d" % (v4(fb + qt * 4), vXa, bufc + qt * 2048) for qt in range(3)] + tr_reads(0, range(8), fa, vTc)
    for x in xaddr(0): a(x)
    a("v_add_u32 v%d, s%d, v%d" % (vTc, sSl0, vT))
    a("s_waitcnt vmcnt(22)\ns_barrier")
    for r in preads(0, 0): a(r)
    for x in xaddr(1): a(x)
    a("v_add_u32 v%d, s%d, v%d" % (vTc, sSl1, vT))
    a("s_waitcnt vmcnt(14)")
    vq = ["w0"] * 8 + ["x0"] * 3 + ["w1"] * 8 + ["x1"] * 3 + ["w2"] * 8 + ["x2"] * 3
    def vneed(tags):
        idx = max(i for i, t in enumerate(vq) if t in tags)
        return len(vq) - 1 - idx
    SL = (sSl0, sSl1, sSl2)
    for n in range(16):
        issue = []
        if n + 3 < 16:
            issue += wq_off(sCh, (n + 3) >> 1, (n + 3) & 1) + wqT(SL[n % 3], 0); vq += ["w%d" % (n + 3)] * 8
        if n & 1 and (n >> 1) + 3 < 8:
            c_ = (n >> 1) + 3
            issue += xchunk(c_, c_ & 3); vq += ["x%d" % c_] * 3
        a("s_waitcnt lgkmcnt(0)")
        if n & 1: a("s_barrier")
        fa, fb = fset(n & 1)
        main = [mf(acc(t, qt), fa + t * 4, fb + qt * 4, acc(t, qt)) for t in range(8) for qt in range(3)]
        tw = xaddr(n & 1) + ["v_add_u32 v%d, s%d, v%d" % (vTc, SL[(n + 2) % 3], vT)] if n < 14 else []
        weave(a, main, (preads((n + 1) & 1, (((n + 1) >> 1) & 3) * XC) if n < 15 else [], 0, 17), (issue, 0, 24), (tw, 18, 24))
        if n < 14:
            need = ["w%d" % (n + 2)]
            if not n & 1: need.append("x%d" % ((n >> 1) + 1))
            a("s_waitcnt vmcnt(%d)" % vneed(need))
    stamp(a, 1)
    q_final_T(a)
    if dbg: debug_dump(a, 0, True)
    b_kv_params(a)
    a("s_lshl_b32 s%d, s2, 17\ns_lshl_b32 s%d, s%d, 13\ns_add_u32 s%d, s%d, s%d" % (sBuf, sT0, sW, sBuf, sBuf, sT0))
    def a_rot(): a("s_mul_i32 s%d, s2, 3\ns_add_u32 s%d, s%d, s%d\ns_and_b32 s%d, s%d, 7" % (sSet, sSet, sSet, sB, sSet, sSet))
    a_rot()
    a("s_mov_b32 s%d, s%d\ns_mov_b32 s%d, s%d\ns_mov_b32 s%d, 0x%x" % (sX, sPtr + 2, sX + 1, sPtr + 3, sX + 2, SZ["Ak"]))
    a("s_sub_u32 s%d, s%d, %d" % (sT0, sMK, 2 * BLK))
    a("v_add_u32 v%d, s%d, v%d\nv_add_u32 v%d, s%d, v%d" % (vT, sT0, vT, vK, sT0, vK))
    a("s_lshl_b32 s%d, s%d, 19\ns_lshl_b32 s%d, s%d, 9\ns_add_u32 s%d, s%d, s%d" % (sWoB, sG, sT1, sW, sWoB, sWoB, sT1))
    a("s_and_b32 s%d, s%d, 7" % (sH0, sB))
    stamp(a, 2)
    att_init(a)
    def setdelta(row):
        d = SETSZ if row % 3 < 2 else -2 * SETSZ
        a("v_add_u32 v%d, %d, v%d\nv_add_u32 v%d, %d, v%d" % (vT, d, vT, vK, d, vK))
    def wo_off(add, hh, kbase=0):
        return ["s_add_u32 s%d, s%d, %d\ns_and_b32 s%d, s%d, 7" % (sOff, sH0, add, sOff, sOff),
                "s_lshl_b32 s%d, s%d, 15\ns_add_u32 s%d, s%d, s%d" % (sOff, sOff, sOff, sOff, sWoB)] + (["s_add_u32 s%d, s%d, %d" % (sOff, sOff, hh * 256 + kbase)] if hh or kbase else [])
    for s_ in range(p3_0):
        st = SCH[s_]
        a("s_barrier")
        sbst(a, s_)
        fk = 1 + 4 * (s_ - FS) if FS >= 0 and FS <= s_ <= FS + 1 else None
        if fk: stamp(a, fk, True)
        if FS >= 0 and s_ == FS + 2: stamp(a, 9, True)
        n_iss = len(st["iss"][0])
        c = st["cons"]
        if c is not None and c < 16:
            a("s_call_b64 s[%d:%d], L_tile" % (sRet2, sRet2 + 1))
            setdelta(c)
        if fk: stamp(a, fk + 1, True)
        if hasB(s_): a("s_barrier")
        issue_pieces(a, st["iss"][0])
        if fk: stamp(a, fk + 2, True)
        if c == 15: stamp(a, 3)
        s15 = max(cstep[15], 16)
        if s_ == cstep[15] + 1:
            o_final(a)
            if dbg: debug_dump(a, 1, True)
        if s_ == s15 + 2:
            a("s_mul_i32 s%d, s%d, 12288" % (sT0, sW))
            publish(a, sT0)
            a("s_waitcnt lgkmcnt(0)")
            zero(a, ACC, 96)
        if s_ == s15 + 3:
            zero(a, ACC + 96, 96)
            a("v_subrev_u32 v%d, s%d, v%d" % (vTc, sMK, vT))
            a("s_sub_u32 s%d, s%d, %d" % (sT0, sMW, SETSZ - 2 * BLK))
            a("v_add_u32 v%d, s%d, v%d" % (vTc, sT0, vTc))
        if s_ == p3_0 - 2:
            emit(a, wo_off(0, 0) + woT(sMW, 0) + wo_off(0, 1) + woT(sMW, BLK)); n_iss += 16
        if dbg and s_ == cstep[15] + 1: n_iss = 0
        a("s_waitcnt vmcnt(%d)" % n_iss)
        if fk: stamp(a, fk + 3, True)
    stamp(a, 4)
    a("s_mov_b32 s%d, 0" % sCnt)
    a.label("L_G0_o")
    for hh in range(2):
        a("s_barrier")
        if hh == 0:
            a("s_add_u32 s%d, s%d, s%d\ns_and_b32 s%d, s%d, 7\ns_mul_i32 s%d, s%d, 3072" % (sT0, sH0, sCnt, sT0, sT0, sT0, sT0))
            a("v_add_u32 v%d, s%d, v%d" % (vXa, sT0, vLane16))
        def iss():
            def body():
                a("s_add_u32 s%d, s%d, s%d\ns_add_u32 s%d, s%d, 1\ns_and_b32 s%d, s%d, 7" % (sOff, sH0, sCnt, sOff, sOff, sOff, sOff))
                a("s_lshl_b32 s%d, s%d, 15\ns_add_u32 s%d, s%d, s%d" % (sOff, sOff, sOff, sOff, sWoB))
                if hh: a("s_add_u32 s%d, s%d, 256" % (sOff, sOff))
                emit(a, woT(sMW, hh * BLK))
            fs0(1)
            cond(a, sCnt, 7, body, eq=False)
            fs0(2)
            if B2 and not LATEB: a("s_barrier")
        def fs0(k):
            F3 = int(opt("f3", -1))
            if F3 >= 0: cond(a, sCnt, F3 // 2, lambda: stamp(a, 1 + 4 * hh + k, True))
        fs0(0)
        projT(a, (0, 1024, 2048), hh * BLK, vTc, iss, lambda t, qt: acc(t, qt) + 96 * hh, AF0, BF0)
        if B2 and LATEB: a("s_barrier")
        if hh == 0: cond(a, sCnt, 7, lambda: a("s_waitcnt vmcnt(0)"))
        a("s_waitcnt vmcnt(8)")
    a("s_add_u32 s%d, s%d, 1\ns_cmp_lt_u32 s%d, 8\ns_cbranch_scc1 L_G0_o" % (sCnt, sCnt, sCnt))
    a("s_nop 7")
    for s in range(4):
        for qt in range(3):
            d = AF0 + (s * 3 + qt) * 4
            for h2 in range(2):
                src = acc(2 * s + h2, qt) + 96
                a("v_cvt_pk_bf16_f32 v%d, v%d, v%d" % (d + 2 * h2, src, src + 1))
                a("v_cvt_pk_bf16_f32 v%d, v%d, v%d" % (d + 2 * h2 + 1, src + 2, src + 3))
    def tail_params(cbexpr):
        a(cbexpr)
        a("s_lshl_b32 s%d, s%d, 19\ns_lshl_b32 s%d, s%d, 8\ns_add_u32 s%d, s%d, s%d\ns_add_u32 s%d, s%d, %d" % (sWoB, sG, sT1, sChN, sWoB, sWoB, sT1, sWoB, sWoB, 256 * 1024))
        a("s_mul_i32 s%d, s%d, %d\ns_add_u32 s%d, s%d, %d" % (sMW, sW, BLK, sMW, sMW, KVB))
    tail_params("s_lshl_b32 s%d, s%d, 1" % (sChN, sW))
    TS = (1, 2, 0)
    def tail_blk(j): return wo_off(j, 0) + woT(sMW, TS[j % 3] * SETSZ)
    for s_ in range(p3_0 + 16, NS):
        a("s_barrier")
        if s_ == p3_0 + 16:
            a("s_mul_i32 s%d, s%d, 12288\ns_add_u32 s%d, s%d, %d" % (sT0, sW, sT0, sT0, HO))
            publish(a, sT0, AF0)
            a("s_waitcnt lgkmcnt(0)")
        for j in range(2):
            if s_ == max(cstep[37 + j] + 1, p3_0 + 16): emit(a, tail_blk(j))
        if hasB(s_): a("s_barrier")
    stamp(a, 5)
    def p3_addr():
        a("v_bfe_u32 v%d, v0, 2, 3" % T)
        a("v_mul_u32_u24 v%d, %d, v%d" % (vgK0, PIECE, T))
        a("v_lshrrev_b32 v%d, 5, v0\nv_lshl_add_u32 v%d, v%d, 9, v%d" % (T, vgK0, T, vgK0))
        a("v_and_b32 v%d, 3, v0\nv_lshl_add_u32 v%d, v%d, 3, v%d" % (T, vgK0, T, vgK0))
        a("v_add_u32 v%d, s%d, v%d" % (vgK0, sMW, vgK0))
        a("v_add_u32 v%d, %d, v%d" % (vgK1, 2 * SETSZ, vgK0))
    p3_addr()
    a.label("L_P3")
    def oad(j):
        return ["s_add_u32 s%d, s%d, %d\ns_and_b32 s%d, s%d, 7" % (sT0, sH0, j, sT0, sT0), "s_mul_i32 s%d, s%d, 3072" % (sT0, sT0),
                "v_add_u32 v%d, s%d, v%d" % (vXa, sT0, vLane16)]
    def treads(j):
        fa, fb = fset(j & 1)
        se = TS[j % 3]
        return ["ds_read_b128 %s, v%d offset:%d" % (v4(fb + qt * 4), vXa, qt * 1024) for qt in range(3)] + tr_reads(SETSZ * (se & 1), range(8), fa, vgK0 if se < 2 else vgK1)
    for x in oad(0): a(x)
    a("s_waitcnt vmcnt(8) lgkmcnt(0)\ns_barrier")
    stamp(a, 6)
    for r in treads(0): a(r)
    for x in oad(1): a(x)
    emit(a, tail_blk(2))
    a("s_waitcnt vmcnt(8)")
    for j in range(8):
        issue = tail_blk(j + 3) if j + 3 < 8 else []
        a("s_waitcnt lgkmcnt(0)")
        fa, fb = fset(j & 1)
        main = [mf(acc(t, qt), fa + t * 4, fb + qt * 4, acc(t, qt)) for t in range(8) for qt in range(3)]
        weave(a, main, (treads(j + 1) if j < 7 else [], 0, 17), (issue, 0, 24), (oad(j + 2) if j < 6 else [], 18, 24))
        if j < 6: a("s_waitcnt vmcnt(%d)" % (8 if issue else 0))
        if j == int(opt("abar", -1)): a("s_barrier")
    stamp(a, 7)
    store_partial(a, 1, sChN)
    own_write(a, 1)
    tail(a, True)

    a.label("L_G1")
    b_kv_params(a, -2)
    if "notlb" not in ARGS:
        a("v_mov_b32 v26, 0\ns_mov_b64 exec, 1")
        a("buffer_load_dword v27, v26, %s, s%d offen nt" % (srd(sK), sKV))
        a("buffer_load_dword v27, v26, %s, s%d offen nt" % (srd(sV), sKV))
        a("s_lshl_b32 s%d, s2, 17" % sT0)
        a("buffer_load_dword v27, v26, %s, s%d offen nt" % (srd(sXI), sT0))
        a("s_mov_b32 s%d, s%d\ns_mov_b32 s%d, s%d" % (sXI, sPtr + 2, sXI + 1, sPtr + 3))
        a("buffer_load_dword v27, v26, %s, s%d offen nt" % (srd(sXI), sT0))
        a("s_lshl_b32 s%d, s%d, 19" % (sT0, sG))
        a("buffer_load_dword v27, v26, %s, s%d offen" % (srd(sWO), sT0))
        a("s_mov_b64 exec, -1")
    rows_at = [int(c) for c in opt("pf", "579")]
    for i_ in range(9):
        a("s_barrier")
        for r_ in range(3):
            if rows_at[r_] == i_: issue_pieces(a, [(r_, p) for p in range(16)])
        if i_ == 0:
            a("s_waitcnt vmcnt(0)")
            zero(a, ACC, 96)
    assert rows_at[2] >= 7
    REV = "norev" not in ARGS
    a("s_add_u32 s%d, s%d, %d\ns_and_b32 s%d, s%d, 7" % (sCh, sH0, 7 if REV else 6, sCh, sCh))
    for k in range(2):
        for x in wq_off(sCh, 0, k): a(x)
        emit(a, wqT(sMW, k * BLK))
    late_rows = [r_ for r_ in range(3) if rows_at[r_] == 9]
    a("s_waitcnt vmcnt(32)")
    assert len(late_rows) <= 1
    for r_ in late_rows: issue_pieces(a, [(r_, p) for p in range(16)])
    a("s_and_b32 s%d, s%d, 1\ns_mul_i32 s%d, s%d, %d\ns_add_u32 s%d, s%d, s%d" % (sT1, sW, sT0, sT1, 3 * 8192, sXB, sXB, sT0))
    a("s_mul_i32 s%d, s%d, 3072" % (sWoB, sT1))
    a("v_add_u32 v%d, s%d, v%d" % (vTc, sMW, vT))
    a("s_mov_b32 s%d, %d\ns_mov_b32 s%d, 0" % (sBuf, (3 if REV else 2) * XC, sCnt))
    assert 0 not in late_rows
    a("s_waitcnt vmcnt(%d)" % (8 + 16 * len(late_rows)))
    def qloop(lab, regpath):
        a.label(lab)
        inc = 7 if (REV and not regpath) else 1
        for par in range(2):
            a("s_barrier")
            def fst(k):
                if FS >= 0: cond(a, sCnt, FS // 2, lambda: stamp(a, 1 + 4 * par + k, True))
            fst(0)
            for x in xaddr(par, sBuf): a(x)
            xlate = "xlate" in ARGS
            def xs():
                a("s_xor_b32 s%d, s%d, %d\ns_add_u32 s%d, s%d, s%d" % (sN, sBuf, XC if regpath else (2 * XC) ^ (3 * XC), sN, sN, sWoB))
                out = ["s_add_u32 s%d, s%d, %d\ns_and_b32 s%d, s%d, 7" % (sChN, sCh, inc, sChN, sChN)]
                if regpath:
                    xp(out, sChN, 0, sX, 0, XNT)
                    for x in out: a(x)
                    o2 = []; xp(o2, sChN, 4, sX, 0, XNT)
                    cond_lt(a, sW, 2, lambda: a(o2[0]))
                else:
                    for p in range(3): xp(out, sChN, p, sX, 0, XNT)
                    for x in out: a(x)
            def xcond():
                l = a.newlabel("L_nx")
                a("s_sub_u32 s%d, s%d, 1\ns_cmp_lt_u32 s%d, 6\ns_cbranch_scc0 %s" % (sT0, sCnt, sT0, l))
                xs()
                a.label(l)
            def iss():
                if par == 0 and not xlate: xcond()
                def body():
                    for x in wq_off(sCh, inc, par): a(x)
                    emit(a, wqR(LB[par]) if regpath else wqT(sMW, par * BLK))
                fst(1)
                cond(a, sCnt, 7, body, eq=False)
                fst(2)
                if not LATEB: barB()
            def barB():
                if B2: a("s_barrier")
                if par == 0 and xlate: xcond()
            if regpath and OLDR: projR(a, (0, 2048, 4096), LB[par], iss)
            elif regpath: projR2(a, (0, 2048, 4096), QF, (232, 236, 240), vXa, iss, NF, barB)
            else:
                projT(a, (0, 2048, 4096), par * BLK, vTc, iss)
                if LATEB: barB()
            if par == 0 and xlate:
                l1_ = a.newlabel("L_v"); l2_ = a.newlabel("L_v")
                a("s_sub_u32 s%d, s%d, 1\ns_cmp_lt_u32 s%d, 6\ns_cbranch_scc0 %s" % (sT0, sCnt, sT0, l1_))
                a("s_waitcnt vmcnt(%d)\ns_branch %s" % (9 if regpath else 11, l2_))
                a.label(l1_)
                cond(a, sCnt, 7, lambda: a("s_waitcnt vmcnt(0)"))
                a("s_waitcnt vmcnt(8)")
                a.label(l2_)
            else:
                if par == 0: cond(a, sCnt, 7, lambda: a("s_waitcnt vmcnt(0)"))
                a("s_waitcnt vmcnt(8)")
            if regpath and not OLDR:
                if par == 0: perm_all(a, LB[1], QF)
                else: cond(a, sCnt, 7, lambda: perm_all(a, LB[0], QF), eq=False)
            fst(3)
        a("s_add_u32 s%d, s%d, %d\ns_and_b32 s%d, s%d, 7" % (sCh, sCh, inc, sCh, sCh))
        a("s_xor_b32 s%d, s%d, %d" % (sBuf, sBuf, XC if regpath else (2 * XC) ^ (3 * XC)))
        a("s_add_u32 s%d, s%d, 1\ns_cmp_lt_u32 s%d, 8\ns_cbranch_scc1 %s" % (sCnt, sCnt, sCnt, lab))
    qloop("L_G1_q", False)
    stamp(a, 1)
    assert not SCH[16]["iss"][1] and not SCH[17]["iss"][1] and not SCH[18]["iss"][1]
    a("s_barrier")
    q_final_T(a)
    if dbg: debug_dump(a, 0, True)
    a("s_barrier")
    att_init(a)
    def chk():
        lp = a.newlabel("L_st"); le = a.newlabel("L_se")
        dbg_srd(a)
        a("s_lshl_b32 s%d, s%d, 3" % (sT1, sB))
        a("v_mov_b32 v%d, 0\ns_mov_b32 s%d, 200000" % (T + 2, sT2))
        a.label(lp)
        a("s_sub_u32 s%d, s%d, 1\ns_cbranch_scc1 %s" % (sT2, sT2, le))
        a("buffer_load_dword v%d, v%d, %s, s%d offen sc1" % (T + 3, T + 2, srd(sXI), sT1))
        a("s_waitcnt vmcnt(0)")
        a("v_readfirstlane_b32 s%d, v%d" % (sT0, T + 3))
        a("s_and_b32 s%d, s%d, 7\ns_cbranch_scc0 %s" % (sT0, sT0, le))
        a("s_sleep 8\ns_branch %s" % lp)
        a.label(le)
    cond(a, sW, 2, chk)
    b_kv_params(a)
    a("s_sub_u32 s%d, s%d, %d" % (sT0, sMK, 2 * BLK))
    a("v_add_u32 v%d, s%d, v%d\nv_add_u32 v%d, s%d, v%d" % (vT, sT0, vT, vK, sT0, vK))
    a("s_and_b32 s%d, s%d, 7" % (sH0, sB))
    tail_params("s_lshl_b32 s%d, s%d, 1\ns_sub_u32 s%d, s%d, 3" % (sChN, sW, sChN, sChN))
    stamp(a, 2)
    for s_ in range(18, NS):
        st = SCH[s_]
        a("s_barrier")
        sbst(a, s_)
        F3 = int(opt("f3", -1))
        fk = 1 + 4 * (s_ - p3_0 - F3) if F3 >= 0 and F3 <= s_ - p3_0 <= F3 + 1 else None
        if fk: stamp(a, fk, True)
        if F3 >= 0 and s_ == p3_0 + F3 + 2: stamp(a, 9, True)
        c = st["cons"]
        n_iss = len(st["iss"][1])
        for j in range(2):
            if s_ == max(cstep[37 + j] + 1, p3_0 + 16): emit(a, tail_blk(j)); n_iss += 8
        if c is not None and c >= 24:
            if c == 24: stamp(a, 4)
            if c == 39:
                assert not st["iss"][1]
                p3_addr()
            a("s_call_b64 s[%d:%d], L_tile" % (sRet2, sRet2 + 1))
            if c < 39: setdelta(c)
        if fk: stamp(a, fk + 1, True)
        if hasB(s_): a("s_barrier")
        if fk: stamp(a, fk + 2, True)
        issue_pieces(a, st["iss"][1])
        if fk: stamp(a, fk + 3, True)
        if s_ < cstep[39]: a("s_waitcnt vmcnt(%d)" % n_iss)
    stamp(a, 5)
    o_final(a)
    if dbg: debug_dump(a, 1, True)
    a("s_and_b32 s%d, s%d, 1\ns_mul_i32 s%d, s%d, 12288\ns_add_u32 s%d, s%d, %d" % (sT0, sW, sT0, sT0, sT1, sT0, HO))
    a("v_add_u32 v%d, s%d, v%d" % (vTmpB, sT1, vLane16))
    HB_ = F
    for i in range(12): a("ds_read_b128 %s, v%d offset:%d" % (v4(HB_ + 4 * i), vTmpB, i * 1024))
    publish(a, sT0)
    for s in range(4):
        a("s_waitcnt lgkmcnt(%d)" % min(15, 12 + 9 - 3 * s))
        for qt in range(3):
            d = HB_ + (s * 3 + qt) * 4
            for h2 in range(2):
                dst = acc(2 * s + h2, qt)
                for e in range(2):
                    a("v_lshlrev_b32 v%d, 16, v%d" % (dst + 2 * e, d + 2 * h2 + e))
                    a("v_and_b32 v%d, 0xffff0000, v%d" % (dst + 2 * e + 1, d + 2 * h2 + e))
    a("s_branch L_P3")

    a.label("L_A")
    def g0():
        a("v_mov_b32 v16, %d\nv_mov_b32 v18, 0\nv_mov_b32 v19, 0\nv_mov_b32 v21, 0" % SYNC)
        a("s_lshl_b32 s%d, s2, 7\ns_add_u32 s%d, s%d, 0x%x" % (sT1, sT1, sT1, GO))
        a("buffer_load_dword v20, v18, %s, s%d offen sc1" % (srd(sWS), sT1))
        a("buffer_load_dword v28, v18, %s, s%d offen offset:4 sc1" % (srd(sWS), sT1))
        a("v_mov_b32 v26, 0\nv_mov_b32 v27, 0\nv_mov_b32 v29, 0")
        dbg_srd(a)
        a("s_lshl_b32 s%d, s%d, 3" % (sT1, sB))
        a("v_mov_b32 v22, 1")
        a("s_waitcnt vmcnt(0)")
        a("ds_write_b128 v16, v[18:21]\nds_write_b128 v16, v[26:29] offset:16")
        a("s_mov_b64 exec, 1")
        a("buffer_atomic_add v22, v18, %s, s%d offen sc1" % (srd(sXI), sT1))
        a("s_mov_b64 exec, -1")
        a("s_waitcnt lgkmcnt(0)")
    cond(a, sW, 0, g0)
    a("s_mov_b32 s%d, 0x05040100\ns_mov_b32 s%d, 0x07060302" % (sSelLo, sSelHi))
    a("v_lshrrev_b32 v24, 4, v0\nv_and_b32 v25, 15, v0\nv_lshlrev_b32 v25, 4, v25")
    a("v_lshl_add_u32 v%d, v24, 16, v25\nv_lshl_add_u32 v%d, v24, 12, v25" % (vgWq, vgWo))
    a("s_lshl_b32 s%d, s%d, 13\ns_add_u32 s%d, s%d, s%d" % (sT0, sW, sXB, sXB, sT0))
    a("s_lshl_b32 s%d, s%d, 10" % (sWoB, sW))
    a("s_mov_b32 s%d, s%d" % (sCh, sH0))
    if "notlb" not in ARGS:
        a("v_mov_b32 v26, 0\ns_mov_b64 exec, 1")
        a("buffer_load_dword v27, v26, %s, s%d offen" % (srd(sX), sXB))
        a("s_lshl_b32 s%d, s%d, 20" % (sT0, sW))
        a("buffer_load_dword v27, v26, %s, s%d offen" % (srd(sWQ), sT0))
        a("s_lshl_b32 s%d, s%d, 19" % (sT0, sG))
        a("buffer_load_dword v27, v26, %s, s%d offen" % (srd(sWO), sT0))
        a("s_mov_b64 exec, -1")
    aw = int(opt("aw", 2))
    for i_ in range(9):
        a("s_barrier")
        if i_ == 1:
            a("s_waitcnt vmcnt(0)")
            zero(a, ACC, 96)
        if i_ == int(opt("xt", -1)):
            def touch():
                a("v_lshlrev_b32 v%d, 7, v0" % T)
                a("s_lshl_b32 s%d, s%d, 13\ns_add_u32 s%d, s%d, s%d" % (sT0, sW, sT0, sT0, sXB))
                a("buffer_load_dword v%d, v%d, %s, s%d offen" % (T + 1, T, srd(sX), sT0))
                a("s_add_u32 s%d, s%d, 8192" % (sT0, sT0))
                a("buffer_load_dword v%d, v%d, %s, s%d offen" % (T + 2, T, srd(sX), sT0))
            cond(a, sW, 3, touch, eq=False)
        if i_ == 6:
            for c_ in range(2):
                a("s_add_u32 s%d, s%d, %d" % (sN, sWoB, c_ * XC))
                out = ["s_add_u32 s%d, s%d, %d\ns_and_b32 s%d, s%d, 7" % (sChN, sCh, c_, sChN, sChN)]
                xp(out, sChN, 0, sX, 0, XNT)
                for x in out: a(x)
                o2 = []; xp(o2, sChN, 4, sX, 0, XNT)
                cond_lt(a, sW, 2, lambda: a(o2[0]))
        if i_ == aw:
            for k in range(2):
                for x in wq_off(sCh, 0, k): a(x)
                emit(a, wqR(LB[k]))
    a("s_mov_b32 s%d, 0\ns_mov_b32 s%d, 0" % (sBuf, sCnt))
    a("s_waitcnt vmcnt(8)")
    perm_all(a, LB[0], QF)
    qloop("L_A_q", True)
    stamp(a, 1)
    a0 = 16
    if cstep[16] > 16:
        a("s_barrier"); a0 = 17
    q_final_R(a)
    if dbg: debug_dump(a, 0, False)
    att_init(a)
    a("v_add_u32 v%d, %d, v%d\nv_add_u32 v%d, %d, v%d" % (vT, KVB + SETSZ, vT, vK, KVB + SETSZ, vK))
    a("s_lshl_b32 s%d, s%d, 19\ns_lshl_b32 s%d, s%d, 8\ns_add_u32 s%d, s%d, s%d" % (sWoB, sG, sT1, sW, sWoB, sWoB, sT1))
    a("s_and_b32 s%d, s%d, 3" % (sH0, sB))
    a("s_lshr_b32 s%d, s%d, 2" % (sSp, sB))
    a("s_and_b32 s%d, s%d, 7\ns_mul_i32 s%d, s%d, 3072" % (sChN, sB, sChN, sChN))
    a("s_lshl_b32 s%d, s2, 17\ns_lshr_b32 s%d, s%d, 1\ns_lshl_b32 s%d, s%d, 13\ns_add_u32 s%d, s%d, s%d" % (sBuf, sT0, sW, sT0, sT0, sBuf, sBuf, sT0))
    a_rot()
    a("s_mul_i32 s%d, s%d, %d\ns_add_u32 s%d, s%d, %d" % (sMK, sW, BLK, sMK, sMK, KVB))
    a("s_and_b32 s%d, s%d, 1\ns_cmp_eq_u32 s%d, 1" % (sT0, sW, sT0))
    a("s_cselect_b32 s%d, s%d, s%d\ns_cselect_b32 s%d, s%d, s%d\ns_mov_b32 s%d, 0x%x" % (sK, sPtr + 4, sPtr + 2, sK + 1, sPtr + 5, sPtr + 3, sK + 2, SZ["Ak"]))
    a("s_cselect_b64 vcc, -1, 0")
    a("v_cndmask_b32 v%d, v%d, v%d, vcc\nv_cndmask_b32 v%d, v%d, v%d, vcc" % (vgK0, vgK0, vgV, vgK1, vgK1, vgV))
    stamp(a, 2)
    for s_ in range(a0, p3_0):
        a("s_barrier")
        c = SCH[s_]["cons"]
        row = SCH[s_]["aiss"]
        if row is not None:
            for r in k_reads(0, (0,)): a(r)
            out = [row_off(row)]
            for j in range(8):
                out += ["s_add_u32 m0, s%d, %d" % (sMK, (row % 3) * SETSZ + j * (PIECE - 256)),
                        "buffer_load_dwordx4 v%d, %s, s%d offen offset:%d nt lds" % (vgK0 if j < 4 else vgK1, srd(sK), sOff, j * 256)]
            emit(a, out)
            a("s_call_b64 s[%d:%d], L_att1" % (sRet2, sRet2 + 1))
            a("s_waitcnt vmcnt(8)")
        elif c is not None and 16 <= c < 24:
            a("s_call_b64 s[%d:%d], L_att" % (sRet2, sRet2 + 1))
            a("s_waitcnt vmcnt(0)")
        if c is not None and 16 <= c < 24:
            if c < 23: setdelta(c)
            if c == 19 and opt("pause"): a("s_sleep %s" % opt("pause"))
            if opt("slowa"): a("s_sleep %s" % opt("slowa"))
    stamp(a, 3)
    def ks_calc(jreg, jadd):
        a("s_add_u32 s%d, s%d, %d" % (sT2, jreg, jadd))
        a("s_lshr_b32 s%d, s%d, 2\ns_add_u32 s%d, s%d, s%d\ns_and_b32 s%d, s%d, 3" % (sT0, sT2, sT0, sT0, sH0, sT0, sT0))
        a("s_add_u32 s%d, s%d, s%d\ns_and_b32 s%d, s%d, 3" % (sT1, sT2, sSp, sT1, sT1))
    def wo_issue(jadd, lb):
        ks_calc(sCnt, jadd)
        a("s_lshl_b32 s%d, s%d, 2\ns_add_u32 s%d, s%d, s%d\ns_lshl_b32 s%d, s%d, 15\ns_add_u32 s%d, s%d, s%d" % (sOff, sT0, sOff, sOff, sT1, sOff, sOff, sOff, sOff, sWoB))
        emit(a, woR(lb))
    def jit(jadd, bufY):
        ks_calc(sCnt, jadd)
        a("s_mov_b32 s%d, %s" % (sN, ("s%d" % sChN) if bufY else str(SP)))
        a("s_call_b64 s[%d:%d], L_jit" % (sRet2, sRet2 + 1))
    a("s_barrier")
    a("v_mov_b32 v2, v%d" % vgWo)
    a("s_mov_b32 s%d, 0" % sCnt)
    wo_issue(0, LB[0]); wo_issue(1, LB[1])
    if B2: a("s_barrier")
    o_final(a)
    if dbg: debug_dump(a, 1, False)
    stamp(a, 4)
    a("s_barrier")
    jit(0, False)
    if B2: a("s_barrier")
    zero(a, ACC, 96)
    a("s_waitcnt vmcnt(0)")
    perm_all(a, LB[0], FR)
    a.label("L_A_o")
    for par in range(2):
        a("s_barrier")
        a("v_add_u32 v3, %s, v%d" % (("s%d" % sChN) if par else str(SP), vLane16))
        def dojit():
            if par == 0:
                a("s_cmp_eq_u32 s%d, 14\ns_cselect_b32 s%d, %d, s%d" % (sCnt, sChN, WR + 24576, sChN))
                jit(1, True)
            else: cond(a, sCnt, 14, lambda: jit(2, False), eq=False)
        JL = "jitlate" in ARGS
        if not LATEB and not JL: dojit()
        def fsA(k):
            F3 = int(opt("f3", -1))
            if F3 >= 0: cond(a, sCnt, F3 - 2, lambda: stamp(a, 1 + 4 * par + k, True))
        fsA(0)
        def issA():
            fsA(1)
            cond(a, sCnt, 14, lambda: wo_issue(2 + par, LB[par]), eq=False)
            fsA(2)
            if B2 and not LATEB: a("s_barrier")
            if JL: dojit()
        def barA():
            if B2: a("s_barrier")
            dojit()
        if OLDR:
            a("v_mov_b32 v%d, v3" % vXa)
            projR(a, (0, 1024, 2048), LB[par], issA)
        else: projR2(a, (0, 1024, 2048), FR, (248, 252, 4), 3, issA, NF, barA)
        if par == 0: cond(a, sCnt, 14, lambda: a("s_waitcnt vmcnt(0)"))
        a("s_waitcnt vmcnt(8)")
        if OLDR: pass
        elif par == 0: perm_all(a, LB[1], FR)
        else: cond(a, sCnt, 14, lambda: perm_all(a, LB[0], FR), eq=False)
        fsA(3)
    a("s_add_u32 s%d, s%d, 2\ns_cmp_lt_u32 s%d, 16\ns_cbranch_scc1 L_A_o" % (sCnt, sCnt, sCnt))
    stamp(a, 5)
    a("v_lshrrev_b32 v0, 4, v%d" % vLane16)
    ast = int(opt("ast", 0))
    if ast == 0: store_partial(a, 0, sW)
    for s_ in range(p3_0 + 18, NS): a("s_barrier")
    a("s_barrier")
    if ast == 1: store_partial(a, 0, sW)
    if int(opt("abar", -1)) >= 0: a("s_barrier")
    if ast == 2: store_partial(a, 0, sW)
    own_write(a, 0)
    tail(a, False)

    a.label("L_tile")
    a("s_setprio 1")
    for r in k_reads(2 * BLK, (0,)): a(r)
    a("s_branch L_att2")
    a.label("L_att")
    for r in k_reads(0, (0,)): a(r)
    a.label("L_att1")
    a("s_setprio 1")
    tile_fast(a, BLK, 2 * BLK)
    a.label("L_att2")
    tile_fast(a, 3 * BLK, None)
    a("s_setprio 0")
    a("s_setpc_b64 s[%d:%d]" % (sRet2, sRet2 + 1))
    a.label("L_jit")
    a("s_cmp_eq_u32 s%d, s%d\ns_cbranch_scc0 L_jit_r" % (sT0, sW))
    a("v_add_u32 v0, s%d, v%d" % (sN, vLane16))
    for sp in range(4):
        l = a.newlabel("L_j")
        if sp < 3: a("s_cmp_eq_u32 s%d, %d\ns_cbranch_scc0 %s" % (sT1, sp, l))
        for qt in range(3): a("ds_write_b128 v0, %s offset:%d" % (v4(qf(sp, qt)), qt * 1024))
        if sp < 3:
            a("s_branch L_jit_w")
            a.label(l)
    a.label("L_jit_w")
    a("s_waitcnt lgkmcnt(0)")
    a.label("L_jit_r")
    a("s_setpc_b64 s[%d:%d]" % (sRet2, sRet2 + 1))
    emit_stubs(a)
    slow_path(a)
    a.label("L_code_end")
    a("s_endpgm")

HDR = open("cdna_kernels/%s.s.ref" % NAME).read().split("; Override launch")[0]

def make(dbg=False):
    a = Asm()
    gen_main(a, dbg)
    rep = []
    lines = hazard.run(a.l, rep)
    for p in hazard.check_all_edges(lines): print("EDGE HAZARD", p)
    src = HDR + "; @launch grid=(256,1,1) block=(512,1,1) lds=%d\n" % LDS_BYTES
    src += ".amdgcn_target \"amdgcn-amd-amdhsa--gfx950\"\n" + "\n".join(lines) + "\n" + kernel_desc(KNAME, 256)
    print("nops inserted", rep, "lines", len(lines))
    return src

if __name__ == "__main__":
    dbg = "dbg" in ARGS
    out = opt("o", "k_dbg" if dbg else "k_st" if STAMP else "k")
    build(make(dbg), out, KNAME)
```

```python
import sys, math, struct
from asmlib import *
import hazard
from sched import make_sched

NAME = "concat_heads__gqa_block_cached__mha_block_cached__near_ridge"
KNAME = NAME + "_kernel"
ARGS = set(sys.argv[1:])
def opt(name, default=None):
    for x in sys.argv[1:]:
        if x.startswith(name + "="): return x[len(name) + 1:]
    return default

BLK = 8448
PIECE = 1056
SETSZ = 4 * BLK
XC = 6144
SP = 24576
KVB = 28672
WR = KVB + 3 * SETSZ
LDS_BYTES = WR + SETSZ
assert LDS_BYTES == 163840
SYNC = WR + 3 * BLK + 7 * PIECE + 1024
HO = WR
assert HO + 24576 <= SYNC

vLane16, vT, vK, vgK0, vgK1, vgV, vgWo = 1, 2, 3, 4, 5, 6, 7
ACC, QF, F, S, P, NM, L, ON, T = 8, 104, 152, 184, 208, 220, 232, 244, 248
VWQ = S
vXr, vgWq, vgX = 245, 244, 246
vXa, vTc, vTmpA, vTmpB = T, T + 1, T + 2, T + 3
LB = (152, 184)
FR = 216
BFR = 232
AF0, BF0 = 200, 232
def acc(t, qt): return ACC + (t * 3 + qt) * 4
def qf(s, qt): return QF + (s * 3 + qt) * 4
def sreg(kt, qt): return S + (kt * 3 + qt) * 4
def preg(qt): return P + qt * 4
def v4(r): return "v[%d:%d]" % (r, r + 3)
def v2(r): return "v[%d:%d]" % (r, r + 1)

sSelLo, sThr = 0, 1
sWave, sB, sG, sW = 3, 4, 5, 6
sX, sK, sV, sWQ, sWO, sWS, sXI = 8, 12, 16, 20, 24, 28, 32
sPtr = 36
sCyc, sSelHi = 60, 61
sKV, sRot, sOff, sT0, sT1, sT2, sCnt = 62, 63, 64, 65, 66, 67, 68
sWqB, sWoB, sXB, sCh, sChN, sBuf = 69, 70, 71, 72, 73, 74
sMW, sMK = 75, 76
sFloor = 77
sRet, sRet2 = 78, 80
sSp = 82
sH0, sN, sC, sSet = 86, 87, 88, 89
sSl0, sSl1, sSl2 = 7, 62, 63
sMsk = 7
def srd(r): return "s[%d:%d]" % (r, r + 3)

SCALE = (128 ** -0.5) * math.log2(math.e)
BIAS = 7.0
def fbits(x): return struct.unpack("<I", struct.pack("<f", x))[0]
STAMP = "stamp" in ARGS
GO = 48 << 20
OWN = "noown" not in ARGS
XNT = " nt" if "xnt" in ARGS else ""

def mf(d, a, b, c):
    return "v_mfma_f32_16x16x32_bf16 %s, %s, %s, %s" % (v4(d), v4(a), v4(b), v4(c) if c is not None else "0")

def weave(a, main, *streams):
    pos = [0] * len(streams)
    for i, m in enumerate(main):
        a(m)
        for k, (lst, st, en) in enumerate(streams):
            if i >= st:
                want = len(lst) if i >= en - 1 else (len(lst) * (i - st + 1) + (en - st) - 1) // (en - st)
                while pos[k] < want:
                    a(lst[pos[k]]); pos[k] += 1
    for k, (lst, st, en) in enumerate(streams):
        while pos[k] < len(lst):
            a(lst[pos[k]]); pos[k] += 1

def pol(k): return (" " + opt("pol" + k, "nt").replace("+", " ").replace("plain", "")).rstrip()

def kv_piece(m0base, m0add, j, isv, sk=sK, sv=sV):
    vg = vgV if isv else (vgK0 if j < 4 else vgK1)
    return ["s_add_u32 m0, s%d, %d" % (m0base, m0add + j * (PIECE - 256)),
            "buffer_load_dwordx4 v%d, %s, s%d offen offset:%d nt lds" % (vg, srd(sv if isv else sk), sOff, j * 256)]

def wqT(m0base, m0add):
    out = []
    for j in range(8):
        if j & 3 == 0: out.append("s_add_u32 m0, s%d, %d" % (m0base, m0add + j * PIECE))
        out.append("buffer_load_dwordx4 v%d, %s, s%d offen offset:%d lds" % (VWQ + j, srd(sWQ), sOff, (j & 3) * PIECE))
    return out
def woT(m0base, m0add):
    out = []
    for j in range(8):
        out.append("s_add_u32 m0, s%d, %d" % (m0base, m0add + j * PIECE - (j & 3) * 1024) + ("\ns_add_u32 s%d, s%d, 4096" % (sOff, sOff) if j == 4 else ""))
        out.append("buffer_load_dwordx4 v%d, %s, s%d offen offset:%d lds" % (vgWo, srd(sWO), sOff, (j & 3) * 1024))
    return out
def emit(a, lst):
    prev = ""
    for x in lst:
        if x.startswith("buffer") and x.endswith("lds") and prev.split("\n")[-1].startswith("s_add_u32 m0"): a("s_nop 0")
        a(x); prev = x

def tr_reads(off, tiles=range(8), dst0=F, va=vT):
    return ["ds_read_b64_tr_b16 %s, v%d offset:%d" % (v2(dst0 + t * 4 + h * 2), va, off + 256 * h + 32 * t) for t in tiles for h in range(2)]
def k_reads(off, kts=(0, 1)):
    return ["ds_read_b128 %s, v%d offset:%d" % (v4(F + (kt * 4 + s) * 4), vK, off + 512 * kt + 64 * s) for kt in kts for s in range(4)]

def sm_chain(kt, qt):
    t0 = T + ((kt * 3 + qt) & 1) * 4
    s = sreg(kt, qt)
    out = ["v_exp_f32 v%d, v%d" % (t0 + r, s + r) for r in range(4)]
    out.append("v_cvt_pk_bf16_f32 v%d, v%d, v%d" % (preg(qt) + 2 * kt, t0, t0 + 1))
    out.append("v_cvt_pk_bf16_f32 v%d, v%d, v%d" % (preg(qt) + 2 * kt + 1, t0 + 2, t0 + 3))
    return out
def qk_chain(kt, qt):
    return [mf(sreg(kt, qt), F + (kt * 4 + s) * 4, qf(s, qt), sreg(kt, qt) if s else NM + qt * 4) for s in range(4)]
def pv_list(tiles): return [mf(acc(t, qt), F + t * 4, preg(qt), acc(t, qt)) for t in tiles for qt in range(3)]
def l_list(): return [mf(L + qt * 4, ON, preg(qt), L + qt * 4) for qt in range(3)]

def tile_old(a, vo, knext):
    c = [qk_chain(kt, qt) for kt in range(2) for qt in range(3)]
    sm = [sm_chain(kt, qt) for kt in range(2) for qt in range(3)]
    v0 = tr_reads(vo, range(4)); v1 = tr_reads(vo, range(4, 8))
    for s in range(4):
        a("s_waitcnt lgkmcnt(%d)" % (7 - s))
        a(c[0][s])
    for m in c[1]: a(m)
    weave(a, c[2], (sm[0], 1, 4))
    a("s_waitcnt lgkmcnt(0)")
    weave(a, c[3], (sm[1], 0, 4), (v0[:4], 0, 4))
    weave(a, c[4], (sm[2], 0, 4), (v0[4:], 0, 4))
    s5 = sreg(1, 2)
    O1, O2 = P + 10, P + 11
    pre = ["v_or3_b32 v%d, v%d, v%d, v%d" % (O1, P, P + 1, P + 4), "v_or3_b32 v%d, v%d, v%d, v%d" % (O2, P + 5, P + 8, P + 9)]
    weave(a, c[5], (pre, 0, 2), (sm[3], 0, 4))
    a(sm[4][0]); a(sm[4][1])
    a("v_or3_b32 v%d, v%d, v%d, v%d" % (O1, O1, P + 2, P + 3))
    a(sm[4][2]); a(sm[4][3])
    a("v_or_b32 v%d, v%d, v%d" % (O1, O1, O2))
    a(sm[4][4]); a(sm[4][5])
    a("v_max3_f32 v%d, v%d, v%d, v%d" % (O2, s5, s5 + 1, s5 + 2))
    a("v_or3_b32 v%d, v%d, v%d, v%d" % (O1, O1, P + 6, P + 7))
    a("v_lshl_or_b32 v%d, v%d, 16, v%d" % (O1, O1, O1))
    a("v_and_b32 v%d, 0x40000000, v%d" % (O1, O1))
    a("v_max3_f32 v%d, v%d, v%d, v%d" % (O2, O2, s5 + 3, O1))
    a("v_cmp_le_f32 vcc, s%d, v%d" % (sThr, O2))
    ok = a.newlabel("L_ok")
    a("s_cbranch_vccz %s" % ok)
    a("s_call_b64 s[%d:%d], L_slow" % (sRet, sRet + 1))
    a.label(ok)
    ll = l_list()
    a("s_waitcnt lgkmcnt(0)")
    m1 = [ll[0], ll[1]] + [mf(acc(t, qt), F + t * 4, preg(qt), acc(t, qt)) for t in range(4) for qt in range(2)]
    weave(a, m1, (sm[5], 0, 5), (v1, 0, 8))
    a(ll[2])
    for t in range(4): a(mf(acc(t, 2), F + t * 4, preg(2), acc(t, 2)))
    m2 = pv_list(range(4, 8))
    if knext is not None:
        for r in k_reads(knext, (0,)): a(r)
        a("s_waitcnt lgkmcnt(4)")
        for m in m2: a(m)
        for r in k_reads(knext, (1,)): a(r)
    else:
        a("s_waitcnt lgkmcnt(0)")
        for m in m2: a(m)

STUBS = []
def tile_fast(a, vo, knext):
    c = [qk_chain(kt, qt) for kt in range(2) for qt in range(3)]
    sm = [sm_chain(kt, qt) for kt in range(2) for qt in range(3)]
    v0 = tr_reads(vo, range(4)); v1 = tr_reads(vo, range(4, 8))
    k1 = k_reads(vo - BLK, (1,))
    def chk(qt):
        t = T + 4 * (qt & 1); p = preg(qt)
        return ["v_or3_b32 v%d, v%d, v%d, v%d" % (t, p, p + 1, p + 2),
                "v_bitop3_b32 v%d, v%d, v%d, s%d bitop3:0xa8" % (t, t, p + 3, sMsk),
                "v_cmp_le_u32 vcc, s%d, v%d" % (sThr, t)]
    def br(qt):
        ok = a.newlabel("L_ok"); st = a.newlabel("L_stub")
        a("s_cbranch_vccnz %s" % st)
        a.label(ok)
        STUBS.append((st, ok, qt))
    def pvq(qt): return [l_list()[qt]] + [mf(acc(t, qt), F + t * 4, preg(qt), acc(t, qt)) for t in range(4)]
    for s in range(4):
        a("s_waitcnt lgkmcnt(3)")
        a(c[0][s])
        a(k1[s])
    for m in c[1]: a(m)
    weave(a, c[2], (sm[0], 0, 4))
    a("s_waitcnt lgkmcnt(0)")
    weave(a, c[3], (sm[1], 0, 4), (v0[:4], 0, 4))
    weave(a, c[4], (sm[2], 0, 4), (v0[4:], 0, 4))
    weave(a, c[5], (sm[3] + chk(0), 0, 3))
    a("s_waitcnt lgkmcnt(0)")
    br(0)
    weave(a, pvq(0), (sm[4] + chk(1), 0, 4))
    br(1)
    weave(a, pvq(1), (sm[5] + chk(2), 0, 4), (v1[:2], 3, 5))
    br(2)
    weave(a, pvq(2), (v1[2:], 0, 4))
    m2 = pv_list(range(4, 8))
    kn = k_reads(knext, (0,)) if knext is not None else []
    for t in range(4):
        a("s_waitcnt lgkmcnt(%d)" % (6 - 2 * t + (min(2 * t, 4) if kn else 0)))
        for i, m in enumerate(m2[3 * t:3 * t + 3]):
            a(m)
            if kn and t < 2 and i < 2: a(kn[2 * t + i])

def emit_stubs(a):
    for st, ok, qt in STUBS:
        a.label(st)
        a("s_call_b64 s[%d:%d], L_slow%d" % (sRet, sRet + 1, qt))
        a("s_branch %s" % ok)

def xlane(a, op, r, t):
    a("v_mov_b32 v%d, v%d" % (t, r))
    a("v_permlane32_swap_b32 v%d, v%d" % (t, r))
    a("%s v%d, v%d, v%d" % (op, r, r, t))
    a("v_mov_b32 v%d, v%d" % (t, r))
    a("v_permlane16_swap_b32 v%d, v%d" % (t, r))
    a("%s v%d, v%d, v%d" % (op, r, r, t))

def slow_old(a):
    a.label("L_slow")
    a("s_nop 7")
    for qt in range(3):
        s0, s1 = sreg(0, qt), sreg(1, qt)
        x = T
        a("v_max3_f32 v%d, v%d, v%d, v%d" % (x, s0, s0 + 1, s0 + 2))
        a("v_max3_f32 v%d, v%d, v%d, v%d" % (x, x, s0 + 3, s1))
        a("v_max3_f32 v%d, v%d, v%d, v%d" % (x, x, s1 + 1, s1 + 2))
        a("v_max_f32 v%d, v%d, v%d" % (x, x, s1 + 3))
        xlane(a, "v_max_f32", x, T + 1)
        a("v_max_f32 v%d, s%d, v%d" % (x, sFloor, x))
        a("v_add_f32 v%d, 0x%x, v%d" % (x, fbits(BIAS), x))
        a("v_sub_f32 v%d, 0, v%d" % (T + 1, x))
        a("v_min_f32 v%d, 0, v%d" % (T + 1, T + 1))
        a("v_exp_f32 v%d, v%d" % (T + 1, T + 1))
        for r in range(4):
            a("v_sub_f32 v%d, v%d, v%d" % (NM + qt * 4 + r, NM + qt * 4 + r, x))
            a("v_sub_f32 v%d, v%d, v%d" % (s0 + r, s0 + r, x))
            a("v_sub_f32 v%d, v%d, v%d" % (s1 + r, s1 + r, x))
        lsk = a.newlabel("L_nors")
        a("s_cmp_lg_u32 s%d, 1.0\ns_cbranch_scc1 %s" % (sThr, lsk))
        for r in range(4):
            a("v_mul_f32 v%d, v%d, v%d" % (L + qt * 4 + r, L + qt * 4 + r, T + 1))
        for t in range(8):
            for r in range(4):
                a("v_mul_f32 v%d, v%d, v%d" % (acc(t, qt) + r, acc(t, qt) + r, T + 1))
        a.label(lsk)
    for kt in range(2):
        for qt in range(3):
            for s in sm_chain(kt, qt): a(s)
    a("s_mov_b32 s%d, 0x%x" % (sFloor, fbits(-BIAS)))
    a("s_mov_b32 s%d, 1.0" % sThr)
    a("s_nop 1")
    a("s_setpc_b64 s[%d:%d]" % (sRet, sRet + 1))

def slow_path(a):
    if "oldtile" in ARGS: return slow_old(a)
    for qt in range(3):
        a.label("L_slow%d" % qt)
        s0, s1 = sreg(0, qt), sreg(1, qt)
        x = T
        a("v_max3_f32 v%d, v%d, v%d, v%d" % (x, s0, s0 + 1, s0 + 2))
        a("v_max3_f32 v%d, v%d, v%d, v%d" % (x + 1, s0 + 3, s1, s1 + 1))
        a("v_max3_f32 v%d, v%d, v%d, v%d" % (x, x, s1 + 2, s1 + 3))
        a("v_max_f32 v%d, v%d, v%d" % (x, x, x + 1))
        xlane(a, "v_max_f32", x, T + 1)
        a("v_max_f32 v%d, s%d, v%d" % (x, sFloor, x))
        a("v_add_f32 v%d, 0x%x, v%d" % (x, fbits(BIAS), x))
        for r in range(4):
            a("v_sub_f32 v%d, v%d, v%d" % (s0 + r, s0 + r, x))
            a("v_sub_f32 v%d, v%d, v%d" % (s1 + r, s1 + r, x))
            a("v_sub_f32 v%d, v%d, v%d" % (NM + qt * 4 + r, NM + qt * 4 + r, x))
        lsk = a.newlabel("L_nors")
        a("s_cmp_eq_u32 s%d, 0\ns_cbranch_scc1 %s" % (sThr, lsk))
        a("v_sub_f32 v%d, 0, v%d" % (T + 1, x))
        a("v_exp_f32 v%d, v%d" % (T + 1, T + 1))
        for r in range(4):
            a("v_mul_f32 v%d, v%d, v%d" % (L + qt * 4 + r, L + qt * 4 + r, T + 1))
        for t in range(8):
            for r in range(4):
                a("v_mul_f32 v%d, v%d, v%d" % (acc(t, qt) + r, acc(t, qt) + r, T + 1))
        a.label(lsk)
        for kt in range(2):
            t0 = T + 4 * kt; s = sreg(kt, qt)
            for r in range(4): a("v_exp_f32 v%d, v%d" % (t0 + r, s + r))
        for kt in range(2):
            t0 = T + 4 * kt
            a("v_cvt_pk_bf16_f32 v%d, v%d, v%d" % (preg(qt) + 2 * kt, t0, t0 + 1))
            a("v_cvt_pk_bf16_f32 v%d, v%d, v%d" % (preg(qt) + 2 * kt + 1, t0 + 2, t0 + 3))
        if qt == 2:
            a("s_mov_b32 s%d, 0x%x" % (sFloor, fbits(-BIAS)))
            a("s_mov_b32 s%d, 1" % sThr)
        a("s_nop 1")
        a("s_setpc_b64 s[%d:%d]" % (sRet, sRet + 1))

def zero(a, base, n):
    for r in range(n): a("v_mov_b32 v%d, 0" % (base + r))

def att_init(a):
    zero(a, ACC, 96); zero(a, NM, 24)
    for r in range(4): a("v_mov_b32 v%d, 0x3f803f80" % (ON + r))
    a("s_mov_b32 s%d, 0x%x\ns_mov_b32 s%d, %s" % (sFloor, fbits(-3e38), sThr, "0xff800000" if "oldtile" in ARGS else "0"))
    a("s_mov_b32 s%d, 0x40004000" % sMsk)

def scale_acc(a, sc):
    for t in range(8):
        for qt in range(3):
            for r in (0, 2):
                x = acc(t, qt) + r
                a("v_pk_mul_f32 %s, %s, %s%s" % (v2(x), v2(x), sc(qt), " op_sel_hi:[1,0]" if sc(qt)[0] == "s" else ""))

def pack_T(a):
    for s in range(4):
        for qt in range(3):
            d = qf(s, qt)
            for hh in range(2):
                src = acc(2 * s + hh, qt)
                a("v_cvt_pk_bf16_f32 v%d, v%d, v%d" % (d + 2 * hh, src, src + 1))
                a("v_cvt_pk_bf16_f32 v%d, v%d, v%d" % (d + 2 * hh + 1, src + 2, src + 3))
def pack_R(a):
    for s in range(4):
        for qt in range(3):
            for p in range(4):
                a("v_cvt_pk_bf16_f32 v%d, v%d, v%d" % (qf(s, qt) + p, acc(2 * p, qt) + s, acc(2 * p + 1, qt) + s))

def q_final_T(a):
    a("s_nop 7")
    scale_acc(a, lambda qt: "s[%d:%d]" % (sC, sC + 1))
    pack_T(a)
    for op in ("v_permlane32_swap_b32", "v_permlane16_swap_b32"):
        for i in range(12):
            d = QF + 4 * i
            a("%s v%d, v%d" % (op, d, d + 2)); a("%s v%d, v%d" % (op, d + 1, d + 3))
def q_final_R(a):
    a("s_nop 7")
    scale_acc(a, lambda qt: "s[%d:%d]" % (sC, sC + 1))
    pack_R(a)
    xpose_R(a)
def xpose_R(a):
    for qt in range(3):
        for (x, y) in ((0, 2), (1, 3)):
            for p in range(4): a("v_permlane32_swap_b32 v%d, v%d" % (qf(x, qt) + p, qf(y, qt) + p))
    for qt in range(3):
        for (x, y) in ((0, 1), (2, 3)):
            for p in range(4): a("v_permlane16_swap_b32 v%d, v%d" % (qf(x, qt) + p, qf(y, qt) + p))
def o_final(a):
    a("s_nop 7")
    for qt in range(3):
        a("v_rcp_f32 v%d, v%d" % (L + qt * 4, L + qt * 4))
        a("v_rcp_f32 v%d, v%d" % (L + qt * 4 + 1, L + qt * 4 + 1))
    scale_acc(a, lambda qt: v2(L + qt * 4))
    pack_T(a)

def publish(a, base_sgpr, src=QF, n=12):
    a("v_add_u32 v%d, s%d, v%d" % (vTmpA, base_sgpr, vLane16))
    for i in range(n):
        a("ds_write_b128 v%d, %s offset:%d" % (vTmpA, v4(src + i * 4), i * 1024))

def debug_dump(a, which, isB):
    a("s_lshl_b32 s%d, s2, 2\ns_add_u32 s%d, s%d, s%d" % (sT0, sT0, sT0, sW))
    if isB: a("s_add_u32 s%d, s%d, 1024" % (sT0, sT0))
    a("s_mul_i32 s%d, s%d, 12288" % (sT0, sT0))
    a("s_add_u32 s%d, s%d, 0x%x" % (sT0, sT0, (64 + 32 * which) << 20))
    for i in range(12):
        a("s_add_u32 s%d, s%d, %d" % (sT1, sT0, i * 1024))
        a("buffer_store_dwordx4 %s, v%d, %s, s%d offen" % (v4(QF + i * 4), vLane16, srd(sWS), sT1))
    a("s_waitcnt vmcnt(0)")

def store_partial(a, br, cb):
    a("s_nop 7")
    a("s_add_u32 s%d, s%d, %d" % (sT0, sB, br * 32))
    a("s_lshl_b32 s%d, s%d, 2\ns_add_u32 s%d, s%d, s%d" % (sT0, sT0, sT0, sT0, cb))
    a("s_mul_i32 s%d, s%d, %d" % (sT0, sT0, 12 * 8192))
    a("s_lshl_b32 s%d, s%d, 10\ns_add_u32 s%d, s%d, s%d" % (sT1, sG, sT0, sT0, sT1))
    if not br:
        pack_R(a); xpose_R(a)
    if OWN:
        a("s_lshr_b32 s%d, s%d, 1\ns_and_b32 s%d, s%d, 1\ns_cmp_eq_u32 s%d, s%d\ns_cselect_b32 s%d, s%d, 2" % (sT1, sG, sRot, sG, sT1, cb, sRot, sRot))
    for half in range(2):
        def body():
            for i in range(6 * half, 6 * half + 6):
                a("s_add_u32 s%d, s%d, %d" % (sT1, sT0, i * 8192))
                a("buffer_store_dwordx4 %s, v%d, %s, s%d offen sc1" % (v4(QF + 4 * i), vLane16, srd(sWS), sT1))
        if br:
            for i in range(6 * half, 6 * half + 6):
                s, qt = i // 3, i % 3
                d = qf(s, qt)
                for hh in range(2):
                    src = acc(2 * s + hh, qt)
                    a("v_cvt_pk_bf16_f32 v%d, v%d, v%d" % (d + 2 * hh, src, src + 1))
                    a("v_cvt_pk_bf16_f32 v%d, v%d, v%d" % (d + 2 * hh + 1, src + 2, src + 3))
        if OWN: cond(a, sRot, half, body, eq=False)
        else: body()

def own_write(a, br):
    if not OWN: return
    for half in range(2):
        def body():
            a("v_add_u32 v%d, %d, v%d" % (vTmpA, WR + 6144 * br, vLane16))
            for i in range(6):
                a("ds_write_b128 v%d, %s offset:%d" % (vTmpA, v4(QF + 4 * (6 * half + i)), i * 1024))
        cond(a, sRot, half, body)

def cond(a, reg, val, body, eq=True):
    l = a.newlabel("L_c")
    a("s_cmp_eq_u32 s%d, %d" % (reg, val))
    a("s_cbranch_scc%d %s" % (0 if eq else 1, l))
    body()
    a.label(l)
def cond_lt(a, reg, val, body):
    l = a.newlabel("L_c")
    a("s_cmp_lt_u32 s%d, %d\ns_cbranch_scc0 %s" % (reg, val, l))
    body()
    a.label(l)

FS = int(opt("fs", -1))
SB = int(opt("sb", -1))
def sbst(a, s_):
    if SB >= 0 and SB <= s_ < SB + 9: stamp(a, 1 + s_ - SB, True)
def stamp(a, k, fine=False):
    if not STAMP: return
    if (FS >= 0 or SB >= 0 or opt("f3")) and not fine and k >= 1: return
    if "cyc" in ARGS:
        a("s_memtime s[90:91]\ns_waitcnt lgkmcnt(0)")
        if k == 0: a("s_mov_b32 s%d, s90\ns_mov_b32 s92, 1" % sCyc)
        else: a("s_sub_u32 s%d, s90, s%d\ns_lshr_b32 s%d, s%d, 4" % (92 + k, sCyc, 92 + k, 92 + k))
        return
    a("s_memrealtime s[90:91]\ns_waitcnt lgkmcnt(0)\ns_mov_b32 s%d, s90" % (92 + k))
def stamp_out(a, n):
    if not STAMP: return
    a("s_lshl_b32 s%d, s2, 3\ns_add_u32 s%d, s%d, s%d\ns_lshl_b32 s%d, s%d, 6\ns_add_u32 s%d, s%d, 0x%x" % (sT0, sT0, sT0, sWave, sT0, sT0, sT0, sT0, 536870912 - (1 << 20)))
    a("s_mov_b64 exec, 1")
    a("v_mov_b32 v15, 0")
    for k in range(n):
        a("v_mov_b32 v14, s%d" % (92 + k))
        a("buffer_store_dword v14, v15, %s, s%d offen offset:%d" % (srd(sWS), sT0, 4 * k))
        a("s_nop 1")

def dbg_srd(a, q=sXI):
    a("s_mov_b32 s%d, s%d\ns_mov_b32 s%d, s%d\ns_mov_b32 s%d, 256\ns_mov_b32 s%d, 0x20000" % (q, sPtr + 22, q + 1, sPtr + 23, q + 2, q + 3))

SEP = "sep" in ARGS
def arrive(a, ev=0, sl=1):
    ld = a.newlabel("L_d"); lw = a.newlabel("L_w"); lp = a.newlabel("L_poll")
    a("v_mov_b32 v%d, %d\nv_mov_b32 v%d, 1" % (T, SYNC + 16 * ev, T + 1))
    a("v_lshlrev_b32 v%d, 7, v0" % (T + 4))
    a("s_lshl_b32 s%d, s%d, 10\ns_add_u32 s%d, s%d, 0x%x" % (sOff, sB, sOff, sOff, GO))
    a("s_lshl_b32 s%d, s2, 7\ns_add_u32 s%d, s%d, 0x%x" % (sT1, sT1, sT1, GO))
    a("s_mov_b64 exec, 1")
    a("ds_read_b32 v%d, v%d offset:8" % (T + 5, T))
    a("v_mov_b32 v%d, 0" % (T + 3))
    a("s_waitcnt vmcnt(0)")
    a("ds_add_rtn_u32 v%d, v%d, v%d" % (T + 2, T, T + 1))
    a("s_waitcnt lgkmcnt(0)")
    a("v_readfirstlane_b32 s%d, v%d" % (sT0, T + 2))
    a("s_cmp_eq_u32 s%d, %d\ns_cbranch_scc0 %s" % (sT0, 3 if SEP else 7, ld))
    a("s_mov_b64 exec, 0xff")
    a("buffer_atomic_add v%d, v%d, %s, s%d offen offset:%d sc1" % (T + 1, T + 4, srd(sWS), sOff, 4 * ev))
    a("s_mov_b64 exec, 1")
    a("v_readfirstlane_b32 s%d, v%d" % (sN, T + 5))
    a("s_add_u32 s%d, s%d, 8" % (sN, sN))
    a("s_mov_b32 s%d, 200000" % sT2)
    a.label(lp)
    a("s_sub_u32 s%d, s%d, 1\ns_cbranch_scc1 %s" % (sT2, sT2, lw))
    a("buffer_load_dword v%d, v%d, %s, s%d offen offset:%d sc1" % (T + 2, T + 3, srd(sWS), sT1, 4 * ev))
    a("s_waitcnt vmcnt(0)")
    a("v_readfirstlane_b32 s%d, v%d" % (sT0, T + 2))
    a("s_cmp_eq_u32 s%d, s%d\ns_cbranch_scc1 %s" % (sT0, sN, lw))
    a("s_sleep %d\ns_branch %s" % (sl, lp))
    a.label(lw)
    a("ds_write_b32 v%d, v%d offset:4" % (T, T + 1))
    a("s_waitcnt lgkmcnt(0)")
    a.label(ld)
    a("s_mov_b64 exec, -1")

def wait_flag(a, sl, ev=0):
    lp = a.newlabel("L_f"); ld = a.newlabel("L_g")
    a("v_mov_b32 v%d, %d" % (T, SYNC + 16 * ev))
    a("s_mov_b32 s%d, 4000000" % sT2)
    a.label(lp)
    a("s_sub_u32 s%d, s%d, 1\ns_cbranch_scc1 %s" % (sT2, sT2, ld))
    a("ds_read_b32 v%d, v%d offset:4" % (T + 1, T))
    a("s_waitcnt lgkmcnt(0)")
    a("v_readfirstlane_b32 s%d, v%d" % (sT0, T + 1))
    a("s_cmp_lg_u32 s%d, 0\ns_cbranch_scc1 %s" % (sT0, ld))
    a("s_sleep %d\ns_branch %s" % (sl, lp))
    a.label(ld)

def reduce_prep(a, it, br, ld, so):
    a("s_mul_i32 s%d, s%d, 6\ns_add_u32 s%d, s%d, s%d" % (sT0, sG, sT0, sT0, it))
    a("s_add_u32 s%d, s%d, %d\ns_mul_i32 s%d, s%d, 48\ns_add_u32 s%d, s%d, s%d" % (sT1, sB, 32 * br, sT1, sT1, sT1, sT1, sT0))
    a("s_lshl_b32 s%d, s%d, 13" % (ld, sT1))
    a("s_mul_i32 s%d, s%d, 43\ns_lshr_b32 s%d, s%d, 7" % (sT1, sT0, sT1, sT1))
    a("s_mul_i32 s%d, s%d, 3\ns_sub_u32 s%d, s%d, s%d" % (sT2, sT1, sT2, sT0, sT2))
    a("s_mul_i32 s%d, s%d, 3\ns_add_u32 s%d, s%d, s%d\ns_lshl_b32 s%d, s%d, 15" % (so, sB, so, so, sT2, so, so))
    a("s_lshl_b32 s%d, s%d, 6\ns_add_u32 s%d, s%d, s%d" % (sT1, sT1, so, so, sT1))
    if br: a("s_add_u32 s%d, s%d, 1024" % (so, so))
def reduce_issue(a, D, ld, br=0, it=None, k=0):
    if OWN:
        a("s_lshl_b32 s%d, s%d, 10\ns_add_u32 s%d, s%d, %d" % (sT0, it, sT0, sT0, WR + 6144 * br))
        a("v_add_u32 v%d, s%d, v%d" % (RX, sT0, vLane16))
        a("ds_read_b128 %s, v%d" % (v4(RW + 4 * k), RX))
    for g_ in range(7 if OWN else 8):
        if OWN:
            a("s_add_u32 s%d, s%d, %d\ns_and_b32 s%d, s%d, 7\ns_lshl_b32 s%d, s%d, 10\ns_add_u32 s%d, s%d, s%d" % (sT0, sG, g_ + 1, sT0, sT0, sT0, sT0, sT0, sT0, ld))
            a("buffer_load_dwordx4 %s, v%d, %s, s%d offen sc1" % (v4(D + 4 * g_), vLane16, srd(sWS), sT0))
        else:
            if g_ == 4: a("s_add_u32 s%d, s%d, 4096" % (ld, ld))
            a("buffer_load_dwordx4 %s, v%d, %s, s%d offen offset:%d sc1" % (v4(D + 4 * g_), vLane16, srd(sWS), ld, (g_ & 3) * 1024))
RA, RX, RADB, RADA, RO, RW = 200, 208, 212, 213, 216, 224
def reduce_fin(a, D, br, so, younger, k):
    O_ = RO + 4 * k
    NL = 7 if OWN else 8
    if OWN and younger: younger = 7
    for g_ in range(8):
        if OWN and g_ == 0: a("s_waitcnt lgkmcnt(0)")
        else: a("s_waitcnt vmcnt(%d)" % (7 - g_ + younger))
        for d in range(4):
            src = D + 4 * g_ + d
            if OWN: src = (RW + 4 * k + d) if g_ == 0 else (D + 4 * (g_ - 1) + d)
            if g_ == 0:
                a("v_lshlrev_b32 v%d, 16, v%d" % (RA + 2 * d, src))
                a("v_and_b32 v%d, 0xffff0000, v%d" % (RA + 2 * d + 1, src))
            else:
                X = RX + (d & 1) * 2
                a("v_lshlrev_b32 v%d, 16, v%d" % (X, src))
                a("v_and_b32 v%d, 0xffff0000, v%d" % (X + 1, src))
                a("v_pk_add_f32 %s, %s, %s" % (v2(RA + 2 * d), v2(RA + 2 * d), v2(X)))
    for d in range(4):
        a("v_cvt_pk_bf16_f32 v%d, v%d, v%d" % (O_ + d, RA + 2 * d, RA + 2 * d + 1))
    if br:
        a("v_permlane32_swap_b32 v%d, v%d\nv_permlane32_swap_b32 v%d, v%d" % (O_, O_ + 2, O_ + 1, O_ + 3))
        a("v_permlane16_swap_b32 v%d, v%d\nv_permlane16_swap_b32 v%d, v%d" % (O_, O_ + 2, O_ + 1, O_ + 3))
    return "buffer_store_dwordx4 %s, v%d, %s, s%d offen sc1" % (v4(O_), RADB, srd(sK), so)

def tail_joint(a, isB):
    arrive(a)
    a("v_and_b32 v%d, 15, v0\nv_lshrrev_b32 v%d, 4, v0\nv_lshlrev_b32 v%d, 11, v%d" % (RADB, RX, RADB, RADB))
    a("v_lshl_add_u32 v%d, v%d, 4, v%d" % (RADB, RX, RADB))
    a("s_mov_b32 s%d, s%d\ns_mov_b32 s%d, s%d\ns_mov_b32 s%d, 0x%x\ns_mov_b32 s%d, 0x20000" % (sK, sPtr + 20, sK + 1, sPtr + 21, sK + 2, SZ["out"], sK + 3))
    if isB:
        reduce_prep(a, sW, 1, sBuf, sCh)
        reduce_prep(a, sW, 0, sSet, sChN)
        wait_flag(a, 1)
        stamp(a, 8)
        reduce_issue(a, ACC, sBuf, 1, sW, 0); reduce_issue(a, ACC + 32, sSet, 0, sW, 1)
        st = [reduce_fin(a, ACC, 1, sCh, 8, 0), reduce_fin(a, ACC + 32, 0, sChN, 0, 1)]
        for s_ in st: a(s_)
    else:
        l2 = a.newlabel("L_ta")
        a("s_cmp_ge_u32 s%d, 2\ns_cbranch_scc1 %s" % (sW, l2))
        for br, add in ((1, 4), (0, 2)):
            if br == 0: a.label(l2)
            a("s_add_u32 s%d, s%d, %d" % (sN, sW, add))
            reduce_prep(a, sN, br, sBuf, sCh)
            wait_flag(a, 2)
            stamp(a, 8)
            reduce_issue(a, ACC, sBuf, br, sN, 0)
            a(reduce_fin(a, ACC, br, sCh, 0, 0))
            if br == 1: a("s_branch L_fin")
    if isB: a("s_branch L_fin")
    else:
        a.label("L_fin")
        if STAMP: a("s_waitcnt vmcnt(0)")
        stamp(a, 9)
        stamp_out(a, 10)
        a("s_endpgm")

def tail(a, isB):
    if not SEP: return tail_joint(a, isB)
    arrive(a, 0 if isB else 1, 1 if isB else 4)
    a("v_and_b32 v%d, 15, v0\nv_lshrrev_b32 v%d, 4, v0\nv_lshlrev_b32 v%d, 11, v%d" % (RADB, RX, RADB, RADB))
    a("v_lshl_add_u32 v%d, v%d, 4, v%d" % (RADB, RX, RADB))
    a("s_mov_b32 s%d, s%d\ns_mov_b32 s%d, s%d\ns_mov_b32 s%d, 0x%x\ns_mov_b32 s%d, 0x20000" % (sK, sPtr + 20, sK + 1, sPtr + 21, sK + 2, SZ["out"], sK + 3))
    if isB:
        a("s_mov_b32 s%d, s%d" % (sN, sW))
        a.label("L_bitem")
        reduce_prep(a, sN, 1, sBuf, sCh)
        wait_flag(a, 1)
        stamp(a, 8)
        reduce_issue(a, ACC, sBuf)
        a(reduce_fin(a, ACC, 1, sCh, 0, 0))
        a("s_branch L_fin")
    else:
        l2 = a.newlabel("L_ta")
        reduce_prep(a, sW, 0, sBuf, sCh)
        a("s_cmp_ge_u32 s%d, 2\ns_cbranch_scc1 %s" % (sW, l2))
        wait_flag(a, 2, 1)
        reduce_issue(a, ACC, sBuf)
        a(reduce_fin(a, ACC, 0, sCh, 0, 1))
        stamp(a, 7)
        a("s_add_u32 s%d, s%d, 4" % (sN, sW))
        a("s_branch L_bitem")
        a.label(l2)
        a("s_add_u32 s%d, s%d, 2" % (sN, sW))
        reduce_prep(a, sN, 0, sSet, sChN)
        wait_flag(a, 2, 1)
        reduce_issue(a, ACC, sBuf); reduce_issue(a, ACC + 32, sSet)
        st = [reduce_fin(a, ACC, 0, sCh, 8, 0), reduce_fin(a, ACC + 32, 0, sChN, 0, 1)]
        for s_ in st: a(s_)
        stamp(a, 7)
        a.label("L_fin")
        if STAMP: a("s_waitcnt vmcnt(0)")
        stamp(a, 9)
        stamp_out(a, 10)
        a("s_endpgm")

def x_piece(p_sgpr_off, p, srdq, ch, ldsbase):
    pass

def xp(a_list, ch_sgpr, p, srdq, lds_const, fl=""):
    ls = ["s_lshl_b32 s%d, s%d, 7" % (sT2, ch_sgpr), "s_add_u32 s%d, s%d, s%d" % (sT2, sT2, sXB)]
    ls.append("s_add_u32 m0, s%d, %d" % (sN, lds_const + p * 1024))
    ls.append("s_add_u32 s%d, s%d, %d" % (sT2, sT2, p * 8192))
    ls.append("buffer_load_dwordx4 v%d, %s, s%d offen%s lds" % (vgX, srd(srdq), sT2, fl))
    a_list.append("\n".join(ls))

def wq_off(chreg, add, par):
    return ["s_add_u32 s%d, s%d, %d\ns_and_b32 s%d, s%d, 7" % (sOff, chreg, add, sOff, sOff),
            "s_lshl_b32 s%d, s%d, 1\ns_add_u32 s%d, s%d, s%d" % (sOff, sOff, sOff, sOff, sSp + par),
            "s_lshl_b32 s%d, s%d, 18\ns_add_u32 s%d, s%d, s%d" % (sOff, sOff, sOff, sOff, sWqB)]
def xaddr(par, bufreg=None, bufconst=0):
    out = ["s_lshl_b32 s%d, s%d, 6" % (sT0, sSp + par), "v_xor_b32 v%d, s%d, v%d" % (vXa, sT0, vXr)]
    if bufreg is not None: out.append("v_add_u32 v%d, s%d, v%d" % (vXa, bufreg, vXa))
    return out

def projT(a, bimm, aoff, va, issue, accf=acc, af=F, bf=P):
    for qt in range(3): a("ds_read_b128 %s, v%d offset:%d" % (v4(bf + 4 * qt), vXa, bimm[qt]))
    rd = tr_reads(aoff, range(8), af, va)
    for r in rd[:12]: a(r)
    a("s_waitcnt lgkmcnt(10)")
    for r in rd[12:]: a(r)
    a("s_waitcnt lgkmcnt(0)")
    issue()
    for t in range(8):
        for qt in range(3): a(mf(accf(t, qt), af + t * 4, bf + 4 * qt, accf(t, qt)))

def projR(a, bimm, lb, issue):
    for qt in range(3): a("ds_read_b128 %s, v%d offset:%d" % (v4(BFR + 4 * qt), vXa, bimm[qt]))
    def perms(i):
        d = FR + (i & 3) * 4
        return ["v_perm_b32 v%d, v%d, v%d, s%d" % (d + p, lb + (2 * p + 1) * 4 + (i >> 1), lb + 2 * p * 4 + (i >> 1), sSelHi if i & 1 else sSelLo) for p in range(4)]
    for i in range(4):
        for x in perms(i): a(x)
    a("s_waitcnt lgkmcnt(0)")
    for i in range(4):
        for qt in range(3): a(mf(acc(i, qt), FR + i * 4, BFR + 4 * qt, acc(i, qt)))
        for x in perms(i + 4): a(x)
    issue()
    for i in range(4, 8):
        for qt in range(3): a(mf(acc(i, qt), FR + (i & 3) * 4, BFR + 4 * qt, acc(i, qt)))

def perm_all(a, lb, fr):
    for i in range(8):
        for p in range(4):
            a("v_perm_b32 v%d, v%d, v%d, s%d" % (fr + 4 * i + p, lb + (2 * p + 1) * 4 + (i >> 1), lb + 2 * p * 4 + (i >> 1), sSelHi if i & 1 else sSelLo))

def projR2(a, bimm, fr, bf, vxa, issue, nfirst, bar=None):
    for qt in range(3): a("ds_read_b128 %s, v%d offset:%d" % (v4(bf[qt]), vxa, bimm[qt]))
    ms = [mf(acc(i, qt), fr + i * 4, bf[qt], acc(i, qt)) for i in range(8) for qt in range(3)]
    if nfirst < 0:
        issue()
        a("s_waitcnt lgkmcnt(0)")
        for m in ms: a(m)
        bar()
        return
    if nfirst == 0:
        issue()
        a("s_waitcnt lgkmcnt(0)")
        for m in ms: a(m)
        return
    if "aprio" in ARGS: a("s_setprio 2")
    a("s_waitcnt lgkmcnt(0)")
    for m in ms[:nfirst]: a(m)
    issue()
    if "aprio" in ARGS: a("s_setprio 0")
    for m in ms[nfirst:]: a(m)

def wqR(lb, dummy=None):
    out = []
    for r in range(8):
        if r: out.append("s_add_u32 s%d, s%d, 8192" % (sOff, sOff))
        out.append("buffer_load_dwordx4 %s, v%d, %s, s%d offen" % (v4(lb + 4 * r), vgWq, srd(sWQ), sOff))
    return out
def woR(lb):
    out = []
    for r in range(8):
        if r == 4: out.append("s_add_u32 s%d, s%d, 16384" % (sOff, sOff))
        out.append("buffer_load_dwordx4 %s, v%d, %s, s%d offen offset:%d" % (v4(lb + 4 * r), 2, srd(sWO), sOff, (r & 3) * 1024))
    return out

def b_kv_params(a, wadd=0):
    a("s_lshl_b32 s%d, s2, 2\ns_add_u32 s%d, s%d, s%d" % (sT0, sT0, sT0, sW))
    if wadd: a("s_sub_u32 s%d, s%d, %d" % (sT0, sT0, -wadd))
    a("s_lshl_b32 s%d, s%d, 17" % (sKV, sT0))
    rk = int(opt("rk", 1))
    if rk == 0:
        a("s_mul_i32 s%d, s%d, 5\ns_lshr_b32 s%d, s%d, 4\ns_add_u32 s%d, s%d, s%d\ns_and_b32 s%d, s%d, 15" % (sRot, sT0, sT1, sT0, sRot, sRot, sT1, sRot, sRot))
    elif rk == 1:
        a("s_and_b32 s%d, s%d, 15" % (sRot, sT0))
    elif rk == 2:
        a("s_lshl_b32 s%d, s%d, 3\ns_add_u32 s%d, s%d, s%d\ns_and_b32 s%d, s%d, 15" % (sRot, sW, sRot, sRot, sG, sRot, sRot))
    elif rk == 3:
        a("s_and_b32 s%d, s%d, 1\ns_lshl_b32 s%d, s%d, 1\ns_add_u32 s%d, s%d, s%d" % (sT1, sW, sRot, sG, sRot, sRot, sT1))
    elif rk == 4:
        a("s_and_b32 s%d, s%d, 1\ns_lshl_b32 s%d, s%d, 1\ns_add_u32 s%d, s%d, s%d\ns_add_u32 s%d, s%d, s%d\ns_and_b32 s%d, s%d, 15" % (sT1, sW, sRot, sG, sRot, sRot, sT1, sRot, sRot, sB, sRot, sRot))
    elif rk == 5:
        a("s_lshl_b32 s%d, s%d, 3\ns_add_u32 s%d, s%d, s%d\ns_and_b32 s%d, s%d, 15" % (sRot, sW, sRot, sRot, sB, sRot, sRot))
    elif rk == 6:
        a("s_lshl_b32 s%d, s%d, 3\ns_add_u32 s%d, s%d, s%d\ns_mul_i32 s%d, s%d, 3\ns_add_u32 s%d, s%d, s%d\ns_and_b32 s%d, s%d, 15" % (sRot, sW, sRot, sRot, sG, sT1, sB, sRot, sRot, sT1, sRot, sRot))
    elif rk == 7:
        a("s_and_b32 s%d, s%d, 1\ns_lshl_b32 s%d, s%d, 1\ns_lshl_b32 s%d, s%d, 2\ns_add_u32 s%d, s%d, s%d\ns_lshr_b32 s%d, s%d, 2\ns_add_u32 s%d, s%d, s%d\ns_and_b32 s%d, s%d, 15" % (sT1, sW, sT1, sT1, sRot, sG, sRot, sRot, sT1, sT1, sG, sRot, sRot, sT1, sRot, sRot))
    elif rk == 8:
        a("s_lshr_b32 s%d, s%d, 4\ns_xor_b32 s%d, s%d, s%d\ns_and_b32 s%d, s%d, 15" % (sT1, sT0, sRot, sT0, sT1, sRot, sRot))
    elif rk == 9:
        a("s_andn2_b32 s%d, 15, s%d" % (sRot, sT0))
    elif rk == 10:
        a("s_mul_i32 s%d, s%d, 3\ns_and_b32 s%d, s%d, 15" % (sRot, sT0, sRot, sRot))

def row_off(row):
    if 16 <= row < 24:
        return "s_add_u32 s%d, s%d, %d\ns_and_b32 s%d, s%d, 7\ns_lshl_b32 s%d, s%d, 14\ns_add_u32 s%d, s%d, s%d" % (sOff, sSet, row - 16, sOff, sOff, sOff, sOff, sOff, sOff, sBuf)
    r = row if row < 16 else row - 24
    return "s_add_u32 s%d, s%d, %d\ns_and_b32 s%d, s%d, 15\ns_lshl_b32 s%d, s%d, 13\ns_add_u32 s%d, s%d, s%d" % (sOff, sRot, r, sOff, sOff, sOff, sOff, sOff, sOff, sKV)

def issue_pieces(a, lst):
    cur = None
    out = []
    for (row, p) in lst:
        if row != cur: out.append(row_off(row)); cur = row
        isA = 16 <= row < 24
        out += kv_piece(sMK, (row % 3) * SETSZ + (p >> 3) * BLK, p & 7, p >> 3, sX if isA else sK, sXI if isA else sV)
    emit(a, out)

def gen_main(a, dbg=False):
    SCH = make_sched(int(opt("cap", 14)), 48, boost=int(opt("boost", 3)), alt=int(opt("alt", 0)), cap3=int(opt("cap3", 0)))
    p3_0 = [i for i, x in enumerate(SCH) if x["cons"] == 23][0] + 1
    while len(SCH) - p3_0 < 18:
        SCH.insert(p3_0, dict(cons=None, iss={0: [], 1: []}))
    NS = len(SCH)
    cstep = {x["cons"]: i for i, x in enumerate(SCH) if x["cons"] is not None}
    print("steps", NS, "p3_0", p3_0)
    ASELF = "noself" not in ARGS
    for st in SCH:
        st["aiss"] = None
        c = st["cons"]
        if ASELF and c is not None and 16 <= c < 24 and len(st["iss"][0]) == 16 and st["iss"][0][0][1] == 0:
            st["aiss"] = st["iss"][0][0][0]; st["iss"][0] = []
    B2 = "nob2" not in ARGS
    NF = int(opt("nf", 24))
    OLDR = "oldR" in ARGS
    LATEB = NF < 0
    ONE = "one" in ARGS
    def hasS(s_): return not (ONE and (1 <= s_ <= 13 or p3_0 + 3 <= s_ <= p3_0 + 15))
    def hasB(s_): return B2 and (s_ < 16 or p3_0 <= s_ < p3_0 + 18)

    kernel_begin(a, KNAME)
    a("s_cmp_lt_u32 s2, 256\ns_cbranch_scc1 L_start\ns_endpgm")
    a.label("L_start")
    a("s_load_dwordx16 s[%d:%d], s[0:1], 0" % (sPtr, sPtr + 15))
    a("s_load_dwordx8 s[%d:%d], s[0:1], 64" % (sPtr + 16, sPtr + 23))
    a("s_load_dwordx2 s[%d:%d], s[0:1], 96" % (sPtr + 24, sPtr + 25))
    a("s_getpc_b64 s[%d:%d]" % (sRet, sRet + 1))
    a.label("L_pc")
    a("s_sub_u32 s%d, s%d, L_pc-%s\ns_subb_u32 s%d, s%d, 0" % (sRet, sRet, KNAME, sRet + 1, sRet + 1))
    a("s_lshr_b32 s%d, s2, 3\ns_lshl_b32 s%d, s%d, 4\ns_sub_u32 s%d, s%d, 448" % (sT0, sT0, sT0, sT0, sT0))
    a("v_add_u32 v30, s%d, v0\nv_lshlrev_b32 v30, 7, v30" % sT0)
    a("v_and_b32 v31, 0x1f0, v0")
    a("v_cmp_eq_u32 s[%d:%d], 0x1c0, v31" % (sRet2, sRet2 + 1) if False else "v_cmp_eq_u32 vcc, 0x1c0, v31")
    a("s_mov_b64 s[%d:%d], vcc" % (sRet2, sRet2 + 1))
    a("v_cmp_gt_u32 vcc, L_code_end-%s, v30" % KNAME)
    a("s_and_b64 exec, vcc, s[%d:%d]" % (sRet2, sRet2 + 1))
    a("s_cbranch_execz L_nopf")
    a("global_load_dword v31, v30, s[%d:%d]" % (sRet, sRet + 1))
    a.label("L_nopf")
    a("s_mov_b64 exec, -1")
    a("v_lshrrev_b32 v14, 6, v0\ns_nop 0\nv_readfirstlane_b32 s%d, v14" % sWave)
    a("v_and_b32 v0, 63, v0")
    a("s_lshr_b32 s%d, s2, 3\ns_and_b32 s%d, s2, 7\ns_and_b32 s%d, s%d, 3" % (sB, sG, sW, sWave))
    a("v_lshrrev_b32 v14, 4, v0\nv_and_b32 v15, 15, v0")
    a("v_lshlrev_b32 v%d, 4, v0" % vLane16)
    a("v_bfe_u32 v16, v0, 2, 3")
    a("v_mul_u32_u24 v%d, %d, v16" % (vT, PIECE))
    a("v_lshrrev_b32 v16, 5, v0\nv_lshlrev_b32 v16, 9, v16")
    a("v_add_u32 v%d, v%d, v16" % (vT, vT))
    a("v_and_b32 v16, 3, v0\nv_lshlrev_b32 v16, 3, v16")
    a("v_add_u32 v%d, v%d, v16" % (vT, vT))
    a("v_lshrrev_b32 v16, 3, v15\nv_and_b32 v17, 3, v15\nv_lshl_add_u32 v17, v16, 2, v17")
    a("v_mul_u32_u24 v%d, %d, v17" % (vK, PIECE))
    a("v_bfe_u32 v17, v15, 2, 1\nv_xor_b32 v17, v17, v16\nv_lshlrev_b32 v17, 8, v17")
    a("v_add_u32 v%d, v%d, v17" % (vK, vK))
    a("v_lshl_add_u32 v%d, v14, 4, v%d" % (vK, vK))
    a("v_and_b32 v16, 6, v15\nv_xor_b32 v16, v16, v14\nv_lshlrev_b32 v16, 4, v16\nv_lshl_add_u32 v%d, v15, 7, v16" % vXr)
    a("v_lshrrev_b32 v16, 3, v0\nv_and_b32 v17, 6, v16\nv_and_b32 v18, 7, v0\nv_xor_b32 v17, v17, v18\nv_lshlrev_b32 v17, 4, v17\nv_lshl_add_u32 v%d, v16, 10, v17" % vgX)
    a("v_and_b32 v16, 1, v14\nv_lshrrev_b32 v17, 1, v14\nv_lshlrev_b32 v18, 4, v15")
    a("v_lshlrev_b32 v19, 12, v17\nv_add_u32 v19, v19, v18")
    a("v_lshl_add_u32 v%d, v16, 10, v19" % vgK0)
    a("v_lshlrev_b32 v20, 10, v16\nv_sub_u32 v20, 2048, v20\nv_add_u32 v%d, v19, v20" % vgK1)
    a("v_lshlrev_b32 v19, 4, v16\nv_lshl_add_u32 v19, v17, 3, v19")
    a("v_lshl_add_u32 v%d, v19, 8, v18" % vgV)
    a("v_lshl_add_u32 v%d, v19, 10, v18" % vgWo)
    a("v_lshlrev_b32 v19, 2, v16\nv_lshl_add_u32 v19, v17, 4, v19")
    a("v_lshl_add_u32 v19, v19, 13, v18")
    for j in range(8):
        a("v_add_u32 v%d, %d, v19" % (VWQ + j, ((j & 3) + 8 * (j >> 2)) * 8192 - (j & 3) * PIECE))
    a("s_mov_b32 s%d, 0x%x" % (sC, fbits(SCALE)))
    a("s_add_u32 s%d, s%d, s%d\ns_and_b32 s%d, s%d, 7" % (sH0, sB, sG, sH0, sH0))
    a("s_bfe_u32 s%d, s%d, 0x10003\ns_xor_b32 s%d, s%d, 1" % (sSp, sB, sSp + 1, sSp))
    a("s_mul_i32 s%d, s%d, 49152" % (sXB, sB))
    a("s_lshl_b32 s%d, s%d, 2\ns_add_u32 s%d, s%d, s%d" % (sT0, sG, sT0, sT0, sW))
    a("s_lshl_b32 s%d, s%d, 8" % (sWqB, sT0))
    a("s_and_b32 s%d, s%d, 1\ns_mul_i32 s%d, s%d, %d" % (sT1, sW, sT1, sT1, 2 * BLK))
    a("s_add_u32 s%d, s%d, %d\ns_add_u32 s%d, s%d, %d" % (sMW, sT1, WR, sMK, sT1, KVB))
    a("s_waitcnt lgkmcnt(0)")
    pA = dict(x=0, k=2, v=4, wq=6, wo=8); pB = dict(x=10, k=12, v=14, wq=16, wo=18)
    a("s_cmp_ge_u32 s%d, 4" % sWave)
    for nm, q, sz in (("wq", sWQ, SZ["Awq"]), ("x", sX, SZ["Ax"]), ("wo", sWO, SZ["Awo"])):
        a("s_cselect_b32 s%d, s%d, s%d" % (q, sPtr + pA[nm], sPtr + pB[nm]))
        a("s_cselect_b32 s%d, s%d, s%d" % (q + 1, sPtr + pA[nm] + 1, sPtr + pB[nm] + 1))
        a("s_mov_b32 s%d, 0x%x\ns_mov_b32 s%d, 0x20000" % (q + 2, sz, q + 3))
    for q, k_, sz in ((sK, 12, SZ["Bk"]), (sV, 14, SZ["Bv"]), (sWS, 24, SZ["ws"]), (sXI, 4, SZ["Av"])):
        a("s_mov_b32 s%d, s%d\ns_mov_b32 s%d, s%d\ns_mov_b32 s%d, 0x%x\ns_mov_b32 s%d, 0x20000" % (q, sPtr + k_, q + 1, sPtr + k_ + 1, q + 2, sz, q + 3))
    stamp(a, 0)
    a("s_cmp_ge_u32 s%d, 4\ns_cbranch_scc1 L_A" % sWave)
    a("s_cmp_ge_u32 s%d, 2\ns_cbranch_scc1 L_G1" % sWave)

    a("s_mul_i32 s%d, s%d, %d\ns_add_u32 s%d, s%d, s%d" % (sT0, sW, 3 * 8192, sXB, sXB, sT0))
    a("s_mul_i32 s%d, s%d, 3072" % (sN, sW))
    def xchunk(add, buf):
        out = ["s_add_u32 s%d, s%d, %d\ns_and_b32 s%d, s%d, 7" % (sChN, sCh, add, sChN, sChN)]
        for p in range(3): xp(out, sChN, p, sX, buf * XC)
        return out
    a("s_mov_b32 s%d, s%d" % (sCh, sH0))
    a("s_mov_b32 s%d, s%d\ns_add_u32 s%d, s%d, %d\ns_add_u32 s%d, s%d, %d" % (sSl0, sMW, sSl1, sMK, 2 * SETSZ, sSl2, sMW, BLK))
    for x in wq_off(sCh, 0, 0): a(x)
    d0 = wqT(sSl0, 0)
    emit(a, d0)
    for x in xchunk(0, 0): a(x)
    zero(a, ACC, 96)
    for x in wq_off(sCh, 0, 1): a(x)
    emit(a, wqT(sSl1, 0))
    for x in xchunk(1, 1): a(x)
    for x in wq_off(sCh, 1, 0): a(x)
    emit(a, wqT(sSl2, 0))
    for x in xchunk(2, 2): a(x)
    def fset(k): return (F, P) if k == 0 else (QF, QF + 32)
    def preads(k, bufc):
        fa, fb = fset(k)
        return ["ds_read_b128 %s, v%d offset:%d" % (v4(fb + qt * 4), vXa, bufc + qt * 2048) for qt in range(3)] + tr_reads(0, range(8), fa, vTc)
    for x in xaddr(0): a(x)
    a("v_add_u32 v%d, s%d, v%d" % (vTc, sSl0, vT))
    a("s_waitcnt vmcnt(22)\ns_barrier")
    for r in preads(0, 0): a(r)
    for x in xaddr(1): a(x)
    a("v_add_u32 v%d, s%d, v%d" % (vTc, sSl1, vT))
    a("s_waitcnt vmcnt(14)")
    vq = ["w0"] * 8 + ["x0"] * 3 + ["w1"] * 8 + ["x1"] * 3 + ["w2"] * 8 + ["x2"] * 3
    def vneed(tags):
        idx = max(i for i, t in enumerate(vq) if t in tags)
        return len(vq) - 1 - idx
    SL = (sSl0, sSl1, sSl2)
    for n in range(16):
        issue = []
        if n + 3 < 16:
            issue += wq_off(sCh, (n + 3) >> 1, (n + 3) & 1) + wqT(SL[n % 3], 0); vq += ["w%d" % (n + 3)] * 8
        if n & 1 and (n >> 1) + 3 < 8:
            c_ = (n >> 1) + 3
            issue += xchunk(c_, c_ & 3); vq += ["x%d" % c_] * 3
        a("s_waitcnt lgkmcnt(0)")
        if n & 1: a("s_barrier")
        fa, fb = fset(n & 1)
        main = [mf(acc(t, qt), fa + t * 4, fb + qt * 4, acc(t, qt)) for t in range(8) for qt in range(3)]
        tw = xaddr(n & 1) + ["v_add_u32 v%d, s%d, v%d" % (vTc, SL[(n + 2) % 3], vT)] if n < 14 else []
        weave(a, main, (preads((n + 1) & 1, (((n + 1) >> 1) & 3) * XC) if n < 15 else [], 0, 17), (issue, 0, 24), (tw, 18, 24))
        if n < 14:
            need = ["w%d" % (n + 2)]
            if not n & 1: need.append("x%d" % ((n >> 1) + 1))
            a("s_waitcnt vmcnt(%d)" % vneed(need))
    stamp(a, 1)
    q_final_T(a)
    if dbg: debug_dump(a, 0, True)
    b_kv_params(a)
    a("s_lshl_b32 s%d, s2, 17\ns_lshl_b32 s%d, s%d, 13\ns_add_u32 s%d, s%d, s%d" % (sBuf, sT0, sW, sBuf, sBuf, sT0))
    def a_rot(): a("s_mul_i32 s%d, s2, 3\ns_add_u32 s%d, s%d, s%d\ns_and_b32 s%d, s%d, 7" % (sSet, sSet, sSet, sB, sSet, sSet))
    a_rot()
    a("s_mov_b32 s%d, s%d\ns_mov_b32 s%d, s%d\ns_mov_b32 s%d, 0x%x" % (sX, sPtr + 2, sX + 1, sPtr + 3, sX + 2, SZ["Ak"]))
    a("s_sub_u32 s%d, s%d, %d" % (sT0, sMK, 2 * BLK))
    a("v_add_u32 v%d, s%d, v%d\nv_add_u32 v%d, s%d, v%d" % (vT, sT0, vT, vK, sT0, vK))
    a("s_lshl_b32 s%d, s%d, 19\ns_lshl_b32 s%d, s%d, 9\ns_add_u32 s%d, s%d, s%d" % (sWoB, sG, sT1, sW, sWoB, sWoB, sT1))
    a("s_and_b32 s%d, s%d, 7" % (sH0, sB))
    stamp(a, 2)
    att_init(a)
    def setdelta(row):
        d = SETSZ if row % 3 < 2 else -2 * SETSZ
        a("v_add_u32 v%d, %d, v%d\nv_add_u32 v%d, %d, v%d" % (vT, d, vT, vK, d, vK))
    def wo_off(add, hh, kbase=0):
        return ["s_add_u32 s%d, s%d, %d\ns_and_b32 s%d, s%d, 7" % (sOff, sH0, add, sOff, sOff),
                "s_lshl_b32 s%d, s%d, 15\ns_add_u32 s%d, s%d, s%d" % (sOff, sOff, sOff, sOff, sWoB)] + (["s_add_u32 s%d, s%d, %d" % (sOff, sOff, hh * 256 + kbase)] if hh or kbase else [])
    for s_ in range(p3_0):
        st = SCH[s_]
        if hasS(s_): a("s_barrier")
        sbst(a, s_)
        fk = 1 + 4 * (s_ - FS) if FS >= 0 and FS <= s_ <= FS + 1 else None
        if fk: stamp(a, fk, True)
        if FS >= 0 and s_ == FS + 2: stamp(a, 9, True)
        n_iss = len(st["iss"][0])
        c = st["cons"]
        if c is not None and c < 16:
            a("s_call_b64 s[%d:%d], L_tile" % (sRet2, sRet2 + 1))
            setdelta(c)
        if fk: stamp(a, fk + 1, True)
        if hasB(s_): a("s_barrier")
        issue_pieces(a, st["iss"][0])
        if fk: stamp(a, fk + 2, True)
        if c == 15: stamp(a, 3)
        s15 = max(cstep[15], 16)
        if s_ == cstep[15] + 1:
            o_final(a)
            if dbg: debug_dump(a, 1, True)
        if s_ == s15 + 2:
            a("s_mul_i32 s%d, s%d, 12288" % (sT0, sW))
            publish(a, sT0)
            a("s_waitcnt lgkmcnt(0)")
            zero(a, ACC, 96)
        if s_ == s15 + 3:
            zero(a, ACC + 96, 96)
            a("v_subrev_u32 v%d, s%d, v%d" % (vTc, sMK, vT))
            a("s_sub_u32 s%d, s%d, %d" % (sT0, sMW, SETSZ - 2 * BLK))
            a("v_add_u32 v%d, s%d, v%d" % (vTc, sT0, vTc))
        if s_ == p3_0 - 2:
            emit(a, wo_off(0, 0) + woT(sMW, 0) + wo_off(0, 1) + woT(sMW, BLK)); n_iss += 16
        if dbg and s_ == cstep[15] + 1: n_iss = 0
        a("s_waitcnt vmcnt(%d)" % n_iss)
        if fk: stamp(a, fk + 3, True)
    stamp(a, 4)
    a("s_mov_b32 s%d, 0" % sCnt)
    a.label("L_G0_o")
    for hh in range(2):
        if ONE: cond_lt(a, sCnt, 2 - hh, lambda: a("s_barrier"))
        else: a("s_barrier")
        if hh == 0:
            a("s_add_u32 s%d, s%d, s%d\ns_and_b32 s%d, s%d, 7\ns_mul_i32 s%d, s%d, 3072" % (sT0, sH0, sCnt, sT0, sT0, sT0, sT0))
            a("v_add_u32 v%d, s%d, v%d" % (vXa, sT0, vLane16))
        def iss():
            def body():
                a("s_add_u32 s%d, s%d, s%d\ns_add_u32 s%d, s%d, 1\ns_and_b32 s%d, s%d, 7" % (sOff, sH0, sCnt, sOff, sOff, sOff, sOff))
                a("s_lshl_b32 s%d, s%d, 15\ns_add_u32 s%d, s%d, s%d" % (sOff, sOff, sOff, sOff, sWoB))
                if hh: a("s_add_u32 s%d, s%d, 256" % (sOff, sOff))
                emit(a, woT(sMW, hh * BLK))
            fs0(1)
            cond(a, sCnt, 7, body, eq=False)
            fs0(2)
            if B2 and not LATEB: a("s_barrier")
        def fs0(k):
            F3 = int(opt("f3", -1))
            if F3 >= 0: cond(a, sCnt, F3 // 2, lambda: stamp(a, 1 + 4 * hh + k, True))
        fs0(0)
        projT(a, (0, 1024, 2048), hh * BLK, vTc, iss, lambda t, qt: acc(t, qt) + 96 * hh, AF0, BF0)
        if B2 and LATEB: a("s_barrier")
        if hh == 0: cond(a, sCnt, 7, lambda: a("s_waitcnt vmcnt(0)"))
        a("s_waitcnt vmcnt(8)")
    a("s_add_u32 s%d, s%d, 1\ns_cmp_lt_u32 s%d, 8\ns_cbranch_scc1 L_G0_o" % (sCnt, sCnt, sCnt))
    a("s_nop 7")
    for s in range(4):
        for qt in range(3):
            d = AF0 + (s * 3 + qt) * 4
            for h2 in range(2):
                src = acc(2 * s + h2, qt) + 96
                a("v_cvt_pk_bf16_f32 v%d, v%d, v%d" % (d + 2 * h2, src, src + 1))
                a("v_cvt_pk_bf16_f32 v%d, v%d, v%d" % (d + 2 * h2 + 1, src + 2, src + 3))
    def tail_params(cbexpr):
        a(cbexpr)
        a("s_lshl_b32 s%d, s%d, 19\ns_lshl_b32 s%d, s%d, 8\ns_add_u32 s%d, s%d, s%d\ns_add_u32 s%d, s%d, %d" % (sWoB, sG, sT1, sChN, sWoB, sWoB, sT1, sWoB, sWoB, 256 * 1024))
        a("s_mul_i32 s%d, s%d, %d\ns_add_u32 s%d, s%d, %d" % (sMW, sW, BLK, sMW, sMW, KVB))
    tail_params("s_lshl_b32 s%d, s%d, 1" % (sChN, sW))
    TS = (1, 2, 0)
    def tail_blk(j): return wo_off(j, 0) + woT(sMW, TS[j % 3] * SETSZ)
    for s_ in range(p3_0 + 16, NS):
        a("s_barrier")
        if s_ == p3_0 + 16:
            a("s_mul_i32 s%d, s%d, 12288\ns_add_u32 s%d, s%d, %d" % (sT0, sW, sT0, sT0, HO))
            publish(a, sT0, AF0)
            a("s_waitcnt lgkmcnt(0)")
        if "xtlb" in ARGS and s_ == p3_0 + 16:
            a("v_mov_b32 v%d, 0\ns_mov_b64 exec, 1" % T)
            for br in range(2):
                a("s_add_u32 s%d, s%d, %d\ns_mul_i32 s%d, s%d, %d" % (sT0, sB, 32 * br, sT0, sT0, 48 * 8192))
                a("buffer_load_dword v%d, v%d, %s, s%d offen sc1" % (T + 1, T, srd(sWS), sT0))
            a("s_mov_b32 s%d, s%d\ns_mov_b32 s%d, s%d\ns_mov_b32 s%d, 0x%x\ns_mov_b32 s%d, 0x20000" % (sXI, sPtr + 20, sXI + 1, sPtr + 21, sXI + 2, SZ["out"], sXI + 3))
            a("s_mul_i32 s%d, s%d, 98304" % (sT0, sB))
            a("buffer_load_dword v%d, v%d, %s, s%d offen sc1" % (T + 1, T, srd(sXI), sT0))
            a("s_mov_b64 exec, -1")
        for j in range(2):
            if s_ == max(cstep[37 + j] + 1, p3_0 + 16): emit(a, tail_blk(j))
        if hasB(s_): a("s_barrier")
    stamp(a, 5)
    def p3_addr():
        a("v_bfe_u32 v%d, v0, 2, 3" % T)
        a("v_mul_u32_u24 v%d, %d, v%d" % (vgK0, PIECE, T))
        a("v_lshrrev_b32 v%d, 5, v0\nv_lshl_add_u32 v%d, v%d, 9, v%d" % (T, vgK0, T, vgK0))
        a("v_and_b32 v%d, 3, v0\nv_lshl_add_u32 v%d, v%d, 3, v%d" % (T, vgK0, T, vgK0))
        a("v_add_u32 v%d, s%d, v%d" % (vgK0, sMW, vgK0))
        a("v_add_u32 v%d, %d, v%d" % (vgK1, 2 * SETSZ, vgK0))
    p3_addr()
    a.label("L_P3")
    def oad(j):
        return ["s_add_u32 s%d, s%d, %d\ns_and_b32 s%d, s%d, 7" % (sT0, sH0, j, sT0, sT0), "s_mul_i32 s%d, s%d, 3072" % (sT0, sT0),
                "v_add_u32 v%d, s%d, v%d" % (vXa, sT0, vLane16)]
    def treads(j):
        fa, fb = fset(j & 1)
        se = TS[j % 3]
        return ["ds_read_b128 %s, v%d offset:%d" % (v4(fb + qt * 4), vXa, qt * 1024) for qt in range(3)] + tr_reads(SETSZ * (se & 1), range(8), fa, vgK0 if se < 2 else vgK1)
    for x in oad(0): a(x)
    a("s_waitcnt vmcnt(8) lgkmcnt(0)\ns_barrier")
    stamp(a, 6)
    for r in treads(0): a(r)
    for x in oad(1): a(x)
    emit(a, tail_blk(2))
    a("s_waitcnt vmcnt(8)")
    for j in range(8):
        issue = tail_blk(j + 3) if j + 3 < 8 else []
        a("s_waitcnt lgkmcnt(0)")
        fa, fb = fset(j & 1)
        main = [mf(acc(t, qt), fa + t * 4, fb + qt * 4, acc(t, qt)) for t in range(8) for qt in range(3)]
        weave(a, main, (treads(j + 1) if j < 7 else [], 0, 17), (issue, 0, 24), (oad(j + 2) if j < 6 else [], 18, 24))
        if j < 6: a("s_waitcnt vmcnt(%d)" % (8 if issue else 0))
        if j == int(opt("abar", -1)): a("s_barrier")
    stamp(a, 7)
    store_partial(a, 1, sChN)
    own_write(a, 1)
    tail(a, True)

    a.label("L_G1")
    b_kv_params(a, -2)
    if "notlb" not in ARGS:
        a("v_mov_b32 v26, 0\ns_mov_b64 exec, 1")
        a("buffer_load_dword v27, v26, %s, s%d offen nt" % (srd(sK), sKV))
        a("buffer_load_dword v27, v26, %s, s%d offen nt" % (srd(sV), sKV))
        a("s_lshl_b32 s%d, s2, 17" % sT0)
        a("buffer_load_dword v27, v26, %s, s%d offen nt" % (srd(sXI), sT0))
        a("s_mov_b32 s%d, s%d\ns_mov_b32 s%d, s%d" % (sXI, sPtr + 2, sXI + 1, sPtr + 3))
        a("buffer_load_dword v27, v26, %s, s%d offen nt" % (srd(sXI), sT0))
        a("s_lshl_b32 s%d, s%d, 19" % (sT0, sG))
        a("buffer_load_dword v27, v26, %s, s%d offen" % (srd(sWO), sT0))
        a("s_mov_b64 exec, -1")
    if "wqpf" in ARGS:
        def pfB():
            a("v_lshrrev_b32 v26, 2, v0\nv_and_b32 v28, 3, v0\nv_lshlrev_b32 v28, 7, v28\nv_lshl_add_u32 v26, v26, 13, v28")
            a("s_lshl_b32 s%d, s%d, 17\ns_lshl_b32 s%d, s%d, 10\ns_add_u32 s%d, s%d, s%d\ns_add_u32 s%d, s%d, 512" % (sT0, sB, sT1, sG, sT0, sT0, sT1, sT0, sT0))
            a("buffer_load_dword v27, v26, %s, s%d offen" % (srd(sWQ), sT0))
        cond(a, sW, 2, pfB)
    rows_at = [int(c) for c in opt("pf", "579")]
    for i_ in range(9):
        a("s_barrier")
        for r_ in range(3):
            if rows_at[r_] == i_: issue_pieces(a, [(r_, p) for p in range(16)])
        if i_ == 0:
            a("s_waitcnt vmcnt(0)")
            zero(a, ACC, 96)
    assert rows_at[2] >= 7
    REV = "norev" not in ARGS
    a("s_add_u32 s%d, s%d, %d\ns_and_b32 s%d, s%d, 7" % (sCh, sH0, 7 if REV else 6, sCh, sCh))
    for k in range(2):
        for x in wq_off(sCh, 0, k): a(x)
        emit(a, wqT(sMW, k * BLK))
    late_rows = [r_ for r_ in range(3) if rows_at[r_] == 9]
    a("s_waitcnt vmcnt(32)")
    assert len(late_rows) <= 1
    for r_ in late_rows: issue_pieces(a, [(r_, p) for p in range(16)])
    a("s_and_b32 s%d, s%d, 1\ns_mul_i32 s%d, s%d, %d\ns_add_u32 s%d, s%d, s%d" % (sT1, sW, sT0, sT1, 3 * 8192, sXB, sXB, sT0))
    a("s_mul_i32 s%d, s%d, 3072" % (sWoB, sT1))
    a("v_add_u32 v%d, s%d, v%d" % (vTc, sMW, vT))
    a("s_mov_b32 s%d, %d\ns_mov_b32 s%d, 0" % (sBuf, (3 if REV else 2) * XC, sCnt))
    assert 0 not in late_rows
    a("s_waitcnt vmcnt(%d)" % (8 + 16 * len(late_rows)))
    def qloop(lab, regpath):
        a.label(lab)
        inc = 7 if (REV and not regpath) else 1
        for par in range(2):
            if ONE:
                if par == 0: cond(a, sCnt, 0, lambda: a("s_barrier"))
                cond(a, sCnt, 7, lambda: a("s_barrier"))
            else: a("s_barrier")
            def fst(k):
                if FS >= 0: cond(a, sCnt, FS // 2, lambda: stamp(a, 1 + 4 * par + k, True))
            fst(0)
            for x in xaddr(par, sBuf): a(x)
            xlate = "xlate" in ARGS
            def xs():
                a("s_xor_b32 s%d, s%d, %d\ns_add_u32 s%d, s%d, s%d" % (sN, sBuf, XC if regpath else (2 * XC) ^ (3 * XC), sN, sN, sWoB))
                out = ["s_add_u32 s%d, s%d, %d\ns_and_b32 s%d, s%d, 7" % (sChN, sCh, inc, sChN, sChN)]
                if regpath:
                    xp(out, sChN, 0, sX, 0, XNT)
                    for x in out: a(x)
                    o2 = []; xp(o2, sChN, 4, sX, 0, XNT)
                    cond_lt(a, sW, 2, lambda: a(o2[0]))
                else:
                    for p in range(3): xp(out, sChN, p, sX, 0, XNT)
                    for x in out: a(x)
            def xcond():
                l = a.newlabel("L_nx")
                a("s_sub_u32 s%d, s%d, 1\ns_cmp_lt_u32 s%d, 6\ns_cbranch_scc0 %s" % (sT0, sCnt, sT0, l))
                xs()
                a.label(l)
            def iss():
                if par == 0 and not xlate: xcond()
                def body():
                    for x in wq_off(sCh, inc, par): a(x)
                    emit(a, wqR(LB[par]) if regpath else wqT(sMW, par * BLK))
                fst(1)
                cond(a, sCnt, 7, body, eq=False)
                fst(2)
                if not LATEB: barB()
            def barB():
                if B2: a("s_barrier")
                if par == 0 and xlate: xcond()
            if regpath and OLDR: projR(a, (0, 2048, 4096), LB[par], iss)
            elif regpath: projR2(a, (0, 2048, 4096), QF, (232, 236, 240), vXa, iss, NF, barB)
            else:
                projT(a, (0, 2048, 4096), par * BLK, vTc, iss)
                if LATEB: barB()
            if par == 0 and xlate:
                l1_ = a.newlabel("L_v"); l2_ = a.newlabel("L_v")
                a("s_sub_u32 s%d, s%d, 1\ns_cmp_lt_u32 s%d, 6\ns_cbranch_scc0 %s" % (sT0, sCnt, sT0, l1_))
                a("s_waitcnt vmcnt(%d)\ns_branch %s" % (9 if regpath else 11, l2_))
                a.label(l1_)
                cond(a, sCnt, 7, lambda: a("s_waitcnt vmcnt(0)"))
                a("s_waitcnt vmcnt(8)")
                a.label(l2_)
            else:
                if par == 0: cond(a, sCnt, 7, lambda: a("s_waitcnt vmcnt(0)"))
                a("s_waitcnt vmcnt(8)")
            if regpath and not OLDR:
                if par == 0: perm_all(a, LB[1], QF)
                else: cond(a, sCnt, 7, lambda: perm_all(a, LB[0], QF), eq=False)
            fst(3)
        a("s_add_u32 s%d, s%d, %d\ns_and_b32 s%d, s%d, 7" % (sCh, sCh, inc, sCh, sCh))
        a("s_xor_b32 s%d, s%d, %d" % (sBuf, sBuf, XC if regpath else (2 * XC) ^ (3 * XC)))
        a("s_add_u32 s%d, s%d, 1\ns_cmp_lt_u32 s%d, 8\ns_cbranch_scc1 %s" % (sCnt, sCnt, sCnt, lab))
    qloop("L_G1_q", False)
    stamp(a, 1)
    assert not SCH[16]["iss"][1] and not SCH[17]["iss"][1] and not SCH[18]["iss"][1]
    a("s_barrier")
    q_final_T(a)
    if dbg: debug_dump(a, 0, True)
    a("s_barrier")
    att_init(a)
    def chk():
        lp = a.newlabel("L_st"); le = a.newlabel("L_se")
        dbg_srd(a)
        a("s_lshl_b32 s%d, s%d, 3" % (sT1, sB))
        a("v_mov_b32 v%d, 0\ns_mov_b32 s%d, 200000" % (T + 2, sT2))
        a.label(lp)
        a("s_sub_u32 s%d, s%d, 1\ns_cbranch_scc1 %s" % (sT2, sT2, le))
        a("buffer_load_dword v%d, v%d, %s, s%d offen sc1" % (T + 3, T + 2, srd(sXI), sT1))
        a("s_waitcnt vmcnt(0)")
        a("v_readfirstlane_b32 s%d, v%d" % (sT0, T + 3))
        a("s_and_b32 s%d, s%d, 7\ns_cbranch_scc0 %s" % (sT0, sT0, le))
        a("s_sleep 8\ns_branch %s" % lp)
        a.label(le)
    cond(a, sW, 2, chk)
    b_kv_params(a)
    a("s_sub_u32 s%d, s%d, %d" % (sT0, sMK, 2 * BLK))
    a("v_add_u32 v%d, s%d, v%d\nv_add_u32 v%d, s%d, v%d" % (vT, sT0, vT, vK, sT0, vK))
    a("s_and_b32 s%d, s%d, 7" % (sH0, sB))
    tail_params("s_lshl_b32 s%d, s%d, 1\ns_sub_u32 s%d, s%d, 3" % (sChN, sW, sChN, sChN))
    stamp(a, 2)
    for s_ in range(18, NS):
        st = SCH[s_]
        if hasS(s_): a("s_barrier")
        sbst(a, s_)
        F3 = int(opt("f3", -1))
        fk = 1 + 4 * (s_ - p3_0 - F3) if F3 >= 0 and F3 <= s_ - p3_0 <= F3 + 1 else None
        if fk: stamp(a, fk, True)
        if F3 >= 0 and s_ == p3_0 + F3 + 2: stamp(a, 9, True)
        c = st["cons"]
        n_iss = len(st["iss"][1])
        wop = int(opt("wopf", 19))
        if s_ in (wop, wop + 1):
            k_ = 18 if s_ == wop else 8
            a("s_mov_b32 s%d, s%d\ns_mov_b32 s%d, s%d\ns_mov_b32 s%d, 0x%x\ns_mov_b32 s%d, 0x20000" % (sXI, sPtr + k_, sXI + 1, sPtr + k_ + 1, sXI + 2, SZ["Awo"], sXI + 3))
            a("s_lshl_b32 s%d, s%d, 1\ns_and_b32 s%d, s%d, 1\ns_add_u32 s%d, s%d, s%d\ns_lshl_b32 s%d, s%d, 13" % (sT0, sB, sT1, sW, sT0, sT0, sT1, sT0, sT0))
            a("s_lshl_b32 s%d, s%d, 19\ns_add_u32 s%d, s%d, s%d" % (sT1, sG, sT0, sT0, sT1))
            a("v_lshlrev_b32 v%d, 7, v0" % T)
            a("buffer_load_dword v%d, v%d, %s, s%d offen" % (T + 1, T, srd(sXI), sT0))
            n_iss += 1
        for j in range(2):
            if s_ == max(cstep[37 + j] + 1, p3_0 + 16): emit(a, tail_blk(j)); n_iss += 8
        if c is not None and c >= 24:
            if c == 24: stamp(a, 4)
            if c == 39:
                assert not st["iss"][1]
                p3_addr()
            a("s_call_b64 s[%d:%d], L_tile" % (sRet2, sRet2 + 1))
            if c < 39: setdelta(c)
        if fk: stamp(a, fk + 1, True)
        if hasB(s_): a("s_barrier")
        if fk: stamp(a, fk + 2, True)
        issue_pieces(a, st["iss"][1])
        if fk: stamp(a, fk + 3, True)
        if s_ < cstep[39]: a("s_waitcnt vmcnt(%d)" % n_iss)
    stamp(a, 5)
    o_final(a)
    if dbg: debug_dump(a, 1, True)
    a("s_and_b32 s%d, s%d, 1\ns_mul_i32 s%d, s%d, 12288\ns_add_u32 s%d, s%d, %d" % (sT0, sW, sT0, sT0, sT1, sT0, HO))
    a("v_add_u32 v%d, s%d, v%d" % (vTmpB, sT1, vLane16))
    HB_ = F
    for i in range(12): a("ds_read_b128 %s, v%d offset:%d" % (v4(HB_ + 4 * i), vTmpB, i * 1024))
    publish(a, sT0)
    for s in range(4):
        a("s_waitcnt lgkmcnt(%d)" % min(15, 12 + 9 - 3 * s))
        for qt in range(3):
            d = HB_ + (s * 3 + qt) * 4
            for h2 in range(2):
                dst = acc(2 * s + h2, qt)
                for e in range(2):
                    a("v_lshlrev_b32 v%d, 16, v%d" % (dst + 2 * e, d + 2 * h2 + e))
                    a("v_and_b32 v%d, 0xffff0000, v%d" % (dst + 2 * e + 1, d + 2 * h2 + e))
    a("s_branch L_P3")

    a.label("L_A")
    def g0():
        a("v_mov_b32 v16, %d\nv_mov_b32 v18, 0\nv_mov_b32 v19, 0\nv_mov_b32 v21, 0" % SYNC)
        a("s_lshl_b32 s%d, s2, 7\ns_add_u32 s%d, s%d, 0x%x" % (sT1, sT1, sT1, GO))
        a("buffer_load_dword v20, v18, %s, s%d offen sc1" % (srd(sWS), sT1))
        a("buffer_load_dword v28, v18, %s, s%d offen offset:4 sc1" % (srd(sWS), sT1))
        a("v_mov_b32 v26, 0\nv_mov_b32 v27, 0\nv_mov_b32 v29, 0")
        dbg_srd(a)
        a("s_lshl_b32 s%d, s%d, 3" % (sT1, sB))
        a("v_mov_b32 v22, 1")
        a("s_waitcnt vmcnt(0)")
        a("ds_write_b128 v16, v[18:21]\nds_write_b128 v16, v[26:29] offset:16")
        a("s_mov_b64 exec, 1")
        a("buffer_atomic_add v22, v18, %s, s%d offen sc1" % (srd(sXI), sT1))
        a("s_mov_b64 exec, -1")
        a("s_waitcnt lgkmcnt(0)")
    cond(a, sW, 0, g0)
    a("s_mov_b32 s%d, 0x05040100\ns_mov_b32 s%d, 0x07060302" % (sSelLo, sSelHi))
    a("v_lshrrev_b32 v24, 4, v0\nv_and_b32 v25, 15, v0\nv_lshlrev_b32 v25, 4, v25")
    a("v_lshl_add_u32 v%d, v24, 16, v25\nv_lshl_add_u32 v%d, v24, 12, v25" % (vgWq, vgWo))
    a("s_lshl_b32 s%d, s%d, 13\ns_add_u32 s%d, s%d, s%d" % (sT0, sW, sXB, sXB, sT0))
    a("s_lshl_b32 s%d, s%d, 10" % (sWoB, sW))
    a("s_mov_b32 s%d, s%d" % (sCh, sH0))
    if "notlb" not in ARGS:
        a("v_mov_b32 v26, 0\ns_mov_b64 exec, 1")
        a("buffer_load_dword v27, v26, %s, s%d offen" % (srd(sX), sXB))
        a("s_lshl_b32 s%d, s%d, 20" % (sT0, sW))
        a("buffer_load_dword v27, v26, %s, s%d offen" % (srd(sWQ), sT0))
        a("s_lshl_b32 s%d, s%d, 19" % (sT0, sG))
        a("buffer_load_dword v27, v26, %s, s%d offen" % (srd(sWO), sT0))
        a("s_mov_b64 exec, -1")
    if "wqpf" in ARGS:
        def pfA():
            a("v_lshrrev_b32 v26, 3, v0\nv_and_b32 v28, 7, v0\nv_lshlrev_b32 v28, 7, v28\nv_lshl_add_u32 v26, v26, 13, v28")
            a("s_lshl_b32 s%d, s%d, 1\ns_and_b32 s%d, s%d, 1\ns_add_u32 s%d, s%d, s%d\ns_lshl_b32 s%d, s%d, 16" % (sT0, sB, sT1, sW, sT0, sT0, sT1, sT0, sT0))
            a("s_lshl_b32 s%d, s%d, 10\ns_add_u32 s%d, s%d, s%d" % (sT1, sG, sT0, sT0, sT1))
            a("buffer_load_dword v27, v26, %s, s%d offen" % (srd(sWQ), sT0))
        cond_lt(a, sW, 2, pfA)
    aw = int(opt("aw", 2))
    for i_ in range(9):
        a("s_barrier")
        if i_ == 1:
            a("s_waitcnt vmcnt(0)")
            zero(a, ACC, 96)
        if i_ == int(opt("xt", -1)):
            def touch():
                a("v_lshlrev_b32 v%d, 7, v0" % T)
                a("s_lshl_b32 s%d, s%d, 13\ns_add_u32 s%d, s%d, s%d" % (sT0, sW, sT0, sT0, sXB))
                a("buffer_load_dword v%d, v%d, %s, s%d offen" % (T + 1, T, srd(sX), sT0))
                a("s_add_u32 s%d, s%d, 8192" % (sT0, sT0))
                a("buffer_load_dword v%d, v%d, %s, s%d offen" % (T + 2, T, srd(sX), sT0))
            cond(a, sW, 3, touch, eq=False)
        if i_ == 6:
            for c_ in range(2):
                a("s_add_u32 s%d, s%d, %d" % (sN, sWoB, c_ * XC))
                out = ["s_add_u32 s%d, s%d, %d\ns_and_b32 s%d, s%d, 7" % (sChN, sCh, c_, sChN, sChN)]
                xp(out, sChN, 0, sX, 0, XNT)
                for x in out: a(x)
                o2 = []; xp(o2, sChN, 4, sX, 0, XNT)
                cond_lt(a, sW, 2, lambda: a(o2[0]))
        if i_ == aw:
            for k in range(2):
                for x in wq_off(sCh, 0, k): a(x)
                emit(a, wqR(LB[k]))
    a("s_mov_b32 s%d, 0\ns_mov_b32 s%d, 0" % (sBuf, sCnt))
    a("s_waitcnt vmcnt(8)")
    perm_all(a, LB[0], QF)
    qloop("L_A_q", True)
    stamp(a, 1)
    a0 = 16
    if cstep[16] > 16:
        a("s_barrier"); a0 = 17
    q_final_R(a)
    if dbg: debug_dump(a, 0, False)
    att_init(a)
    a("v_add_u32 v%d, %d, v%d\nv_add_u32 v%d, %d, v%d" % (vT, KVB + SETSZ, vT, vK, KVB + SETSZ, vK))
    a("s_lshl_b32 s%d, s%d, 19\ns_lshl_b32 s%d, s%d, 8\ns_add_u32 s%d, s%d, s%d" % (sWoB, sG, sT1, sW, sWoB, sWoB, sT1))
    a("s_and_b32 s%d, s%d, 3" % (sH0, sB))
    a("s_lshr_b32 s%d, s%d, 2" % (sSp, sB))
    a("s_and_b32 s%d, s%d, 7\ns_mul_i32 s%d, s%d, 3072" % (sChN, sB, sChN, sChN))
    a("s_lshl_b32 s%d, s2, 17\ns_lshr_b32 s%d, s%d, 1\ns_lshl_b32 s%d, s%d, 13\ns_add_u32 s%d, s%d, s%d" % (sBuf, sT0, sW, sT0, sT0, sBuf, sBuf, sT0))
    a_rot()
    a("s_mul_i32 s%d, s%d, %d\ns_add_u32 s%d, s%d, %d" % (sMK, sW, BLK, sMK, sMK, KVB))
    a("s_and_b32 s%d, s%d, 1\ns_cmp_eq_u32 s%d, 1" % (sT0, sW, sT0))
    a("s_cselect_b32 s%d, s%d, s%d\ns_cselect_b32 s%d, s%d, s%d\ns_mov_b32 s%d, 0x%x" % (sK, sPtr + 4, sPtr + 2, sK + 1, sPtr + 5, sPtr + 3, sK + 2, SZ["Ak"]))
    a("s_cselect_b64 vcc, -1, 0")
    a("v_cndmask_b32 v%d, v%d, v%d, vcc\nv_cndmask_b32 v%d, v%d, v%d, vcc" % (vgK0, vgK0, vgV, vgK1, vgK1, vgV))
    stamp(a, 2)
    for s_ in range(a0, p3_0):
        a("s_barrier")
        c = SCH[s_]["cons"]
        row = SCH[s_]["aiss"]
        if row is not None:
            for r in k_reads(0, (0,)): a(r)
            out = [row_off(row)]
            for j in range(8):
                out += ["s_add_u32 m0, s%d, %d" % (sMK, (row % 3) * SETSZ + j * (PIECE - 256)),
                        "buffer_load_dwordx4 v%d, %s, s%d offen offset:%d nt lds" % (vgK0 if j < 4 else vgK1, srd(sK), sOff, j * 256)]
            emit(a, out)
            a("s_call_b64 s[%d:%d], L_att1" % (sRet2, sRet2 + 1))
            a("s_waitcnt vmcnt(8)")
        elif c is not None and 16 <= c < 24:
            a("s_call_b64 s[%d:%d], L_att" % (sRet2, sRet2 + 1))
            a("s_waitcnt vmcnt(0)")
        if c is not None and 16 <= c < 24:
            if c < 23: setdelta(c)
            if c == 19 and opt("pause"): a("s_sleep %s" % opt("pause"))
            if opt("slowa"): a("s_sleep %s" % opt("slowa"))
    stamp(a, 3)
    def ks_calc(jreg, jadd):
        a("s_add_u32 s%d, s%d, %d" % (sT2, jreg, jadd))
        a("s_lshr_b32 s%d, s%d, 2\ns_add_u32 s%d, s%d, s%d\ns_and_b32 s%d, s%d, 3" % (sT0, sT2, sT0, sT0, sH0, sT0, sT0))
        a("s_add_u32 s%d, s%d, s%d\ns_and_b32 s%d, s%d, 3" % (sT1, sT2, sSp, sT1, sT1))
    def wo_issue(jadd, lb):
        ks_calc(sCnt, jadd)
        a("s_lshl_b32 s%d, s%d, 2\ns_add_u32 s%d, s%d, s%d\ns_lshl_b32 s%d, s%d, 15\ns_add_u32 s%d, s%d, s%d" % (sOff, sT0, sOff, sOff, sT1, sOff, sOff, sOff, sOff, sWoB))
        emit(a, woR(lb))
    def jit(jadd, bufY):
        ks_calc(sCnt, jadd)
        a("s_mov_b32 s%d, %s" % (sN, ("s%d" % sChN) if bufY else str(SP)))
        a("s_call_b64 s[%d:%d], L_jit" % (sRet2, sRet2 + 1))
    a("s_barrier")
    a("v_mov_b32 v2, v%d" % vgWo)
    a("s_mov_b32 s%d, 0" % sCnt)
    wo_issue(0, LB[0]); wo_issue(1, LB[1])
    if B2: a("s_barrier")
    o_final(a)
    if dbg: debug_dump(a, 1, False)
    stamp(a, 4)
    a("s_barrier")
    jit(0, False)
    if B2: a("s_barrier")
    zero(a, ACC, 96)
    a("s_waitcnt vmcnt(0)")
    perm_all(a, LB[0], FR)
    a.label("L_A_o")
    for par in range(2):
        if ONE:
            if par == 0: cond(a, sCnt, 0, lambda: a("s_barrier"))
            cond(a, sCnt, 14, lambda: a("s_barrier"))
        else: a("s_barrier")
        a("v_add_u32 v3, %s, v%d" % (("s%d" % sChN) if par else str(SP), vLane16))
        def dojit():
            if par == 0:
                a("s_cmp_eq_u32 s%d, 14\ns_cselect_b32 s%d, %d, s%d" % (sCnt, sChN, WR + 24576, sChN))
                jit(1, True)
            else: cond(a, sCnt, 14, lambda: jit(2, False), eq=False)
        JL = "jitlate" in ARGS
        if not LATEB and not JL: dojit()
        def fsA(k):
            F3 = int(opt("f3", -1))
            if F3 >= 0: cond(a, sCnt, F3 - 2, lambda: stamp(a, 1 + 4 * par + k, True))
        fsA(0)
        def issA():
            fsA(1)
            cond(a, sCnt, 14, lambda: wo_issue(2 + par, LB[par]), eq=False)
            fsA(2)
            if B2 and not LATEB: a("s_barrier")
            if JL: dojit()
        def barA():
            if B2: a("s_barrier")
            dojit()
        if OLDR:
            a("v_mov_b32 v%d, v3" % vXa)
            projR(a, (0, 1024, 2048), LB[par], issA)
        else: projR2(a, (0, 1024, 2048), FR, (248, 252, 4), 3, issA, NF, barA)
        if par == 0: cond(a, sCnt, 14, lambda: a("s_waitcnt vmcnt(0)"))
        a("s_waitcnt vmcnt(8)")
        if OLDR: pass
        elif par == 0: perm_all(a, LB[1], FR)
        else: cond(a, sCnt, 14, lambda: perm_all(a, LB[0], FR), eq=False)
        fsA(3)
    a("s_add_u32 s%d, s%d, 2\ns_cmp_lt_u32 s%d, 16\ns_cbranch_scc1 L_A_o" % (sCnt, sCnt, sCnt))
    stamp(a, 5)
    a("v_lshrrev_b32 v0, 4, v%d" % vLane16)
    ast = int(opt("ast", 0))
    if ast == 0: store_partial(a, 0, sW)
    for s_ in range(p3_0 + 18, NS): a("s_barrier")
    a("s_barrier")
    if ast == 1: store_partial(a, 0, sW)
    if int(opt("abar", -1)) >= 0: a("s_barrier")
    if ast == 2: store_partial(a, 0, sW)
    own_write(a, 0)
    tail(a, False)

    a.label("L_tile")
    a("s_setprio 1")
    for r in k_reads(2 * BLK, (0,)): a(r)
    a("s_branch L_att2")
    a.label("L_att")
    for r in k_reads(0, (0,)): a(r)
    a.label("L_att1")
    a("s_setprio 1")
    tile_fast(a, BLK, 2 * BLK)
    a.label("L_att2")
    tile_fast(a, 3 * BLK, None)
    a("s_setprio 0")
    a("s_setpc_b64 s[%d:%d]" % (sRet2, sRet2 + 1))
    a.label("L_jit")
    a("s_cmp_eq_u32 s%d, s%d\ns_cbranch_scc0 L_jit_r" % (sT0, sW))
    a("v_add_u32 v0, s%d, v%d" % (sN, vLane16))
    for sp in range(4):
        l = a.newlabel("L_j")
        if sp < 3: a("s_cmp_eq_u32 s%d, %d\ns_cbranch_scc0 %s" % (sT1, sp, l))
        for qt in range(3): a("ds_write_b128 v0, %s offset:%d" % (v4(qf(sp, qt)), qt * 1024))
        if sp < 3:
            a("s_branch L_jit_w")
            a.label(l)
    a.label("L_jit_w")
    a("s_waitcnt lgkmcnt(0)")
    a.label("L_jit_r")
    a("s_setpc_b64 s[%d:%d]" % (sRet2, sRet2 + 1))
    emit_stubs(a)
    slow_path(a)
    a.label("L_code_end")
    a("s_endpgm")

HDR = open("cdna_kernels/%s.s.ref" % NAME).read().split("; Override launch")[0]

def make(dbg=False):
    a = Asm()
    gen_main(a, dbg)
    rep = []
    lines = hazard.run(a.l, rep)
    for p in hazard.check_all_edges(lines): print("EDGE HAZARD", p)
    src = HDR + "; @launch grid=(256,1,1) block=(512,1,1) lds=%d\n" % LDS_BYTES
    src += ".amdgcn_target \"amdgcn-amd-amdhsa--gfx950\"\n" + "\n".join(lines) + "\n" + kernel_desc(KNAME, 256)
    print("nops inserted", rep, "lines", len(lines))
    return src

if __name__ == "__main__":
    dbg = "dbg" in ARGS
    out = opt("o", "k_dbg" if dbg else "k_st" if STAMP else "k")
    build(make(dbg), out, KNAME)
```

```python
import sys, math, struct
from asmlib import *
import hazard
from sched import make_sched

NAME = "concat_heads__gqa_block_cached__mha_block_cached__near_ridge"
KNAME = NAME + "_kernel"
ARGS = set(sys.argv[1:])
def opt(name, default=None):
    for x in sys.argv[1:]:
        if x.startswith(name + "="): return x[len(name) + 1:]
    return default

BLK = 8448
PIECE = 1056
SETSZ = 4 * BLK
XC = 6144
SP = 24576
KVB = 28672
WR = KVB + 3 * SETSZ
LDS_BYTES = WR + SETSZ
assert LDS_BYTES == 163840
SYNC = WR + 3 * BLK + 7 * PIECE + 1024
HO = 0
ZB = WR + 3 * BLK

vLane16, vT, vK, vgK0, vgK1, vgV, vgWo = 1, 2, 3, 4, 5, 6, 7
ACC, QF, F, S, P, NM, L, ON, T = 8, 104, 152, 184, 208, 220, 232, 244, 248
VWQ = S
vXr, vgWq, vgX = 245, 244, 246
vXa, vTc, vTmpA, vTmpB = T, T + 1, T + 2, T + 3
LB = (152, 184)
FR = 216
BFR = 232
AF0, BF0 = 200, 232
def acc(t, qt): return ACC + (t * 3 + qt) * 4
def qf(s, qt): return QF + (s * 3 + qt) * 4
def sreg(kt, qt): return S + (kt * 3 + qt) * 4
def preg(qt): return P + qt * 4
def v4(r): return "v[%d:%d]" % (r, r + 3)
def v2(r): return "v[%d:%d]" % (r, r + 1)

sSelLo, sThr = 0, 1
sWave, sB, sG, sW = 3, 4, 5, 6
sX, sK, sV, sWQ, sWO, sWS, sXI = 8, 12, 16, 20, 24, 28, 32
sPtr = 36
sCyc, sSelHi = 60, 61
sKV, sRot, sOff, sT0, sT1, sT2, sCnt = 62, 63, 64, 65, 66, 67, 68
sWqB, sWoB, sXB, sCh, sChN, sBuf = 69, 70, 71, 72, 73, 74
sMW, sMK = 75, 76
sFloor = 77
sRet, sRet2 = 78, 80
sSp = 82
sH0, sN, sC, sSet = 86, 87, 88, 89
sSl0, sSl1, sSl2 = 7, 62, 63
sMsk = 7
def srd(r): return "s[%d:%d]" % (r, r + 3)

SCALE = (128 ** -0.5) * math.log2(math.e)
BIAS = 7.0
def fbits(x): return struct.unpack("<I", struct.pack("<f", x))[0]
STAMP = "stamp" in ARGS
GO = 48 << 20
OWN = "noown" not in ARGS
XNT = " nt" if "xnt" in ARGS else ""

def mf(d, a, b, c):
    return "v_mfma_f32_16x16x32_bf16 %s, %s, %s, %s" % (v4(d), v4(a), v4(b), v4(c) if c is not None else "0")

def weave(a, main, *streams):
    pos = [0] * len(streams)
    for i, m in enumerate(main):
        a(m)
        for k, (lst, st, en) in enumerate(streams):
            if i >= st:
                want = len(lst) if i >= en - 1 else (len(lst) * (i - st + 1) + (en - st) - 1) // (en - st)
                while pos[k] < want:
                    a(lst[pos[k]]); pos[k] += 1
    for k, (lst, st, en) in enumerate(streams):
        while pos[k] < len(lst):
            a(lst[pos[k]]); pos[k] += 1

def pol(k): return (" " + opt("pol" + k, "nt").replace("+", " ").replace("plain", "")).rstrip()

def kv_piece(m0base, m0add, j, isv, sk=sK, sv=sV):
    vg = vgV if isv else (vgK0 if j < 4 else vgK1)
    return ["s_add_u32 m0, s%d, %d" % (m0base, m0add + j * (PIECE - 256)),
            "buffer_load_dwordx4 v%d, %s, s%d offen offset:%d nt lds" % (vg, srd(sv if isv else sk), sOff, j * 256)]

def wqT(m0base, m0add):
    out = []
    for j in range(8):
        if j & 3 == 0: out.append("s_add_u32 m0, s%d, %d" % (m0base, m0add + j * PIECE))
        out.append("buffer_load_dwordx4 v%d, %s, s%d offen offset:%d lds" % (VWQ + j, srd(sWQ), sOff, (j & 3) * PIECE))
    return out
def woT(m0base, m0add):
    out = []
    for j in range(8):
        out.append("s_add_u32 m0, s%d, %d" % (m0base, m0add + j * PIECE - (j & 3) * 1024) + ("\ns_add_u32 s%d, s%d, 4096" % (sOff, sOff) if j == 4 else ""))
        out.append("buffer_load_dwordx4 v%d, %s, s%d offen offset:%d lds" % (vgWo, srd(sWO), sOff, (j & 3) * 1024))
    return out
def emit(a, lst):
    prev = ""
    for x in lst:
        if x.startswith("buffer") and x.endswith("lds") and prev.split("\n")[-1].startswith("s_add_u32 m0"): a("s_nop 0")
        a(x); prev = x

def tr_reads(off, tiles=range(8), dst0=F, va=vT):
    return ["ds_read_b64_tr_b16 %s, v%d offset:%d" % (v2(dst0 + t * 4 + h * 2), va, off + 256 * h + 32 * t) for t in tiles for h in range(2)]
def k_reads(off, kts=(0, 1)):
    return ["ds_read_b128 %s, v%d offset:%d" % (v4(F + (kt * 4 + s) * 4), vK, off + 512 * kt + 64 * s) for kt in kts for s in range(4)]

def sm_chain(kt, qt):
    t0 = T + ((kt * 3 + qt) & 1) * 4
    s = sreg(kt, qt)
    out = ["v_exp_f32 v%d, v%d" % (t0 + r, s + r) for r in range(4)]
    out.append("v_cvt_pk_bf16_f32 v%d, v%d, v%d" % (preg(qt) + 2 * kt, t0, t0 + 1))
    out.append("v_cvt_pk_bf16_f32 v%d, v%d, v%d" % (preg(qt) + 2 * kt + 1, t0 + 2, t0 + 3))
    return out
def qk_chain(kt, qt):
    return [mf(sreg(kt, qt), F + (kt * 4 + s) * 4, qf(s, qt), sreg(kt, qt) if s else NM + qt * 4) for s in range(4)]
def pv_list(tiles): return [mf(acc(t, qt), F + t * 4, preg(qt), acc(t, qt)) for t in tiles for qt in range(3)]
def l_list(): return [mf(L + qt * 4, ON, preg(qt), L + qt * 4) for qt in range(3)]

def tile_old(a, vo, knext):
    c = [qk_chain(kt, qt) for kt in range(2) for qt in range(3)]
    sm = [sm_chain(kt, qt) for kt in range(2) for qt in range(3)]
    v0 = tr_reads(vo, range(4)); v1 = tr_reads(vo, range(4, 8))
    for s in range(4):
        a("s_waitcnt lgkmcnt(%d)" % (7 - s))
        a(c[0][s])
    for m in c[1]: a(m)
    weave(a, c[2], (sm[0], 1, 4))
    a("s_waitcnt lgkmcnt(0)")
    weave(a, c[3], (sm[1], 0, 4), (v0[:4], 0, 4))
    weave(a, c[4], (sm[2], 0, 4), (v0[4:], 0, 4))
    s5 = sreg(1, 2)
    O1, O2 = P + 10, P + 11
    pre = ["v_or3_b32 v%d, v%d, v%d, v%d" % (O1, P, P + 1, P + 4), "v_or3_b32 v%d, v%d, v%d, v%d" % (O2, P + 5, P + 8, P + 9)]
    weave(a, c[5], (pre, 0, 2), (sm[3], 0, 4))
    a(sm[4][0]); a(sm[4][1])
    a("v_or3_b32 v%d, v%d, v%d, v%d" % (O1, O1, P + 2, P + 3))
    a(sm[4][2]); a(sm[4][3])
    a("v_or_b32 v%d, v%d, v%d" % (O1, O1, O2))
    a(sm[4][4]); a(sm[4][5])
    a("v_max3_f32 v%d, v%d, v%d, v%d" % (O2, s5, s5 + 1, s5 + 2))
    a("v_or3_b32 v%d, v%d, v%d, v%d" % (O1, O1, P + 6, P + 7))
    a("v_lshl_or_b32 v%d, v%d, 16, v%d" % (O1, O1, O1))
    a("v_and_b32 v%d, 0x40000000, v%d" % (O1, O1))
    a("v_max3_f32 v%d, v%d, v%d, v%d" % (O2, O2, s5 + 3, O1))
    a("v_cmp_le_f32 vcc, s%d, v%d" % (sThr, O2))
    ok = a.newlabel("L_ok")
    a("s_cbranch_vccz %s" % ok)
    a("s_call_b64 s[%d:%d], L_slow" % (sRet, sRet + 1))
    a.label(ok)
    ll = l_list()
    a("s_waitcnt lgkmcnt(0)")
    m1 = [ll[0], ll[1]] + [mf(acc(t, qt), F + t * 4, preg(qt), acc(t, qt)) for t in range(4) for qt in range(2)]
    weave(a, m1, (sm[5], 0, 5), (v1, 0, 8))
    a(ll[2])
    for t in range(4): a(mf(acc(t, 2), F + t * 4, preg(2), acc(t, 2)))
    m2 = pv_list(range(4, 8))
    if knext is not None:
        for r in k_reads(knext, (0,)): a(r)
        a("s_waitcnt lgkmcnt(4)")
        for m in m2: a(m)
        for r in k_reads(knext, (1,)): a(r)
    else:
        a("s_waitcnt lgkmcnt(0)")
        for m in m2: a(m)

STUBS = []
def tile_fast(a, vo, knext):
    c = [qk_chain(kt, qt) for kt in range(2) for qt in range(3)]
    sm = [sm_chain(kt, qt) for kt in range(2) for qt in range(3)]
    v0 = tr_reads(vo, range(4)); v1 = tr_reads(vo, range(4, 8))
    k1 = k_reads(vo - BLK, (1,))
    def chk(qt):
        t = T + 4 * (qt & 1); p = preg(qt)
        return ["v_or3_b32 v%d, v%d, v%d, v%d" % (t, p, p + 1, p + 2),
                "v_bitop3_b32 v%d, v%d, v%d, s%d bitop3:0xa8" % (t, t, p + 3, sMsk),
                "v_cmp_le_u32 vcc, s%d, v%d" % (sThr, t)]
    def br(qt):
        ok = a.newlabel("L_ok"); st = a.newlabel("L_stub")
        a("s_cbranch_vccnz %s" % st)
        a.label(ok)
        STUBS.append((st, ok, qt))
    def pvq(qt): return [l_list()[qt]] + [mf(acc(t, qt), F + t * 4, preg(qt), acc(t, qt)) for t in range(4)]
    for s in range(4):
        a("s_waitcnt lgkmcnt(3)")
        a(c[0][s])
        a(k1[s])
    for m in c[1]: a(m)
    weave(a, c[2], (sm[0], 0, 4))
    a("s_waitcnt lgkmcnt(0)")
    weave(a, c[3], (sm[1], 0, 4), (v0[:4], 0, 4))
    weave(a, c[4], (sm[2], 0, 4), (v0[4:], 0, 4))
    weave(a, c[5], (sm[3] + chk(0), 0, 3))
    a("s_waitcnt lgkmcnt(0)")
    br(0)
    weave(a, pvq(0), (sm[4] + chk(1), 0, 4))
    br(1)
    weave(a, pvq(1), (sm[5] + chk(2), 0, 4), (v1[:2], 3, 5))
    br(2)
    weave(a, pvq(2), (v1[2:], 0, 4))
    m2 = pv_list(range(4, 8))
    kn = k_reads(knext, (0,)) if knext is not None else []
    for t in range(4):
        a("s_waitcnt lgkmcnt(%d)" % (6 - 2 * t + (min(2 * t, 4) if kn else 0)))
        for i, m in enumerate(m2[3 * t:3 * t + 3]):
            a(m)
            if kn and t < 2 and i < 2: a(kn[2 * t + i])

def emit_stubs(a):
    for st, ok, qt in STUBS:
        a.label(st)
        a("s_call_b64 s[%d:%d], L_slow%d" % (sRet, sRet + 1, qt))
        a("s_branch %s" % ok)

def xlane(a, op, r, t):
    a("v_mov_b32 v%d, v%d" % (t, r))
    a("v_permlane32_swap_b32 v%d, v%d" % (t, r))
    a("%s v%d, v%d, v%d" % (op, r, r, t))
    a("v_mov_b32 v%d, v%d" % (t, r))
    a("v_permlane16_swap_b32 v%d, v%d" % (t, r))
    a("%s v%d, v%d, v%d" % (op, r, r, t))

def slow_old(a):
    a.label("L_slow")
    a("s_nop 7")
    for qt in range(3):
        s0, s1 = sreg(0, qt), sreg(1, qt)
        x = T
        a("v_max3_f32 v%d, v%d, v%d, v%d" % (x, s0, s0 + 1, s0 + 2))
        a("v_max3_f32 v%d, v%d, v%d, v%d" % (x, x, s0 + 3, s1))
        a("v_max3_f32 v%d, v%d, v%d, v%d" % (x, x, s1 + 1, s1 + 2))
        a("v_max_f32 v%d, v%d, v%d" % (x, x, s1 + 3))
        xlane(a, "v_max_f32", x, T + 1)
        a("v_max_f32 v%d, s%d, v%d" % (x, sFloor, x))
        a("v_add_f32 v%d, 0x%x, v%d" % (x, fbits(BIAS), x))
        a("v_sub_f32 v%d, 0, v%d" % (T + 1, x))
        a("v_min_f32 v%d, 0, v%d" % (T + 1, T + 1))
        a("v_exp_f32 v%d, v%d" % (T + 1, T + 1))
        for r in range(4):
            a("v_sub_f32 v%d, v%d, v%d" % (NM + qt * 4 + r, NM + qt * 4 + r, x))
            a("v_sub_f32 v%d, v%d, v%d" % (s0 + r, s0 + r, x))
            a("v_sub_f32 v%d, v%d, v%d" % (s1 + r, s1 + r, x))
        lsk = a.newlabel("L_nors")
        a("s_cmp_lg_u32 s%d, 1.0\ns_cbranch_scc1 %s" % (sThr, lsk))
        for r in range(4):
            a("v_mul_f32 v%d, v%d, v%d" % (L + qt * 4 + r, L + qt * 4 + r, T + 1))
        for t in range(8):
            for r in range(4):
                a("v_mul_f32 v%d, v%d, v%d" % (acc(t, qt) + r, acc(t, qt) + r, T + 1))
        a.label(lsk)
    for kt in range(2):
        for qt in range(3):
            for s in sm_chain(kt, qt): a(s)
    a("s_mov_b32 s%d, 0x%x" % (sFloor, fbits(-BIAS)))
    a("s_mov_b32 s%d, 1.0" % sThr)
    a("s_nop 1")
    a("s_setpc_b64 s[%d:%d]" % (sRet, sRet + 1))

def slow_path(a):
    if "oldtile" in ARGS: return slow_old(a)
    for qt in range(3):
        a.label("L_slow%d" % qt)
        s0, s1 = sreg(0, qt), sreg(1, qt)
        x = T
        a("v_max3_f32 v%d, v%d, v%d, v%d" % (x, s0, s0 + 1, s0 + 2))
        a("v_max3_f32 v%d, v%d, v%d, v%d" % (x + 1, s0 + 3, s1, s1 + 1))
        a("v_max3_f32 v%d, v%d, v%d, v%d" % (x, x, s1 + 2, s1 + 3))
        a("v_max_f32 v%d, v%d, v%d" % (x, x, x + 1))
        xlane(a, "v_max_f32", x, T + 1)
        a("v_max_f32 v%d, s%d, v%d" % (x, sFloor, x))
        a("v_add_f32 v%d, 0x%x, v%d" % (x, fbits(BIAS), x))
        for r in range(4):
            a("v_sub_f32 v%d, v%d, v%d" % (s0 + r, s0 + r, x))
            a("v_sub_f32 v%d, v%d, v%d" % (s1 + r, s1 + r, x))
            a("v_sub_f32 v%d, v%d, v%d" % (NM + qt * 4 + r, NM + qt * 4 + r, x))
        lsk = a.newlabel("L_nors")
        a("s_cmp_eq_u32 s%d, 0\ns_cbranch_scc1 %s" % (sThr, lsk))
        a("v_sub_f32 v%d, 0, v%d" % (T + 1, x))
        a("v_exp_f32 v%d, v%d" % (T + 1, T + 1))
        for r in range(4):
            a("v_mul_f32 v%d, v%d, v%d" % (L + qt * 4 + r, L + qt * 4 + r, T + 1))
        for t in range(8):
            for r in range(4):
                a("v_mul_f32 v%d, v%d, v%d" % (acc(t, qt) + r, acc(t, qt) + r, T + 1))
        a.label(lsk)
        for kt in range(2):
            t0 = T + 4 * kt; s = sreg(kt, qt)
            for r in range(4): a("v_exp_f32 v%d, v%d" % (t0 + r, s + r))
        for kt in range(2):
            t0 = T + 4 * kt
            a("v_cvt_pk_bf16_f32 v%d, v%d, v%d" % (preg(qt) + 2 * kt, t0, t0 + 1))
            a("v_cvt_pk_bf16_f32 v%d, v%d, v%d" % (preg(qt) + 2 * kt + 1, t0 + 2, t0 + 3))
        if qt == 2:
            a("s_mov_b32 s%d, 0x%x" % (sFloor, fbits(-BIAS)))
            a("s_mov_b32 s%d, 1" % sThr)
        a("s_nop 1")
        a("s_setpc_b64 s[%d:%d]" % (sRet, sRet + 1))

def zero(a, base, n):
    for r in range(n): a("v_mov_b32 v%d, 0" % (base + r))

def att_init(a):
    zero(a, ACC, 96); zero(a, NM, 24)
    for r in range(4): a("v_mov_b32 v%d, 0x3f803f80" % (ON + r))
    a("s_mov_b32 s%d, 0x%x\ns_mov_b32 s%d, %s" % (sFloor, fbits(-3e38), sThr, "0xff800000" if "oldtile" in ARGS else "0"))
    a("s_mov_b32 s%d, 0x40004000" % sMsk)

def scale_acc(a, sc):
    for t in range(8):
        for qt in range(3):
            for r in (0, 2):
                x = acc(t, qt) + r
                a("v_pk_mul_f32 %s, %s, %s%s" % (v2(x), v2(x), sc(qt), " op_sel_hi:[1,0]" if sc(qt)[0] == "s" else ""))

def pack_T(a):
    for s in range(4):
        for qt in range(3):
            d = qf(s, qt)
            for hh in range(2):
                src = acc(2 * s + hh, qt)
                a("v_cvt_pk_bf16_f32 v%d, v%d, v%d" % (d + 2 * hh, src, src + 1))
                a("v_cvt_pk_bf16_f32 v%d, v%d, v%d" % (d + 2 * hh + 1, src + 2, src + 3))
def pack_R(a):
    for s in range(4):
        for qt in range(3):
            for p in range(4):
                a("v_cvt_pk_bf16_f32 v%d, v%d, v%d" % (qf(s, qt) + p, acc(2 * p, qt) + s, acc(2 * p + 1, qt) + s))

def q_final_T(a):
    a("s_nop 7")
    scale_acc(a, lambda qt: "s[%d:%d]" % (sC, sC + 1))
    pack_T(a)
    for op in ("v_permlane32_swap_b32", "v_permlane16_swap_b32"):
        for i in range(12):
            d = QF + 4 * i
            a("%s v%d, v%d" % (op, d, d + 2)); a("%s v%d, v%d" % (op, d + 1, d + 3))
def q_final_R(a):
    a("s_nop 7")
    scale_acc(a, lambda qt: "s[%d:%d]" % (sC, sC + 1))
    pack_R(a)
    xpose_R(a)
def xpose_R(a):
    for qt in range(3):
        for (x, y) in ((0, 2), (1, 3)):
            for p in range(4): a("v_permlane32_swap_b32 v%d, v%d" % (qf(x, qt) + p, qf(y, qt) + p))
    for qt in range(3):
        for (x, y) in ((0, 1), (2, 3)):
            for p in range(4): a("v_permlane16_swap_b32 v%d, v%d" % (qf(x, qt) + p, qf(y, qt) + p))
def o_final(a):
    a("s_nop 7")
    for qt in range(3):
        a("v_rcp_f32 v%d, v%d" % (L + qt * 4, L + qt * 4))
        a("v_rcp_f32 v%d, v%d" % (L + qt * 4 + 1, L + qt * 4 + 1))
    scale_acc(a, lambda qt: v2(L + qt * 4))
    pack_T(a)

def publish(a, base_sgpr, src=QF, n=12):
    a("v_add_u32 v%d, s%d, v%d" % (vTmpA, base_sgpr, vLane16))
    for i in range(n):
        a("ds_write_b128 v%d, %s offset:%d" % (vTmpA, v4(src + i * 4), i * 1024))

def debug_dump(a, which, isB):
    a("s_lshl_b32 s%d, s2, 2\ns_add_u32 s%d, s%d, s%d" % (sT0, sT0, sT0, sW))
    if isB: a("s_add_u32 s%d, s%d, 1024" % (sT0, sT0))
    a("s_mul_i32 s%d, s%d, 12288" % (sT0, sT0))
    a("s_add_u32 s%d, s%d, 0x%x" % (sT0, sT0, (64 + 32 * which) << 20))
    for i in range(12):
        a("s_add_u32 s%d, s%d, %d" % (sT1, sT0, i * 1024))
        a("buffer_store_dwordx4 %s, v%d, %s, s%d offen" % (v4(QF + i * 4), vLane16, srd(sWS), sT1))
    a("s_waitcnt vmcnt(0)")

def store_partial(a, br, cb):
    a("s_nop 7")
    a("s_add_u32 s%d, s%d, %d" % (sT0, sB, br * 32))
    a("s_lshl_b32 s%d, s%d, 2\ns_add_u32 s%d, s%d, s%d" % (sT0, sT0, sT0, sT0, cb))
    a("s_mul_i32 s%d, s%d, %d" % (sT0, sT0, 12 * 8192))
    a("s_lshl_b32 s%d, s%d, 10\ns_add_u32 s%d, s%d, s%d" % (sT1, sG, sT0, sT0, sT1))
    if not br:
        pack_R(a); xpose_R(a)
    if OWN:
        a("s_lshr_b32 s%d, s%d, 1\ns_and_b32 s%d, s%d, 1\ns_cmp_eq_u32 s%d, s%d\ns_cselect_b32 s%d, s%d, 2" % (sT1, sG, sRot, sG, sT1, cb, sRot, sRot))
    for half in range(2):
        def body():
            for i in range(6 * half, 6 * half + 6):
                a("s_add_u32 s%d, s%d, %d" % (sT1, sT0, i * 8192))
                a("buffer_store_dwordx4 %s, v%d, %s, s%d offen sc1" % (v4(QF + 4 * i), vLane16, srd(sWS), sT1))
        if br:
            for i in range(6 * half, 6 * half + 6):
                s, qt = i // 3, i % 3
                d = qf(s, qt)
                for hh in range(2):
                    src = acc(2 * s + hh, qt)
                    a("v_cvt_pk_bf16_f32 v%d, v%d, v%d" % (d + 2 * hh, src, src + 1))
                    a("v_cvt_pk_bf16_f32 v%d, v%d, v%d" % (d + 2 * hh + 1, src + 2, src + 3))
        if OWN: cond(a, sRot, half, body, eq=False)
        else: body()

def own_addr(a, br, d):
    if br: a("s_bfe_u32 s%d, s%d, 0x10002\ns_and_b32 s%d, s%d, 2\ns_or_b32 s%d, s%d, s%d" % (d, sG, sT2, sG, d, d, sT2))
    else: a("s_lshr_b32 s%d, s%d, 1" % (d, sG))
    a("s_mul_i32 s%d, s%d, %d\ns_add_u32 s%d, s%d, %d" % (d, d, BLK, d, d, KVB + (1 if br else 2) * SETSZ))

def own_write(a, br, src=QF):
    if not OWN: return
    for half in range(2):
        def body():
            own_addr(a, br, sT0)
            a("v_add_u32 v%d, s%d, v%d" % (vTmpA, sT0, vLane16))
            for i in range(6):
                a("ds_write_b128 v%d, %s offset:%d" % (vTmpA, v4(src + 4 * (6 * half + i)), i * 1024))
        cond(a, sRot, half, body)

def cond(a, reg, val, body, eq=True):
    l = a.newlabel("L_c")
    a("s_cmp_eq_u32 s%d, %d" % (reg, val))
    a("s_cbranch_scc%d %s" % (0 if eq else 1, l))
    body()
    a.label(l)
def cond_lt(a, reg, val, body):
    l = a.newlabel("L_c")
    a("s_cmp_lt_u32 s%d, %d\ns_cbranch_scc0 %s" % (reg, val, l))
    body()
    a.label(l)

FS = int(opt("fs", -1))
SB = int(opt("sb", -1))
def sbst(a, s_):
    if SB >= 0 and SB <= s_ < SB + 9: stamp(a, 1 + s_ - SB, True)
def stamp(a, k, fine=False):
    if not STAMP: return
    if "ft" in ARGS and not fine and 1 <= k <= 4: return
    if (FS >= 0 or SB >= 0 or opt("f3")) and not fine and k >= 1: return
    if "cyc" in ARGS:
        a("s_memtime s[90:91]\ns_waitcnt lgkmcnt(0)")
        if k == 0: a("s_mov_b32 s%d, s90\ns_mov_b32 s92, 1" % sCyc)
        else: a("s_sub_u32 s%d, s90, s%d\ns_lshr_b32 s%d, s%d, 4" % (92 + k, sCyc, 92 + k, 92 + k))
        return
    a("s_memrealtime s[90:91]\ns_waitcnt lgkmcnt(0)\ns_mov_b32 s%d, s90" % (92 + k))
def stamp_out(a, n):
    if not STAMP: return
    a("s_lshl_b32 s%d, s2, 3\ns_add_u32 s%d, s%d, s%d\ns_lshl_b32 s%d, s%d, 6\ns_add_u32 s%d, s%d, 0x%x" % (sT0, sT0, sT0, sWave, sT0, sT0, sT0, sT0, 536870912 - (1 << 20)))
    a("s_mov_b64 exec, 1")
    a("v_mov_b32 v15, 0")
    for k in range(n):
        a("v_mov_b32 v14, s%d" % (92 + k))
        a("buffer_store_dword v14, v15, %s, s%d offen offset:%d" % (srd(sWS), sT0, 4 * k))
        a("s_nop 1")

def dbg_srd(a, q=sXI):
    a("s_mov_b32 s%d, s%d\ns_mov_b32 s%d, s%d\ns_mov_b32 s%d, 256\ns_mov_b32 s%d, 0x20000" % (q, sPtr + 22, q + 1, sPtr + 23, q + 2, q + 3))

SEP = "sep" in ARGS
def arrive(a, ev=0, sl=1):
    ld = a.newlabel("L_d"); lw = a.newlabel("L_w"); lp = a.newlabel("L_poll")
    a("v_mov_b32 v%d, %d\nv_mov_b32 v%d, 1" % (T, SYNC + 16 * ev, T + 1))
    a("v_lshlrev_b32 v%d, 7, v0" % (T + 4))
    a("s_lshl_b32 s%d, s%d, 10\ns_add_u32 s%d, s%d, 0x%x" % (sOff, sB, sOff, sOff, GO))
    a("s_lshl_b32 s%d, s2, 7\ns_add_u32 s%d, s%d, 0x%x" % (sT1, sT1, sT1, GO))
    a("s_mov_b64 exec, 1")
    a("ds_read_b32 v%d, v%d offset:8" % (T + 5, T))
    a("v_mov_b32 v%d, 0" % (T + 3))
    if "ft" in ARGS: stamp(a, 1, True)
    a("s_waitcnt vmcnt(0)")
    if "ft" in ARGS: stamp(a, 2, True)
    a("ds_add_rtn_u32 v%d, v%d, v%d" % (T + 2, T, T + 1))
    a("s_waitcnt lgkmcnt(0)")
    a("v_readfirstlane_b32 s%d, v%d" % (sT0, T + 2))
    a("s_cmp_eq_u32 s%d, %d\ns_cbranch_scc0 %s" % (sT0, 3 if SEP else 7, ld))
    a("s_mov_b64 exec, 0xff")
    a("buffer_atomic_add v%d, v%d, %s, s%d offen offset:%d sc1" % (T + 1, T + 4, srd(sWS), sOff, 4 * ev))
    a("s_mov_b64 exec, 1")
    if "ft" in ARGS: stamp(a, 3, True)
    a("v_readfirstlane_b32 s%d, v%d" % (sN, T + 5))
    a("s_add_u32 s%d, s%d, 8" % (sN, sN))
    a("s_mov_b32 s%d, 200000" % sT2)
    a.label(lp)
    a("s_sub_u32 s%d, s%d, 1\ns_cbranch_scc1 %s" % (sT2, sT2, lw))
    a("buffer_load_dword v%d, v%d, %s, s%d offen offset:%d sc1" % (T + 2, T + 3, srd(sWS), sT1, 4 * ev))
    a("s_waitcnt vmcnt(0)")
    a("v_readfirstlane_b32 s%d, v%d" % (sT0, T + 2))
    a("s_cmp_eq_u32 s%d, s%d\ns_cbranch_scc1 %s" % (sT0, sN, lw))
    a("s_sleep %d\ns_branch %s" % (sl, lp))
    a.label(lw)
    if "ft" in ARGS: stamp(a, 4, True)
    a("ds_write_b32 v%d, v%d offset:4" % (T, T + 1))
    a("s_waitcnt lgkmcnt(0)")
    a.label(ld)
    a("s_mov_b64 exec, -1")

def wait_flag(a, sl, ev=0):
    lp = a.newlabel("L_f"); ld = a.newlabel("L_g")
    a("v_mov_b32 v%d, %d" % (T, SYNC + 16 * ev))
    a("s_mov_b32 s%d, 4000000" % sT2)
    a.label(lp)
    a("s_sub_u32 s%d, s%d, 1\ns_cbranch_scc1 %s" % (sT2, sT2, ld))
    a("ds_read_b32 v%d, v%d offset:4" % (T + 1, T))
    a("s_waitcnt lgkmcnt(0)")
    a("v_readfirstlane_b32 s%d, v%d" % (sT0, T + 1))
    a("s_cmp_lg_u32 s%d, 0\ns_cbranch_scc1 %s" % (sT0, ld))
    a("s_sleep %d\ns_branch %s" % (sl, lp))
    a.label(ld)

def reduce_prep(a, it, br, ld, so):
    a("s_mul_i32 s%d, s%d, 6\ns_add_u32 s%d, s%d, s%d" % (sT0, sG, sT0, sT0, it))
    a("s_add_u32 s%d, s%d, %d\ns_mul_i32 s%d, s%d, 48\ns_add_u32 s%d, s%d, s%d" % (sT1, sB, 32 * br, sT1, sT1, sT1, sT1, sT0))
    a("s_lshl_b32 s%d, s%d, 13" % (ld, sT1))
    a("s_mul_i32 s%d, s%d, 43\ns_lshr_b32 s%d, s%d, 7" % (sT1, sT0, sT1, sT1))
    a("s_mul_i32 s%d, s%d, 3\ns_sub_u32 s%d, s%d, s%d" % (sT2, sT1, sT2, sT0, sT2))
    a("s_mul_i32 s%d, s%d, 3\ns_add_u32 s%d, s%d, s%d\ns_lshl_b32 s%d, s%d, 15" % (so, sB, so, so, sT2, so, so))
    a("s_lshl_b32 s%d, s%d, 6\ns_add_u32 s%d, s%d, s%d" % (sT1, sT1, so, so, sT1))
    if br: a("s_add_u32 s%d, s%d, 1024" % (so, so))
def reduce_issue(a, D, ld, br=0, it=None, k=0):
    if OWN:
        own_addr(a, br, sT1)
        a("s_lshl_b32 s%d, s%d, 10\ns_add_u32 s%d, s%d, s%d" % (sT0, it, sT0, sT0, sT1))
        a("v_add_u32 v%d, s%d, v%d" % (RX, sT0, vLane16))
        a("ds_read_b128 %s, v%d" % (v4(RW + 4 * k), RX))
    for g_ in range(7 if OWN else 8):
        if OWN:
            a("s_add_u32 s%d, s%d, %d\ns_and_b32 s%d, s%d, 7\ns_lshl_b32 s%d, s%d, 10\ns_add_u32 s%d, s%d, s%d" % (sT0, sG, g_ + 1, sT0, sT0, sT0, sT0, sT0, sT0, ld))
            a("buffer_load_dwordx4 %s, v%d, %s, s%d offen sc1" % (v4(D + 4 * g_), vLane16, srd(sWS), sT0))
        else:
            if g_ == 4: a("s_add_u32 s%d, s%d, 4096" % (ld, ld))
            a("buffer_load_dwordx4 %s, v%d, %s, s%d offen offset:%d sc1" % (v4(D + 4 * g_), vLane16, srd(sWS), ld, (g_ & 3) * 1024))
RA, RX, RADB, RADA, RO, RW = 200, 208, 212, 213, 216, 224
def reduce_fin(a, D, br, so, younger, k):
    O_ = RO + 4 * k
    NL = 7 if OWN else 8
    if OWN and younger: younger = 7
    for g_ in range(8):
        if OWN and g_ == 0: a("s_waitcnt lgkmcnt(0)")
        else: a("s_waitcnt vmcnt(%d)" % (7 - g_ + younger))
        for d in range(4):
            src = D + 4 * g_ + d
            if OWN: src = (RW + 4 * k + d) if g_ == 0 else (D + 4 * (g_ - 1) + d)
            if g_ == 0:
                a("v_lshlrev_b32 v%d, 16, v%d" % (RA + 2 * d, src))
                a("v_and_b32 v%d, 0xffff0000, v%d" % (RA + 2 * d + 1, src))
            else:
                X = RX + (d & 1) * 2
                a("v_lshlrev_b32 v%d, 16, v%d" % (X, src))
                a("v_and_b32 v%d, 0xffff0000, v%d" % (X + 1, src))
                a("v_pk_add_f32 %s, %s, %s" % (v2(RA + 2 * d), v2(RA + 2 * d), v2(X)))
    for d in range(4):
        a("v_cvt_pk_bf16_f32 v%d, v%d, v%d" % (O_ + d, RA + 2 * d, RA + 2 * d + 1))
    if br:
        a("v_permlane32_swap_b32 v%d, v%d\nv_permlane32_swap_b32 v%d, v%d" % (O_, O_ + 2, O_ + 1, O_ + 3))
        a("v_permlane16_swap_b32 v%d, v%d\nv_permlane16_swap_b32 v%d, v%d" % (O_, O_ + 2, O_ + 1, O_ + 3))
    return "buffer_store_dwordx4 %s, v%d, %s, s%d offen sc1" % (v4(O_), RADB, srd(sK), so)

def tail_joint(a, isB):
    arrive(a)
    a("v_and_b32 v%d, 15, v0\nv_lshrrev_b32 v%d, 4, v0\nv_lshlrev_b32 v%d, 11, v%d" % (RADB, RX, RADB, RADB))
    a("v_lshl_add_u32 v%d, v%d, 4, v%d" % (RADB, RX, RADB))
    a("s_mov_b32 s%d, s%d\ns_mov_b32 s%d, s%d\ns_mov_b32 s%d, 0x%x\ns_mov_b32 s%d, 0x20000" % (sK, sPtr + 20, sK + 1, sPtr + 21, sK + 2, SZ["out"], sK + 3))
    if isB:
        reduce_prep(a, sW, 1, sBuf, sCh)
        reduce_prep(a, sW, 0, sSet, sChN)
        wait_flag(a, 1)
        stamp(a, 8)
        reduce_issue(a, ACC, sBuf, 1, sW, 0); reduce_issue(a, ACC + 32, sSet, 0, sW, 1)
        st = [reduce_fin(a, ACC, 1, sCh, 8, 0), reduce_fin(a, ACC + 32, 0, sChN, 0, 1)]
        for s_ in st: a(s_)
    else:
        l2 = a.newlabel("L_ta")
        a("s_cmp_ge_u32 s%d, 2\ns_cbranch_scc1 %s" % (sW, l2))
        for br, add in ((1, 4), (0, 2)):
            if br == 0: a.label(l2)
            a("s_add_u32 s%d, s%d, %d" % (sN, sW, add))
            reduce_prep(a, sN, br, sBuf, sCh)
            wait_flag(a, 2)
            stamp(a, 8)
            reduce_issue(a, ACC, sBuf, br, sN, 0)
            a(reduce_fin(a, ACC, br, sCh, 0, 0))
            if br == 1: a("s_branch L_fin")
    if isB: a("s_branch L_fin")
    else:
        a.label("L_fin")
        if STAMP: a("s_waitcnt vmcnt(0)")
        stamp(a, 9)
        stamp_out(a, 10)
        a("s_endpgm")

def tail(a, isB):
    if not SEP: return tail_joint(a, isB)
    arrive(a, 0 if isB else 1, 1 if isB else 4)
    a("v_and_b32 v%d, 15, v0\nv_lshrrev_b32 v%d, 4, v0\nv_lshlrev_b32 v%d, 11, v%d" % (RADB, RX, RADB, RADB))
    a("v_lshl_add_u32 v%d, v%d, 4, v%d" % (RADB, RX, RADB))
    a("s_mov_b32 s%d, s%d\ns_mov_b32 s%d, s%d\ns_mov_b32 s%d, 0x%x\ns_mov_b32 s%d, 0x20000" % (sK, sPtr + 20, sK + 1, sPtr + 21, sK + 2, SZ["out"], sK + 3))
    if isB:
        a("s_mov_b32 s%d, s%d" % (sN, sW))
        a.label("L_bitem")
        reduce_prep(a, sN, 1, sBuf, sCh)
        wait_flag(a, 1)
        stamp(a, 8)
        reduce_issue(a, ACC, sBuf, 1, sN, 0)
        a(reduce_fin(a, ACC, 1, sCh, 0, 0))
        a("s_branch L_fin")
    else:
        l2 = a.newlabel("L_ta")
        reduce_prep(a, sW, 0, sBuf, sCh)
        a("s_cmp_ge_u32 s%d, 2\ns_cbranch_scc1 %s" % (sW, l2))
        wait_flag(a, 2, 1)
        reduce_issue(a, ACC, sBuf, 0, sW, 1)
        a(reduce_fin(a, ACC, 0, sCh, 0, 1))
        stamp(a, 7)
        a("s_add_u32 s%d, s%d, 4" % (sN, sW))
        a("s_branch L_bitem")
        a.label(l2)
        a("s_add_u32 s%d, s%d, 2" % (sN, sW))
        reduce_prep(a, sN, 0, sSet, sChN)
        wait_flag(a, 2, 1)
        reduce_issue(a, ACC, sBuf, 0, sW, 0); reduce_issue(a, ACC + 32, sSet, 0, sN, 1)
        st = [reduce_fin(a, ACC, 0, sCh, 8, 0), reduce_fin(a, ACC + 32, 0, sChN, 0, 1)]
        for s_ in st: a(s_)
        stamp(a, 7)
        a.label("L_fin")
        if STAMP: a("s_waitcnt vmcnt(0)")
        stamp(a, 9)
        stamp_out(a, 10)
        a("s_endpgm")

def x_piece(p_sgpr_off, p, srdq, ch, ldsbase):
    pass

def xp(a_list, ch_sgpr, p, srdq, lds_const, fl=""):
    ls = ["s_lshl_b32 s%d, s%d, 7" % (sT2, ch_sgpr), "s_add_u32 s%d, s%d, s%d" % (sT2, sT2, sXB)]
    ls.append("s_add_u32 m0, s%d, %d" % (sN, lds_const + p * 1024))
    ls.append("s_add_u32 s%d, s%d, %d" % (sT2, sT2, p * 8192))
    ls.append("buffer_load_dwordx4 v%d, %s, s%d offen%s lds" % (vgX, srd(srdq), sT2, fl))
    a_list.append("\n".join(ls))

def wq_off(chreg, add, par):
    return ["s_add_u32 s%d, s%d, %d\ns_and_b32 s%d, s%d, 7" % (sOff, chreg, add, sOff, sOff),
            "s_lshl_b32 s%d, s%d, 1\ns_add_u32 s%d, s%d, s%d" % (sOff, sOff, sOff, sOff, sSp + par),
            "s_lshl_b32 s%d, s%d, 18\ns_add_u32 s%d, s%d, s%d" % (sOff, sOff, sOff, sOff, sWqB)]
def xaddr(par, bufreg=None, bufconst=0):
    out = ["s_lshl_b32 s%d, s%d, 6" % (sT0, sSp + par), "v_xor_b32 v%d, s%d, v%d" % (vXa, sT0, vXr)]
    if bufreg is not None: out.append("v_add_u32 v%d, s%d, v%d" % (vXa, bufreg, vXa))
    return out

def projT(a, bimm, aoff, va, issue, accf=acc, af=F, bf=P):
    for qt in range(3): a("ds_read_b128 %s, v%d offset:%d" % (v4(bf + 4 * qt), vXa, bimm[qt]))
    rd = tr_reads(aoff, range(8), af, va)
    for r in rd[:12]: a(r)
    a("s_waitcnt lgkmcnt(10)")
    for r in rd[12:]: a(r)
    a("s_waitcnt lgkmcnt(0)")
    issue()
    for t in range(8):
        for qt in range(3): a(mf(accf(t, qt), af + t * 4, bf + 4 * qt, accf(t, qt)))

def projR(a, bimm, lb, issue):
    for qt in range(3): a("ds_read_b128 %s, v%d offset:%d" % (v4(BFR + 4 * qt), vXa, bimm[qt]))
    def perms(i):
        d = FR + (i & 3) * 4
        return ["v_perm_b32 v%d, v%d, v%d, s%d" % (d + p, lb + (2 * p + 1) * 4 + (i >> 1), lb + 2 * p * 4 + (i >> 1), sSelHi if i & 1 else sSelLo) for p in range(4)]
    for i in range(4):
        for x in perms(i): a(x)
    a("s_waitcnt lgkmcnt(0)")
    for i in range(4):
        for qt in range(3): a(mf(acc(i, qt), FR + i * 4, BFR + 4 * qt, acc(i, qt)))
        for x in perms(i + 4): a(x)
    issue()
    for i in range(4, 8):
        for qt in range(3): a(mf(acc(i, qt), FR + (i & 3) * 4, BFR + 4 * qt, acc(i, qt)))

def perm_all(a, lb, fr):
    for i in range(8):
        for p in range(4):
            a("v_perm_b32 v%d, v%d, v%d, s%d" % (fr + 4 * i + p, lb + (2 * p + 1) * 4 + (i >> 1), lb + 2 * p * 4 + (i >> 1), sSelHi if i & 1 else sSelLo))

def projR2(a, bimm, fr, bf, vxa, issue, nfirst, bar=None):
    for qt in range(3): a("ds_read_b128 %s, v%d offset:%d" % (v4(bf[qt]), vxa, bimm[qt]))
    ms = [mf(acc(i, qt), fr + i * 4, bf[qt], acc(i, qt)) for i in range(8) for qt in range(3)]
    if nfirst < 0:
        issue()
        a("s_waitcnt lgkmcnt(0)")
        for m in ms: a(m)
        bar()
        return
    if nfirst == 0:
        issue()
        a("s_waitcnt lgkmcnt(0)")
        for m in ms: a(m)
        return
    if "aprio" in ARGS: a("s_setprio 2")
    a("s_waitcnt lgkmcnt(0)")
    for m in ms[:nfirst]: a(m)
    issue()
    if "aprio" in ARGS: a("s_setprio 0")
    for m in ms[nfirst:]: a(m)

def wqR(lb, dummy=None):
    out = []
    for r in range(8):
        if r: out.append("s_add_u32 s%d, s%d, 8192" % (sOff, sOff))
        out.append("buffer_load_dwordx4 %s, v%d, %s, s%d offen" % (v4(lb + 4 * r), vgWq, srd(sWQ), sOff))
    return out
def woR(lb):
    out = []
    for r in range(8):
        if r == 4: out.append("s_add_u32 s%d, s%d, 16384" % (sOff, sOff))
        out.append("buffer_load_dwordx4 %s, v%d, %s, s%d offen offset:%d" % (v4(lb + 4 * r), 2, srd(sWO), sOff, (r & 3) * 1024))
    return out

def b_kv_params(a, wadd=0):
    a("s_lshl_b32 s%d, s2, 2\ns_add_u32 s%d, s%d, s%d" % (sT0, sT0, sT0, sW))
    if wadd: a("s_sub_u32 s%d, s%d, %d" % (sT0, sT0, -wadd))
    a("s_lshl_b32 s%d, s%d, 17" % (sKV, sT0))
    rk = int(opt("rk", 1))
    if rk == 0:
        a("s_mul_i32 s%d, s%d, 5\ns_lshr_b32 s%d, s%d, 4\ns_add_u32 s%d, s%d, s%d\ns_and_b32 s%d, s%d, 15" % (sRot, sT0, sT1, sT0, sRot, sRot, sT1, sRot, sRot))
    elif rk == 1:
        a("s_and_b32 s%d, s%d, 15" % (sRot, sT0))
    elif rk == 2:
        a("s_lshl_b32 s%d, s%d, 3\ns_add_u32 s%d, s%d, s%d\ns_and_b32 s%d, s%d, 15" % (sRot, sW, sRot, sRot, sG, sRot, sRot))
    elif rk == 3:
        a("s_and_b32 s%d, s%d, 1\ns_lshl_b32 s%d, s%d, 1\ns_add_u32 s%d, s%d, s%d" % (sT1, sW, sRot, sG, sRot, sRot, sT1))
    elif rk == 4:
        a("s_and_b32 s%d, s%d, 1\ns_lshl_b32 s%d, s%d, 1\ns_add_u32 s%d, s%d, s%d\ns_add_u32 s%d, s%d, s%d\ns_and_b32 s%d, s%d, 15" % (sT1, sW, sRot, sG, sRot, sRot, sT1, sRot, sRot, sB, sRot, sRot))
    elif rk == 5:
        a("s_lshl_b32 s%d, s%d, 3\ns_add_u32 s%d, s%d, s%d\ns_and_b32 s%d, s%d, 15" % (sRot, sW, sRot, sRot, sB, sRot, sRot))
    elif rk == 6:
        a("s_lshl_b32 s%d, s%d, 3\ns_add_u32 s%d, s%d, s%d\ns_mul_i32 s%d, s%d, 3\ns_add_u32 s%d, s%d, s%d\ns_and_b32 s%d, s%d, 15" % (sRot, sW, sRot, sRot, sG, sT1, sB, sRot, sRot, sT1, sRot, sRot))
    elif rk == 7:
        a("s_and_b32 s%d, s%d, 1\ns_lshl_b32 s%d, s%d, 1\ns_lshl_b32 s%d, s%d, 2\ns_add_u32 s%d, s%d, s%d\ns_lshr_b32 s%d, s%d, 2\ns_add_u32 s%d, s%d, s%d\ns_and_b32 s%d, s%d, 15" % (sT1, sW, sT1, sT1, sRot, sG, sRot, sRot, sT1, sT1, sG, sRot, sRot, sT1, sRot, sRot))
    elif rk == 8:
        a("s_lshr_b32 s%d, s%d, 4\ns_xor_b32 s%d, s%d, s%d\ns_and_b32 s%d, s%d, 15" % (sT1, sT0, sRot, sT0, sT1, sRot, sRot))
    elif rk == 9:
        a("s_andn2_b32 s%d, 15, s%d" % (sRot, sT0))
    elif rk == 10:
        a("s_mul_i32 s%d, s%d, 3\ns_and_b32 s%d, s%d, 15" % (sRot, sT0, sRot, sRot))

def row_off(row):
    if 16 <= row < 24:
        return "s_add_u32 s%d, s%d, %d\ns_and_b32 s%d, s%d, 7\ns_lshl_b32 s%d, s%d, 14\ns_add_u32 s%d, s%d, s%d" % (sOff, sSet, row - 16, sOff, sOff, sOff, sOff, sOff, sOff, sBuf)
    r = row if row < 16 else row - 24
    return "s_add_u32 s%d, s%d, %d\ns_and_b32 s%d, s%d, 15\ns_lshl_b32 s%d, s%d, 13\ns_add_u32 s%d, s%d, s%d" % (sOff, sRot, r, sOff, sOff, sOff, sOff, sOff, sOff, sKV)

def issue_pieces(a, lst):
    cur = None
    out = []
    for (row, p) in lst:
        if row != cur: out.append(row_off(row)); cur = row
        isA = 16 <= row < 24
        out += kv_piece(sMK, (row % 3) * SETSZ + (p >> 3) * BLK, p & 7, p >> 3, sX if isA else sK, sXI if isA else sV)
    emit(a, out)

def gen_main(a, dbg=False):
    SCH = make_sched(int(opt("cap", 14)), 48, boost=int(opt("boost", 3)), alt=int(opt("alt", 0)), cap3=int(opt("cap3", 0)))
    p3_0 = [i for i, x in enumerate(SCH) if x["cons"] == 23][0] + 1
    while len(SCH) - p3_0 < 18:
        SCH.insert(p3_0, dict(cons=None, iss={0: [], 1: []}))
    NS = len(SCH)
    cstep = {x["cons"]: i for i, x in enumerate(SCH) if x["cons"] is not None}
    print("steps", NS, "p3_0", p3_0)
    ASELF = "noself" not in ARGS
    for st in SCH:
        st["aiss"] = None
        c = st["cons"]
        if ASELF and c is not None and 16 <= c < 24 and len(st["iss"][0]) == 16 and st["iss"][0][0][1] == 0:
            st["aiss"] = st["iss"][0][0][0]; st["iss"][0] = []
    B2 = "nob2" not in ARGS
    NF = int(opt("nf", 24))
    OLDR = "oldR" in ARGS
    LATEB = NF < 0
    ONE = "one" in ARGS
    def hasS(s_): return not (ONE and (1 <= s_ <= 13 or p3_0 + 3 <= s_ <= p3_0 + 15))
    def hasB(s_): return B2 and (s_ < 16 or p3_0 <= s_ < p3_0 + 18)

    kernel_begin(a, KNAME)
    a("s_cmp_lt_u32 s2, 256\ns_cbranch_scc1 L_start\ns_endpgm")
    a.label("L_start")
    a("s_load_dwordx16 s[%d:%d], s[0:1], 0" % (sPtr, sPtr + 15))
    a("s_load_dwordx8 s[%d:%d], s[0:1], 64" % (sPtr + 16, sPtr + 23))
    a("s_load_dwordx2 s[%d:%d], s[0:1], 96" % (sPtr + 24, sPtr + 25))
    a("s_getpc_b64 s[%d:%d]" % (sRet, sRet + 1))
    a.label("L_pc")
    a("s_sub_u32 s%d, s%d, L_pc-%s\ns_subb_u32 s%d, s%d, 0" % (sRet, sRet, KNAME, sRet + 1, sRet + 1))
    a("s_lshr_b32 s%d, s2, 3\ns_lshl_b32 s%d, s%d, 4\ns_sub_u32 s%d, s%d, 448" % (sT0, sT0, sT0, sT0, sT0))
    a("v_add_u32 v30, s%d, v0\nv_lshlrev_b32 v30, 7, v30" % sT0)
    a("v_and_b32 v31, 0x1f0, v0")
    a("v_cmp_eq_u32 s[%d:%d], 0x1c0, v31" % (sRet2, sRet2 + 1) if False else "v_cmp_eq_u32 vcc, 0x1c0, v31")
    a("s_mov_b64 s[%d:%d], vcc" % (sRet2, sRet2 + 1))
    a("v_cmp_gt_u32 vcc, L_code_end-%s, v30" % KNAME)
    a("s_and_b64 exec, vcc, s[%d:%d]" % (sRet2, sRet2 + 1))
    a("s_cbranch_execz L_nopf")
    a("global_load_dword v31, v30, s[%d:%d]" % (sRet, sRet + 1))
    a.label("L_nopf")
    a("s_mov_b64 exec, -1")
    a("v_lshrrev_b32 v14, 6, v0\ns_nop 0\nv_readfirstlane_b32 s%d, v14" % sWave)
    a("v_and_b32 v0, 63, v0")
    a("s_lshr_b32 s%d, s2, 3\ns_and_b32 s%d, s2, 7\ns_and_b32 s%d, s%d, 3" % (sB, sG, sW, sWave))
    a("v_lshrrev_b32 v14, 4, v0\nv_and_b32 v15, 15, v0")
    a("v_lshlrev_b32 v%d, 4, v0" % vLane16)
    a("v_bfe_u32 v16, v0, 2, 3")
    a("v_mul_u32_u24 v%d, %d, v16" % (vT, PIECE))
    a("v_lshrrev_b32 v16, 5, v0\nv_lshlrev_b32 v16, 9, v16")
    a("v_add_u32 v%d, v%d, v16" % (vT, vT))
    a("v_and_b32 v16, 3, v0\nv_lshlrev_b32 v16, 3, v16")
    a("v_add_u32 v%d, v%d, v16" % (vT, vT))
    a("v_lshrrev_b32 v16, 3, v15\nv_and_b32 v17, 3, v15\nv_lshl_add_u32 v17, v16, 2, v17")
    a("v_mul_u32_u24 v%d, %d, v17" % (vK, PIECE))
    a("v_bfe_u32 v17, v15, 2, 1\nv_xor_b32 v17, v17, v16\nv_lshlrev_b32 v17, 8, v17")
    a("v_add_u32 v%d, v%d, v17" % (vK, vK))
    a("v_lshl_add_u32 v%d, v14, 4, v%d" % (vK, vK))
    a("v_and_b32 v16, 6, v15\nv_xor_b32 v16, v16, v14\nv_lshlrev_b32 v16, 4, v16\nv_lshl_add_u32 v%d, v15, 7, v16" % vXr)
    a("v_lshrrev_b32 v16, 3, v0\nv_and_b32 v17, 6, v16\nv_and_b32 v18, 7, v0\nv_xor_b32 v17, v17, v18\nv_lshlrev_b32 v17, 4, v17\nv_lshl_add_u32 v%d, v16, 10, v17" % vgX)
    a("v_and_b32 v16, 1, v14\nv_lshrrev_b32 v17, 1, v14\nv_lshlrev_b32 v18, 4, v15")
    a("v_lshlrev_b32 v19, 12, v17\nv_add_u32 v19, v19, v18")
    a("v_lshl_add_u32 v%d, v16, 10, v19" % vgK0)
    a("v_lshlrev_b32 v20, 10, v16\nv_sub_u32 v20, 2048, v20\nv_add_u32 v%d, v19, v20" % vgK1)
    a("v_lshlrev_b32 v19, 4, v16\nv_lshl_add_u32 v19, v17, 3, v19")
    a("v_lshl_add_u32 v%d, v19, 8, v18" % vgV)
    a("v_lshl_add_u32 v%d, v19, 10, v18" % vgWo)
    a("v_lshlrev_b32 v19, 2, v16\nv_lshl_add_u32 v19, v17, 4, v19")
    a("v_lshl_add_u32 v19, v19, 13, v18")
    for j in range(8):
        a("v_add_u32 v%d, %d, v19" % (VWQ + j, ((j & 3) + 8 * (j >> 2)) * 8192 - (j & 3) * PIECE))
    a("s_mov_b32 s%d, 0x%x" % (sC, fbits(SCALE)))
    a("s_add_u32 s%d, s%d, s%d\ns_and_b32 s%d, s%d, 7" % (sH0, sB, sG, sH0, sH0))
    a("s_bfe_u32 s%d, s%d, 0x10003\ns_xor_b32 s%d, s%d, 1" % (sSp, sB, sSp + 1, sSp))
    a("s_mul_i32 s%d, s%d, 49152" % (sXB, sB))
    a("s_lshl_b32 s%d, s%d, 2\ns_add_u32 s%d, s%d, s%d" % (sT0, sG, sT0, sT0, sW))
    a("s_lshl_b32 s%d, s%d, 8" % (sWqB, sT0))
    a("s_and_b32 s%d, s%d, 1\ns_mul_i32 s%d, s%d, %d" % (sT1, sW, sT1, sT1, 2 * BLK))
    a("s_add_u32 s%d, s%d, %d\ns_add_u32 s%d, s%d, %d" % (sMW, sT1, WR, sMK, sT1, KVB))
    a("s_waitcnt lgkmcnt(0)")
    pA = dict(x=0, k=2, v=4, wq=6, wo=8); pB = dict(x=10, k=12, v=14, wq=16, wo=18)
    a("s_cmp_ge_u32 s%d, 4" % sWave)
    for nm, q, sz in (("wq", sWQ, SZ["Awq"]), ("x", sX, SZ["Ax"]), ("wo", sWO, SZ["Awo"])):
        a("s_cselect_b32 s%d, s%d, s%d" % (q, sPtr + pA[nm], sPtr + pB[nm]))
        a("s_cselect_b32 s%d, s%d, s%d" % (q + 1, sPtr + pA[nm] + 1, sPtr + pB[nm] + 1))
        a("s_mov_b32 s%d, 0x%x\ns_mov_b32 s%d, 0x20000" % (q + 2, sz, q + 3))
    for q, k_, sz in ((sK, 12, SZ["Bk"]), (sV, 14, SZ["Bv"]), (sWS, 24, SZ["ws"]), (sXI, 4, SZ["Av"])):
        a("s_mov_b32 s%d, s%d\ns_mov_b32 s%d, s%d\ns_mov_b32 s%d, 0x%x\ns_mov_b32 s%d, 0x20000" % (q, sPtr + k_, q + 1, sPtr + k_ + 1, q + 2, sz, q + 3))
    stamp(a, 0)
    if "ft" in ARGS: a("s_mov_b32 s95, 0\ns_mov_b32 s96, 0")
    a("s_cmp_ge_u32 s%d, 4\ns_cbranch_scc1 L_A" % sWave)
    a("s_cmp_ge_u32 s%d, 2\ns_cbranch_scc1 L_G1" % sWave)

    a("s_mul_i32 s%d, s%d, %d\ns_add_u32 s%d, s%d, s%d" % (sT0, sW, 3 * 8192, sXB, sXB, sT0))
    a("s_mul_i32 s%d, s%d, 3072" % (sN, sW))
    def xchunk(add, buf):
        out = ["s_add_u32 s%d, s%d, %d\ns_and_b32 s%d, s%d, 7" % (sChN, sCh, add, sChN, sChN)]
        for p in range(3): xp(out, sChN, p, sX, buf * XC)
        return out
    a("s_mov_b32 s%d, s%d" % (sCh, sH0))
    a("s_mov_b32 s%d, s%d\ns_add_u32 s%d, s%d, %d\ns_add_u32 s%d, s%d, %d" % (sSl0, sMW, sSl1, sMK, 2 * SETSZ, sSl2, sMW, BLK))
    for x in wq_off(sCh, 0, 0): a(x)
    d0 = wqT(sSl0, 0)
    emit(a, d0)
    for x in xchunk(0, 0): a(x)
    zero(a, ACC, 96)
    for x in wq_off(sCh, 0, 1): a(x)
    emit(a, wqT(sSl1, 0))
    for x in xchunk(1, 1): a(x)
    for x in wq_off(sCh, 1, 0): a(x)
    emit(a, wqT(sSl2, 0))
    for x in xchunk(2, 2): a(x)
    def fset(k): return (F, P) if k == 0 else (QF, QF + 32)
    def preads(k, bufc):
        fa, fb = fset(k)
        return ["ds_read_b128 %s, v%d offset:%d" % (v4(fb + qt * 4), vXa, bufc + qt * 2048) for qt in range(3)] + tr_reads(0, range(8), fa, vTc)
    for x in xaddr(0): a(x)
    a("v_add_u32 v%d, s%d, v%d" % (vTc, sSl0, vT))
    a("s_waitcnt vmcnt(22)\ns_barrier")
    for r in preads(0, 0): a(r)
    for x in xaddr(1): a(x)
    a("v_add_u32 v%d, s%d, v%d" % (vTc, sSl1, vT))
    a("s_waitcnt vmcnt(14)")
    vq = ["w0"] * 8 + ["x0"] * 3 + ["w1"] * 8 + ["x1"] * 3 + ["w2"] * 8 + ["x2"] * 3
    def vneed(tags):
        idx = max(i for i, t in enumerate(vq) if t in tags)
        return len(vq) - 1 - idx
    SL = (sSl0, sSl1, sSl2)
    for n in range(16):
        issue = []
        if n + 3 < 16:
            issue += wq_off(sCh, (n + 3) >> 1, (n + 3) & 1) + wqT(SL[n % 3], 0); vq += ["w%d" % (n + 3)] * 8
        if n & 1 and (n >> 1) + 3 < 8:
            c_ = (n >> 1) + 3
            issue += xchunk(c_, c_ & 3); vq += ["x%d" % c_] * 3
        a("s_waitcnt lgkmcnt(0)")
        if n & 1: a("s_barrier")
        fa, fb = fset(n & 1)
        main = [mf(acc(t, qt), fa + t * 4, fb + qt * 4, acc(t, qt)) for t in range(8) for qt in range(3)]
        tw = xaddr(n & 1) + ["v_add_u32 v%d, s%d, v%d" % (vTc, SL[(n + 2) % 3], vT)] if n < 14 else []
        weave(a, main, (preads((n + 1) & 1, (((n + 1) >> 1) & 3) * XC) if n < 15 else [], 0, 17), (issue, 0, 24), (tw, 18, 24))
        if n < 14:
            need = ["w%d" % (n + 2)]
            if not n & 1: need.append("x%d" % ((n >> 1) + 1))
            a("s_waitcnt vmcnt(%d)" % vneed(need))
    stamp(a, 1)
    q_final_T(a)
    if dbg: debug_dump(a, 0, True)
    b_kv_params(a)
    a("s_lshl_b32 s%d, s2, 17\ns_lshl_b32 s%d, s%d, 13\ns_add_u32 s%d, s%d, s%d" % (sBuf, sT0, sW, sBuf, sBuf, sT0))
    def a_rot(): a("s_mul_i32 s%d, s2, 3\ns_add_u32 s%d, s%d, s%d\ns_and_b32 s%d, s%d, 7" % (sSet, sSet, sSet, sB, sSet, sSet))
    a_rot()
    a("s_mov_b32 s%d, s%d\ns_mov_b32 s%d, s%d\ns_mov_b32 s%d, 0x%x" % (sX, sPtr + 2, sX + 1, sPtr + 3, sX + 2, SZ["Ak"]))
    a("s_sub_u32 s%d, s%d, %d" % (sT0, sMK, 2 * BLK))
    a("v_add_u32 v%d, s%d, v%d\nv_add_u32 v%d, s%d, v%d" % (vT, sT0, vT, vK, sT0, vK))
    a("s_lshl_b32 s%d, s%d, 19\ns_lshl_b32 s%d, s%d, 9\ns_add_u32 s%d, s%d, s%d" % (sWoB, sG, sT1, sW, sWoB, sWoB, sT1))
    a("s_and_b32 s%d, s%d, 7" % (sH0, sB))
    stamp(a, 2)
    att_init(a)
    def setdelta(row):
        d = SETSZ if row % 3 < 2 else -2 * SETSZ
        a("v_add_u32 v%d, %d, v%d\nv_add_u32 v%d, %d, v%d" % (vT, d, vT, vK, d, vK))
    def wo_off(add, hh, kbase=0):
        return ["s_add_u32 s%d, s%d, %d\ns_and_b32 s%d, s%d, 7" % (sOff, sH0, add, sOff, sOff),
                "s_lshl_b32 s%d, s%d, 15\ns_add_u32 s%d, s%d, s%d" % (sOff, sOff, sOff, sOff, sWoB)] + (["s_add_u32 s%d, s%d, %d" % (sOff, sOff, hh * 256 + kbase)] if hh or kbase else [])
    for s_ in range(p3_0):
        st = SCH[s_]
        if hasS(s_): a("s_barrier")
        sbst(a, s_)
        fk = 1 + 4 * (s_ - FS) if FS >= 0 and FS <= s_ <= FS + 1 else None
        if fk: stamp(a, fk, True)
        if FS >= 0 and s_ == FS + 2: stamp(a, 9, True)
        n_iss = len(st["iss"][0])
        c = st["cons"]
        if c is not None and c < 16:
            a("s_call_b64 s[%d:%d], L_tile" % (sRet2, sRet2 + 1))
            setdelta(c)
        if fk: stamp(a, fk + 1, True)
        if hasB(s_): a("s_barrier")
        issue_pieces(a, st["iss"][0])
        if fk: stamp(a, fk + 2, True)
        if c == 15: stamp(a, 3)
        s15 = max(cstep[15], 16)
        if s_ == cstep[15] + 1:
            o_final(a)
            if dbg: debug_dump(a, 1, True)
        if s_ == s15 + 2:
            a("s_mul_i32 s%d, s%d, 12288" % (sT0, sW))
            publish(a, sT0)
            a("s_waitcnt lgkmcnt(0)")
            zero(a, ACC, 96)
        if s_ == s15 + 3:
            zero(a, ACC + 96, 96)
            a("v_subrev_u32 v%d, s%d, v%d" % (vTc, sMK, vT))
            a("s_sub_u32 s%d, s%d, %d" % (sT0, sMW, SETSZ - 2 * BLK))
            a("v_add_u32 v%d, s%d, v%d" % (vTc, sT0, vTc))
        if s_ == p3_0 - 2:
            emit(a, wo_off(0, 0) + woT(sMW, 0) + wo_off(0, 1) + woT(sMW, BLK)); n_iss += 16
        if dbg and s_ == cstep[15] + 1: n_iss = 0
        a("s_waitcnt vmcnt(%d)" % n_iss)
        if fk: stamp(a, fk + 3, True)
    stamp(a, 4)
    a("s_mov_b32 s%d, 0" % sCnt)
    a.label("L_G0_o")
    for hh in range(2):
        if ONE: cond_lt(a, sCnt, 2 - hh, lambda: a("s_barrier"))
        else: a("s_barrier")
        if hh == 0:
            a("s_add_u32 s%d, s%d, s%d\ns_and_b32 s%d, s%d, 7\ns_mul_i32 s%d, s%d, 3072" % (sT0, sH0, sCnt, sT0, sT0, sT0, sT0))
            a("v_add_u32 v%d, s%d, v%d" % (vXa, sT0, vLane16))
        def iss():
            def body():
                a("s_add_u32 s%d, s%d, s%d\ns_add_u32 s%d, s%d, 1\ns_and_b32 s%d, s%d, 7" % (sOff, sH0, sCnt, sOff, sOff, sOff, sOff))
                a("s_lshl_b32 s%d, s%d, 15\ns_add_u32 s%d, s%d, s%d" % (sOff, sOff, sOff, sOff, sWoB))
                if hh: a("s_add_u32 s%d, s%d, 256" % (sOff, sOff))
                emit(a, woT(sMW, hh * BLK))
            fs0(1)
            cond(a, sCnt, 7, body, eq=False)
            fs0(2)
            if B2 and not LATEB: a("s_barrier")
        def fs0(k):
            F3 = int(opt("f3", -1))
            if F3 >= 0: cond(a, sCnt, F3 // 2, lambda: stamp(a, 1 + 4 * hh + k, True))
        fs0(0)
        projT(a, (0, 1024, 2048), hh * BLK, vTc, iss, lambda t, qt: acc(t, qt) + 96 * hh, AF0, BF0)
        if B2 and LATEB: a("s_barrier")
        if hh == 0: cond(a, sCnt, 7, lambda: a("s_waitcnt vmcnt(0)"))
        a("s_waitcnt vmcnt(8)")
    a("s_add_u32 s%d, s%d, 1\ns_cmp_lt_u32 s%d, 8\ns_cbranch_scc1 L_G0_o" % (sCnt, sCnt, sCnt))
    a("s_nop 7")
    for s in range(4):
        for qt in range(3):
            d = AF0 + (s * 3 + qt) * 4
            for h2 in range(2):
                src = acc(2 * s + h2, qt) + 96
                a("v_cvt_pk_bf16_f32 v%d, v%d, v%d" % (d + 2 * h2, src, src + 1))
                a("v_cvt_pk_bf16_f32 v%d, v%d, v%d" % (d + 2 * h2 + 1, src + 2, src + 3))
    def tail_params(cbexpr):
        a(cbexpr)
        a("s_lshl_b32 s%d, s%d, 19\ns_lshl_b32 s%d, s%d, 8\ns_add_u32 s%d, s%d, s%d\ns_add_u32 s%d, s%d, %d" % (sWoB, sG, sT1, sChN, sWoB, sWoB, sT1, sWoB, sWoB, 256 * 1024))
        a("s_mul_i32 s%d, s%d, %d\ns_add_u32 s%d, s%d, %d" % (sMW, sW, BLK, sMW, sMW, KVB))
    tail_params("s_lshl_b32 s%d, s%d, 1" % (sChN, sW))
    TS = (1, 2, 3, 0)
    def tail_blk(j): return wo_off(j, 0) + woT(sMW, TS[j % 4] * SETSZ)
    for s_ in range(p3_0 + 16, NS):
        a("s_barrier")
        if s_ == p3_0 + 16:
            a("s_mul_i32 s%d, s%d, 12288\ns_add_u32 s%d, s%d, %d" % (sT0, sW, sT0, sT0, HO))
            publish(a, sT0, AF0)
            a("s_waitcnt lgkmcnt(0)")
        for j in range(2):
            if s_ == max(cstep[37 + j] + 1, p3_0 + 16): emit(a, tail_blk(j))
        if hasB(s_): a("s_barrier")
        if s_ == NS - 1:
            assert hasB(s_) and s_ == p3_0 + 17
            emit(a, tail_blk(2))
    stamp(a, 5)
    def p3_addr():
        a("v_bfe_u32 v%d, v0, 2, 3" % T)
        a("v_mul_u32_u24 v%d, %d, v%d" % (vgK0, PIECE, T))
        a("v_lshrrev_b32 v%d, 5, v0\nv_lshl_add_u32 v%d, v%d, 9, v%d" % (T, vgK0, T, vgK0))
        a("v_and_b32 v%d, 3, v0\nv_lshl_add_u32 v%d, v%d, 3, v%d" % (T, vgK0, T, vgK0))
        a("v_add_u32 v%d, s%d, v%d" % (vgK0, sMW, vgK0))
        a("v_add_u32 v%d, %d, v%d" % (vgK1, 2 * SETSZ, vgK0))
    p3_addr()
    a.label("L_P3")
    def oad(j):
        return ["s_add_u32 s%d, s%d, %d\ns_and_b32 s%d, s%d, 7" % (sT0, sH0, j, sT0, sT0), "s_mul_i32 s%d, s%d, 3072" % (sT0, sT0),
                "v_add_u32 v%d, s%d, v%d" % (vXa, sT0, vLane16)]
    def treads(j):
        fa, fb = fset(j & 1)
        se = TS[j % 4]
        return ["ds_read_b128 %s, v%d offset:%d" % (v4(fb + qt * 4), vXa, qt * 1024) for qt in range(3)] + tr_reads(SETSZ * (se & 1), range(8), fa, vgK0 if se < 2 else vgK1)
    for x in oad(0): a(x)
    a("s_waitcnt vmcnt(16) lgkmcnt(0)\ns_barrier")
    stamp(a, 6)
    for r in treads(0): a(r)
    for x in oad(1): a(x)
    emit(a, tail_blk(3))
    a("s_waitcnt vmcnt(16)")
    WOV = "nowov" not in ARGS
    PK = F
    for j in range(8):
        issue = tail_blk(j + 4) if j + 4 < 8 and "p3nodma" not in ARGS else []
        if j == 6 and WOV:
            issue = ["s_add_u32 s%d, s%d, 32\ns_lshl_b32 s%d, s%d, 2\ns_add_u32 s%d, s%d, s%d" % (sBuf, sB, sBuf, sBuf, sBuf, sBuf, sChN),
                     "s_mul_i32 s%d, s%d, %d\ns_lshl_b32 s%d, s%d, 10\ns_add_u32 s%d, s%d, s%d" % (sBuf, sBuf, 12 * 8192, sT1, sG, sBuf, sBuf, sT1),
                     "s_lshr_b32 s%d, s%d, 1\ns_and_b32 s%d, s%d, 1\ns_cmp_eq_u32 s%d, s%d\ns_cselect_b32 s%d, s%d, 2" % (sT1, sG, sRot, sG, sT1, sChN, sRot, sRot),
                     "s_cmp_eq_u32 s%d, 1\ns_cselect_b32 s%d, 0x40000000, s%d" % (sRot, sSet, sBuf),
                     "s_cmp_eq_u32 s%d, 0\ns_cselect_b32 s%d, 0x40000000, s%d" % (sRot, sBuf, sBuf)]
        a("s_waitcnt lgkmcnt(0)")
        fa, fb = fset(j & 1)
        main = [mf(acc(t, qt), fa + t * 4, fb + qt * 4, acc(t, qt)) for t in range(8) for qt in range(3)]
        if j == 7 and WOV:
            def pk(i):
                s, qt = i // 3, i % 3
                d = PK + 4 * i
                out = []
                for hh in range(2):
                    src = acc(2 * s + hh, qt)
                    out.append("v_cvt_pk_bf16_f32 v%d, v%d, v%d" % (d + 2 * hh, src, src + 1))
                    out.append("v_cvt_pk_bf16_f32 v%d, v%d, v%d" % (d + 2 * hh + 1, src + 2, src + 3))
                out.append("s_add_u32 s%d, s%d, %d\nbuffer_store_dwordx4 %s, v%d, %s, s%d offen sc1" % (sT1, sBuf if i < 6 else sSet, i * 8192, v4(d), vLane16, srd(sWS), sT1))
                return out
            weave(a, main, (pk(0) + pk(1) + pk(2), 10, 16), (pk(3) + pk(4) + pk(5), 16, 22))
            stamp(a, 7)
            for i in range(6, 12):
                for x in pk(i): a(x)
            own_write(a, 1, PK)
            continue
        weave(a, main, (treads(j + 1) if j < 7 else [], 0, 17), (issue, 0, 24), (oad(j + 2) if j < 6 else [], 18, 24))
        if j < 6: a("s_waitcnt vmcnt(%d)" % (16 if j < 4 else 8 if j == 4 else 0))
        if j == 5: a("s_barrier")
    if not WOV:
        stamp(a, 7)
        store_partial(a, 1, sChN)
        own_write(a, 1)
    tail(a, True)

    a.label("L_G1")
    b_kv_params(a, -2)
    if "notlb" not in ARGS:
        a("v_mov_b32 v26, 0\ns_mov_b64 exec, 1")
        a("buffer_load_dword v27, v26, %s, s%d offen nt" % (srd(sK), sKV))
        a("buffer_load_dword v27, v26, %s, s%d offen nt" % (srd(sV), sKV))
        a("s_lshl_b32 s%d, s2, 17" % sT0)
        a("buffer_load_dword v27, v26, %s, s%d offen nt" % (srd(sXI), sT0))
        a("s_mov_b32 s%d, s%d\ns_mov_b32 s%d, s%d" % (sXI, sPtr + 2, sXI + 1, sPtr + 3))
        a("buffer_load_dword v27, v26, %s, s%d offen nt" % (srd(sXI), sT0))
        a("s_lshl_b32 s%d, s%d, 19" % (sT0, sG))
        a("buffer_load_dword v27, v26, %s, s%d offen" % (srd(sWO), sT0))
        a("s_mov_b64 exec, -1")
    if "wqpf" in ARGS:
        def pfB():
            a("v_lshrrev_b32 v26, 2, v0\nv_and_b32 v28, 3, v0\nv_lshlrev_b32 v28, 7, v28\nv_lshl_add_u32 v26, v26, 13, v28")
            a("s_lshl_b32 s%d, s%d, 17\ns_lshl_b32 s%d, s%d, 10\ns_add_u32 s%d, s%d, s%d\ns_add_u32 s%d, s%d, 512" % (sT0, sB, sT1, sG, sT0, sT0, sT1, sT0, sT0))
            a("buffer_load_dword v27, v26, %s, s%d offen" % (srd(sWQ), sT0))
        cond(a, sW, 2, pfB)
    rows_at = [int(c) for c in opt("pf", "579")]
    for i_ in range(9):
        a("s_barrier")
        for r_ in range(3):
            if rows_at[r_] == i_: issue_pieces(a, [(r_, p) for p in range(16)])
        if i_ == 0:
            a("s_waitcnt vmcnt(0)")
            zero(a, ACC, 96)
    assert rows_at[2] >= 7
    REV = "norev" not in ARGS
    a("s_add_u32 s%d, s%d, %d\ns_and_b32 s%d, s%d, 7" % (sCh, sH0, 7 if REV else 6, sCh, sCh))
    for k in range(2):
        for x in wq_off(sCh, 0, k): a(x)
        emit(a, wqT(sMW, k * BLK))
    late_rows = [r_ for r_ in range(3) if rows_at[r_] == 9]
    a("s_waitcnt vmcnt(32)")
    assert len(late_rows) <= 1
    for r_ in late_rows: issue_pieces(a, [(r_, p) for p in range(16)])
    a("s_and_b32 s%d, s%d, 1\ns_mul_i32 s%d, s%d, %d\ns_add_u32 s%d, s%d, s%d" % (sT1, sW, sT0, sT1, 3 * 8192, sXB, sXB, sT0))
    a("s_mul_i32 s%d, s%d, 3072" % (sWoB, sT1))
    a("v_add_u32 v%d, s%d, v%d" % (vTc, sMW, vT))
    a("s_mov_b32 s%d, %d\ns_mov_b32 s%d, 0" % (sBuf, (3 if REV else 2) * XC, sCnt))
    assert 0 not in late_rows
    a("s_waitcnt vmcnt(%d)" % (8 + 16 * len(late_rows)))
    def qloop(lab, regpath):
        a.label(lab)
        inc = 7 if (REV and not regpath) else 1
        for par in range(2):
            if ONE:
                if par == 0: cond(a, sCnt, 0, lambda: a("s_barrier"))
                cond(a, sCnt, 7, lambda: a("s_barrier"))
            else: a("s_barrier")
            def fst(k):
                if FS >= 0: cond(a, sCnt, FS // 2, lambda: stamp(a, 1 + 4 * par + k, True))
            fst(0)
            for x in xaddr(par, sBuf): a(x)
            xlate = "xlate" in ARGS
            def xs():
                a("s_xor_b32 s%d, s%d, %d\ns_add_u32 s%d, s%d, s%d" % (sN, sBuf, XC if regpath else (2 * XC) ^ (3 * XC), sN, sN, sWoB))
                out = ["s_add_u32 s%d, s%d, %d\ns_and_b32 s%d, s%d, 7" % (sChN, sCh, inc, sChN, sChN)]
                if regpath:
                    xp(out, sChN, 0, sX, 0, XNT)
                    for x in out: a(x)
                    o2 = []; xp(o2, sChN, 4, sX, 0, XNT)
                    cond_lt(a, sW, 2, lambda: a(o2[0]))
                else:
                    for p in range(3): xp(out, sChN, p, sX, 0, XNT)
                    for x in out: a(x)
            def xcond():
                l = a.newlabel("L_nx")
                a("s_sub_u32 s%d, s%d, 1\ns_cmp_lt_u32 s%d, 6\ns_cbranch_scc0 %s" % (sT0, sCnt, sT0, l))
                xs()
                a.label(l)
            def iss():
                xpar = 1 if ("xalt" in ARGS and not regpath) or ("xalt2" in ARGS and regpath) else 0
                if par == xpar and not xlate: xcond()
                def body():
                    for x in wq_off(sCh, inc, par): a(x)
                    emit(a, wqR(LB[par]) if regpath else wqT(sMW, par * BLK))
                fst(1)
                cond(a, sCnt, 7, body, eq=False)
                fst(2)
                if not LATEB: barB()
            def barB():
                if B2: a("s_barrier")
                if par == 0 and xlate: xcond()
            if regpath and OLDR: projR(a, (0, 2048, 4096), LB[par], iss)
            elif regpath: projR2(a, (0, 2048, 4096), QF, (232, 236, 240), vXa, iss, NF, barB)
            else:
                projT(a, (0, 2048, 4096), par * BLK, vTc, iss)
                if LATEB: barB()
            if par == 0 and xlate:
                l1_ = a.newlabel("L_v"); l2_ = a.newlabel("L_v")
                a("s_sub_u32 s%d, s%d, 1\ns_cmp_lt_u32 s%d, 6\ns_cbranch_scc0 %s" % (sT0, sCnt, sT0, l1_))
                a("s_waitcnt vmcnt(%d)\ns_branch %s" % (9 if regpath else 11, l2_))
                a.label(l1_)
                cond(a, sCnt, 7, lambda: a("s_waitcnt vmcnt(0)"))
                a("s_waitcnt vmcnt(8)")
                a.label(l2_)
            else:
                if par == 0: cond(a, sCnt, 7, lambda: a("s_waitcnt vmcnt(0)"))
                a("s_waitcnt vmcnt(8)")
            if regpath and not OLDR:
                if par == 0: perm_all(a, LB[1], QF)
                else: cond(a, sCnt, 7, lambda: perm_all(a, LB[0], QF), eq=False)
            fst(3)
        a("s_add_u32 s%d, s%d, %d\ns_and_b32 s%d, s%d, 7" % (sCh, sCh, inc, sCh, sCh))
        a("s_xor_b32 s%d, s%d, %d" % (sBuf, sBuf, XC if regpath else (2 * XC) ^ (3 * XC)))
        a("s_add_u32 s%d, s%d, 1\ns_cmp_lt_u32 s%d, 8\ns_cbranch_scc1 %s" % (sCnt, sCnt, sCnt, lab))
    qloop("L_G1_q", False)
    stamp(a, 1)
    assert not SCH[16]["iss"][1] and not SCH[17]["iss"][1] and not SCH[18]["iss"][1]
    a("s_barrier")
    q_final_T(a)
    if dbg: debug_dump(a, 0, True)
    a("s_barrier")
    att_init(a)
    def chk():
        lp = a.newlabel("L_st"); le = a.newlabel("L_se")
        dbg_srd(a)
        a("s_lshl_b32 s%d, s%d, 3" % (sT1, sB))
        a("v_mov_b32 v%d, 0\ns_mov_b32 s%d, 200000" % (T + 2, sT2))
        a.label(lp)
        a("s_sub_u32 s%d, s%d, 1\ns_cbranch_scc1 %s" % (sT2, sT2, le))
        a("buffer_load_dword v%d, v%d, %s, s%d offen sc1" % (T + 3, T + 2, srd(sXI), sT1))
        a("s_waitcnt vmcnt(0)")
        a("v_readfirstlane_b32 s%d, v%d" % (sT0, T + 3))
        a("s_and_b32 s%d, s%d, 7\ns_cbranch_scc0 %s" % (sT0, sT0, le))
        a("s_sleep 8\ns_branch %s" % lp)
        a.label(le)
    cond(a, sW, 2, chk)
    b_kv_params(a)
    a("s_sub_u32 s%d, s%d, %d" % (sT0, sMK, 2 * BLK))
    a("v_add_u32 v%d, s%d, v%d\nv_add_u32 v%d, s%d, v%d" % (vT, sT0, vT, vK, sT0, vK))
    a("s_and_b32 s%d, s%d, 7" % (sH0, sB))
    tail_params("s_lshl_b32 s%d, s%d, 1\ns_sub_u32 s%d, s%d, 3" % (sChN, sW, sChN, sChN))
    stamp(a, 2)
    for s_ in range(18, NS):
        st = SCH[s_]
        if hasS(s_): a("s_barrier")
        sbst(a, s_)
        F3 = int(opt("f3", -1))
        fk = 1 + 4 * (s_ - p3_0 - F3) if F3 >= 0 and F3 <= s_ - p3_0 <= F3 + 1 else None
        if fk: stamp(a, fk, True)
        if F3 >= 0 and s_ == p3_0 + F3 + 2: stamp(a, 9, True)
        c = st["cons"]
        n_iss = len(st["iss"][1])
        wop = int(opt("wopf", 19))
        if s_ in (wop, wop + 1):
            k_ = 18 if s_ == wop else 8
            a("s_mov_b32 s%d, s%d\ns_mov_b32 s%d, s%d\ns_mov_b32 s%d, 0x%x\ns_mov_b32 s%d, 0x20000" % (sXI, sPtr + k_, sXI + 1, sPtr + k_ + 1, sXI + 2, SZ["Awo"], sXI + 3))
            a("s_lshl_b32 s%d, s%d, 1\ns_and_b32 s%d, s%d, 1\ns_add_u32 s%d, s%d, s%d\ns_lshl_b32 s%d, s%d, 13" % (sT0, sB, sT1, sW, sT0, sT0, sT1, sT0, sT0))
            a("s_lshl_b32 s%d, s%d, 19\ns_add_u32 s%d, s%d, s%d" % (sT1, sG, sT0, sT0, sT1))
            a("v_lshlrev_b32 v%d, 7, v0" % T)
            a("buffer_load_dword v%d, v%d, %s, s%d offen" % (T + 1, T, srd(sXI), sT0))
            n_iss += 1
        for j in range(2):
            if s_ == max(cstep[37 + j] + 1, p3_0 + 16): emit(a, tail_blk(j)); n_iss += 8
        if c is not None and c >= 24:
            if c == 24: stamp(a, 4)
            if c == 39:
                assert not st["iss"][1]
                p3_addr()
            a("s_call_b64 s[%d:%d], L_tile" % (sRet2, sRet2 + 1))
            if c < 39: setdelta(c)
        if fk: stamp(a, fk + 1, True)
        if hasB(s_): a("s_barrier")
        if fk: stamp(a, fk + 2, True)
        issue_pieces(a, st["iss"][1])
        if s_ == NS - 1: emit(a, tail_blk(2))
        if fk: stamp(a, fk + 3, True)
        if s_ < cstep[39]: a("s_waitcnt vmcnt(%d)" % n_iss)
    stamp(a, 5)
    o_final(a)
    if dbg: debug_dump(a, 1, True)
    a("s_and_b32 s%d, s%d, 1\ns_mul_i32 s%d, s%d, 12288\ns_add_u32 s%d, s%d, %d" % (sT0, sW, sT0, sT0, sT1, sT0, HO))
    a("v_add_u32 v%d, s%d, v%d" % (vTmpB, sT1, vLane16))
    HB_ = F
    for i in range(12): a("ds_read_b128 %s, v%d offset:%d" % (v4(HB_ + 4 * i), vTmpB, i * 1024))
    publish(a, sT0)
    for s in range(4):
        a("s_waitcnt lgkmcnt(%d)" % min(15, 12 + 9 - 3 * s))
        for qt in range(3):
            d = HB_ + (s * 3 + qt) * 4
            for h2 in range(2):
                dst = acc(2 * s + h2, qt)
                for e in range(2):
                    a("v_lshlrev_b32 v%d, 16, v%d" % (dst + 2 * e, d + 2 * h2 + e))
                    a("v_and_b32 v%d, 0xffff0000, v%d" % (dst + 2 * e + 1, d + 2 * h2 + e))
    a("s_branch L_P3")

    a.label("L_A")
    def g0():
        a("v_mov_b32 v16, %d\nv_mov_b32 v18, 0\nv_mov_b32 v19, 0\nv_mov_b32 v21, 0" % SYNC)
        a("s_lshl_b32 s%d, s2, 7\ns_add_u32 s%d, s%d, 0x%x" % (sT1, sT1, sT1, GO))
        a("buffer_load_dword v20, v18, %s, s%d offen sc1" % (srd(sWS), sT1))
        a("buffer_load_dword v28, v18, %s, s%d offen offset:4 sc1" % (srd(sWS), sT1))
        a("v_mov_b32 v26, 0\nv_mov_b32 v27, 0\nv_mov_b32 v29, 0")
        dbg_srd(a)
        a("s_lshl_b32 s%d, s%d, 3" % (sT1, sB))
        a("v_mov_b32 v22, 1")
        a("s_waitcnt vmcnt(0)")
        a("ds_write_b128 v16, v[18:21]\nds_write_b128 v16, v[26:29] offset:16")
        a("s_mov_b64 exec, 1")
        a("buffer_atomic_add v22, v18, %s, s%d offen sc1" % (srd(sXI), sT1))
        a("s_mov_b64 exec, -1")
        a("s_waitcnt lgkmcnt(0)")
    cond(a, sW, 0, g0)
    a("s_mov_b32 s%d, 0x05040100\ns_mov_b32 s%d, 0x07060302" % (sSelLo, sSelHi))
    a("v_lshrrev_b32 v24, 4, v0\nv_and_b32 v25, 15, v0\nv_lshlrev_b32 v25, 4, v25")
    a("v_lshl_add_u32 v%d, v24, 16, v25\nv_lshl_add_u32 v%d, v24, 12, v25" % (vgWq, vgWo))
    a("s_lshl_b32 s%d, s%d, 13\ns_add_u32 s%d, s%d, s%d" % (sT0, sW, sXB, sXB, sT0))
    a("s_lshl_b32 s%d, s%d, 10" % (sWoB, sW))
    a("s_mov_b32 s%d, s%d" % (sCh, sH0))
    if "notlb" not in ARGS:
        a("v_mov_b32 v26, 0\ns_mov_b64 exec, 1")
        a("buffer_load_dword v27, v26, %s, s%d offen" % (srd(sX), sXB))
        a("s_lshl_b32 s%d, s%d, 20" % (sT0, sW))
        a("buffer_load_dword v27, v26, %s, s%d offen" % (srd(sWQ), sT0))
        a("s_lshl_b32 s%d, s%d, 19" % (sT0, sG))
        a("buffer_load_dword v27, v26, %s, s%d offen" % (srd(sWO), sT0))
        a("s_mov_b64 exec, -1")
    if "wqpf" in ARGS:
        def pfA():
            a("v_lshrrev_b32 v26, 3, v0\nv_and_b32 v28, 7, v0\nv_lshlrev_b32 v28, 7, v28\nv_lshl_add_u32 v26, v26, 13, v28")
            a("s_lshl_b32 s%d, s%d, 1\ns_and_b32 s%d, s%d, 1\ns_add_u32 s%d, s%d, s%d\ns_lshl_b32 s%d, s%d, 16" % (sT0, sB, sT1, sW, sT0, sT0, sT1, sT0, sT0))
            a("s_lshl_b32 s%d, s%d, 10\ns_add_u32 s%d, s%d, s%d" % (sT1, sG, sT0, sT0, sT1))
            a("buffer_load_dword v27, v26, %s, s%d offen" % (srd(sWQ), sT0))
        cond_lt(a, sW, 2, pfA)
    aw = int(opt("aw", 2))
    for i_ in range(9):
        a("s_barrier")
        if i_ == 1:
            a("s_waitcnt vmcnt(0)")
            zero(a, ACC, 96)
        if i_ == int(opt("xt", -1)):
            def touch():
                a("v_lshlrev_b32 v%d, 7, v0" % T)
                a("s_lshl_b32 s%d, s%d, 13\ns_add_u32 s%d, s%d, s%d" % (sT0, sW, sT0, sT0, sXB))
                a("buffer_load_dword v%d, v%d, %s, s%d offen" % (T + 1, T, srd(sX), sT0))
                a("s_add_u32 s%d, s%d, 8192" % (sT0, sT0))
                a("buffer_load_dword v%d, v%d, %s, s%d offen" % (T + 2, T, srd(sX), sT0))
            cond(a, sW, 3, touch, eq=False)
        if i_ == 6:
            for c_ in range(2):
                a("s_add_u32 s%d, s%d, %d" % (sN, sWoB, c_ * XC))
                out = ["s_add_u32 s%d, s%d, %d\ns_and_b32 s%d, s%d, 7" % (sChN, sCh, c_, sChN, sChN)]
                xp(out, sChN, 0, sX, 0, XNT)
                for x in out: a(x)
                o2 = []; xp(o2, sChN, 4, sX, 0, XNT)
                cond_lt(a, sW, 2, lambda: a(o2[0]))
        if i_ == aw:
            for k in range(2):
                for x in wq_off(sCh, 0, k): a(x)
                emit(a, wqR(LB[k]))
    a("s_mov_b32 s%d, 0\ns_mov_b32 s%d, 0" % (sBuf, sCnt))
    a("s_waitcnt vmcnt(8)")
    perm_all(a, LB[0], QF)
    qloop("L_A_q", True)
    stamp(a, 1)
    a0 = 16
    if cstep[16] > 16:
        a("s_barrier"); a0 = 17
    q_final_R(a)
    if dbg: debug_dump(a, 0, False)
    att_init(a)
    a("v_add_u32 v%d, %d, v%d\nv_add_u32 v%d, %d, v%d" % (vT, KVB + SETSZ, vT, vK, KVB + SETSZ, vK))
    a("s_lshl_b32 s%d, s%d, 19\ns_lshl_b32 s%d, s%d, 8\ns_add_u32 s%d, s%d, s%d" % (sWoB, sG, sT1, sW, sWoB, sWoB, sT1))
    a("s_and_b32 s%d, s%d, 3" % (sH0, sB))
    a("s_lshr_b32 s%d, s%d, 2" % (sSp, sB))
    a("s_and_b32 s%d, s%d, 7\ns_mul_i32 s%d, s%d, 3072" % (sChN, sB, sChN, sChN))
    a("s_lshl_b32 s%d, s2, 17\ns_lshr_b32 s%d, s%d, 1\ns_lshl_b32 s%d, s%d, 13\ns_add_u32 s%d, s%d, s%d" % (sBuf, sT0, sW, sT0, sT0, sBuf, sBuf, sT0))
    a_rot()
    a("s_mul_i32 s%d, s%d, %d\ns_add_u32 s%d, s%d, %d" % (sMK, sW, BLK, sMK, sMK, KVB))
    a("s_and_b32 s%d, s%d, 1\ns_cmp_eq_u32 s%d, 1" % (sT0, sW, sT0))
    a("s_cselect_b32 s%d, s%d, s%d\ns_cselect_b32 s%d, s%d, s%d\ns_mov_b32 s%d, 0x%x" % (sK, sPtr + 4, sPtr + 2, sK + 1, sPtr + 5, sPtr + 3, sK + 2, SZ["Ak"]))
    a("s_cselect_b64 vcc, -1, 0")
    a("v_cndmask_b32 v%d, v%d, v%d, vcc\nv_cndmask_b32 v%d, v%d, v%d, vcc" % (vgK0, vgK0, vgV, vgK1, vgK1, vgV))
    stamp(a, 2)
    for s_ in range(a0, p3_0):
        a("s_barrier")
        c = SCH[s_]["cons"]
        row = SCH[s_]["aiss"]
        if row is not None:
            for r in k_reads(0, (0,)): a(r)
            out = [row_off(row)]
            for j in range(8):
                out += ["s_add_u32 m0, s%d, %d" % (sMK, (row % 3) * SETSZ + j * (PIECE - 256)),
                        "buffer_load_dwordx4 v%d, %s, s%d offen offset:%d nt lds" % (vgK0 if j < 4 else vgK1, srd(sK), sOff, j * 256)]
            emit(a, out)
            a("s_call_b64 s[%d:%d], L_att1" % (sRet2, sRet2 + 1))
            a("s_waitcnt vmcnt(8)")
        elif c is not None and 16 <= c < 24:
            a("s_call_b64 s[%d:%d], L_att" % (sRet2, sRet2 + 1))
            a("s_waitcnt vmcnt(0)")
        if c is not None and 16 <= c < 24:
            if c < 23: setdelta(c)
            if c == 19 and opt("pause"): a("s_sleep %s" % opt("pause"))
            if opt("slowa"): a("s_sleep %s" % opt("slowa"))
    stamp(a, 3)
    def ks_calc(jreg, jadd):
        a("s_add_u32 s%d, s%d, %d" % (sT2, jreg, jadd))
        a("s_lshr_b32 s%d, s%d, 2\ns_add_u32 s%d, s%d, s%d\ns_and_b32 s%d, s%d, 3" % (sT0, sT2, sT0, sT0, sH0, sT0, sT0))
        a("s_add_u32 s%d, s%d, s%d\ns_and_b32 s%d, s%d, 3" % (sT1, sT2, sSp, sT1, sT1))
    def wo_issue(jadd, lb):
        ks_calc(sCnt, jadd)
        a("s_lshl_b32 s%d, s%d, 2\ns_add_u32 s%d, s%d, s%d\ns_lshl_b32 s%d, s%d, 15\ns_add_u32 s%d, s%d, s%d" % (sOff, sT0, sOff, sOff, sT1, sOff, sOff, sOff, sOff, sWoB))
        emit(a, woR(lb))
    def jit(jadd, bufY):
        ks_calc(sCnt, jadd)
        a("s_mov_b32 s%d, %s" % (sN, ("s%d" % sChN) if bufY else str(SP)))
        a("s_call_b64 s[%d:%d], L_jit" % (sRet2, sRet2 + 1))
    a("s_barrier")
    a("v_mov_b32 v2, v%d" % vgWo)
    a("s_mov_b32 s%d, 0" % sCnt)
    wo_issue(0, LB[0]); wo_issue(1, LB[1])
    if B2: a("s_barrier")
    o_final(a)
    if dbg: debug_dump(a, 1, False)
    stamp(a, 4)
    a("s_barrier")
    jit(0, False)
    if B2: a("s_barrier")
    zero(a, ACC, 96)
    a("s_waitcnt vmcnt(0)")
    perm_all(a, LB[0], FR)
    a.label("L_A_o")
    for par in range(2):
        if ONE:
            if par == 0: cond(a, sCnt, 0, lambda: a("s_barrier"))
            cond(a, sCnt, 14, lambda: a("s_barrier"))
        else: a("s_barrier")
        a("v_add_u32 v3, %s, v%d" % (("s%d" % sChN) if par else str(SP), vLane16))
        def dojit():
            if par == 0:
                a("s_cmp_eq_u32 s%d, 14\ns_cselect_b32 s%d, %d, s%d" % (sCnt, sChN, ZB, sChN))
                jit(1, True)
            else: cond(a, sCnt, 14, lambda: jit(2, False), eq=False)
        JL = "jitlate" in ARGS
        if not LATEB and not JL: dojit()
        def fsA(k):
            F3 = int(opt("f3", -1))
            if F3 >= 0: cond(a, sCnt, F3 - 2, lambda: stamp(a, 1 + 4 * par + k, True))
        fsA(0)
        def issA():
            fsA(1)
            cond(a, sCnt, 14, lambda: wo_issue(2 + par, LB[par]), eq=False)
            fsA(2)
            if B2 and not LATEB: a("s_barrier")
            if JL: dojit()
        def barA():
            if B2: a("s_barrier")
            dojit()
        if OLDR:
            a("v_mov_b32 v%d, v3" % vXa)
            projR(a, (0, 1024, 2048), LB[par], issA)
        else: projR2(a, (0, 1024, 2048), FR, (248, 252, 4), 3, issA, NF, barA)
        if par == 0: cond(a, sCnt, 14, lambda: a("s_waitcnt vmcnt(0)"))
        a("s_waitcnt vmcnt(8)")
        if OLDR: pass
        elif par == 0: perm_all(a, LB[1], FR)
        else: cond(a, sCnt, 14, lambda: perm_all(a, LB[0], FR), eq=False)
        fsA(3)
    a("s_add_u32 s%d, s%d, 2\ns_cmp_lt_u32 s%d, 16\ns_cbranch_scc1 L_A_o" % (sCnt, sCnt, sCnt))
    stamp(a, 5)
    a("v_lshrrev_b32 v0, 4, v%d" % vLane16)
    ast = int(opt("ast", 2))
    if ast == 0: store_partial(a, 0, sW)
    for s_ in range(p3_0 + 18, NS): a("s_barrier")
    a("s_barrier")
    if ast == 1: store_partial(a, 0, sW)
    a("s_barrier")
    if ast == 2: store_partial(a, 0, sW)
    own_write(a, 0)
    tail(a, False)

    a.label("L_tile")
    a("s_setprio 1")
    for r in k_reads(2 * BLK, (0,)): a(r)
    a("s_branch L_att2")
    a.label("L_att")
    for r in k_reads(0, (0,)): a(r)
    a.label("L_att1")
    a("s_setprio 1")
    tile_fast(a, BLK, 2 * BLK)
    a.label("L_att2")
    tile_fast(a, 3 * BLK, None)
    a("s_setprio 0")
    a("s_setpc_b64 s[%d:%d]" % (sRet2, sRet2 + 1))
    a.label("L_jit")
    a("s_cmp_eq_u32 s%d, s%d\ns_cbranch_scc0 L_jit_r" % (sT0, sW))
    a("v_add_u32 v0, s%d, v%d" % (sN, vLane16))
    for sp in range(4):
        l = a.newlabel("L_j")
        if sp < 3: a("s_cmp_eq_u32 s%d, %d\ns_cbranch_scc0 %s" % (sT1, sp, l))
        for qt in range(3): a("ds_write_b128 v0, %s offset:%d" % (v4(qf(sp, qt)), qt * 1024))
        if sp < 3:
            a("s_branch L_jit_w")
            a.label(l)
    a.label("L_jit_w")
    a("s_waitcnt lgkmcnt(0)")
    a.label("L_jit_r")
    a("s_setpc_b64 s[%d:%d]" % (sRet2, sRet2 + 1))
    emit_stubs(a)
    slow_path(a)
    a.label("L_code_end")
    a("s_endpgm")

HDR = open("cdna_kernels/%s.s.ref" % NAME).read().split("; Override launch")[0]

def make(dbg=False):
    a = Asm()
    gen_main(a, dbg)
    rep = []
    lines = hazard.run(a.l, rep)
    for p in hazard.check_all_edges(lines): print("EDGE HAZARD", p)
    src = HDR + "; @launch grid=(256,1,1) block=(512,1,1) lds=%d\n" % LDS_BYTES
    src += ".amdgcn_target \"amdgcn-amd-amdhsa--gfx950\"\n" + "\n".join(lines) + "\n" + kernel_desc(KNAME, 256)
    print("nops inserted", rep, "lines", len(lines))
    return src

if __name__ == "__main__":
    dbg = "dbg" in ARGS
    out = opt("o", "k_dbg" if dbg else "k_st" if STAMP else "k")
    build(make(dbg), out, KNAME)
```

```python
import sys, math, struct
from asmlib import *
import hazard
from sched import make_sched

NAME = "concat_heads__gqa_block_cached__mha_block_cached__near_ridge"
KNAME = NAME + "_kernel"
ARGS = set(sys.argv[1:])
def opt(name, default=None):
    for x in sys.argv[1:]:
        if x.startswith(name + "="): return x[len(name) + 1:]
    return default

BLK = 8448
PIECE = 1056
SETSZ = 4 * BLK
XC = 6144
SP = 24576
KVB = 28672
WR = KVB + 3 * SETSZ
LDS_BYTES = WR + SETSZ
assert LDS_BYTES == 163840
SYNC = WR + 3 * BLK + 7 * PIECE + 1024
HO = WR
assert HO + 24576 <= SYNC

vLane16, vT, vK, vgK0, vgK1, vgV, vgWo = 1, 2, 3, 4, 5, 6, 7
ACC, QF, F, S, P, NM, L, ON, T = 8, 104, 152, 184, 208, 220, 232, 244, 248
VWQ = S
vXr, vgWq, vgX = 245, 244, 246
vXa, vTc, vTmpA, vTmpB = T, T + 1, T + 2, T + 3
LB = (152, 184)
FR = 216
BFR = 232
AF0, BF0 = 200, 232
def acc(t, qt): return ACC + (t * 3 + qt) * 4
def qf(s, qt): return QF + (s * 3 + qt) * 4
def sreg(kt, qt): return S + (kt * 3 + qt) * 4
def preg(qt): return P + qt * 4
def v4(r): return "v[%d:%d]" % (r, r + 3)
def v2(r): return "v[%d:%d]" % (r, r + 1)

sSelLo, sThr = 0, 1
sWave, sB, sG, sW = 3, 4, 5, 6
sX, sK, sV, sWQ, sWO, sWS, sXI = 8, 12, 16, 20, 24, 28, 32
sPtr = 36
sCyc, sSelHi = 60, 61
sKV, sRot, sOff, sT0, sT1, sT2, sCnt = 62, 63, 64, 65, 66, 67, 68
sWqB, sWoB, sXB, sCh, sChN, sBuf = 69, 70, 71, 72, 73, 74
sMW, sMK = 75, 76
sFloor = 77
sRet, sRet2 = 78, 80
sSp = 82
sH0, sN, sC, sSet = 86, 87, 88, 89
sSl0, sSl1, sSl2 = 7, 62, 63
sMsk = 7
def srd(r): return "s[%d:%d]" % (r, r + 3)

SCALE = (128 ** -0.5) * math.log2(math.e)
BIAS = 7.0
def fbits(x): return struct.unpack("<I", struct.pack("<f", x))[0]
STAMP = "stamp" in ARGS
GO = 48 << 20
OWN = "noown" not in ARGS
XNT = " nt" if "xnt" in ARGS else ""

def mf(d, a, b, c):
    return "v_mfma_f32_16x16x32_bf16 %s, %s, %s, %s" % (v4(d), v4(a), v4(b), v4(c) if c is not None else "0")

def weave(a, main, *streams):
    pos = [0] * len(streams)
    for i, m in enumerate(main):
        a(m)
        for k, (lst, st, en) in enumerate(streams):
            if i >= st:
                want = len(lst) if i >= en - 1 else (len(lst) * (i - st + 1) + (en - st) - 1) // (en - st)
                while pos[k] < want:
                    a(lst[pos[k]]); pos[k] += 1
    for k, (lst, st, en) in enumerate(streams):
        while pos[k] < len(lst):
            a(lst[pos[k]]); pos[k] += 1

def pol(k): return (" " + opt("pol" + k, "nt").replace("+", " ").replace("plain", "")).rstrip()

def kv_piece(m0base, m0add, j, isv, sk=sK, sv=sV):
    vg = vgV if isv else (vgK0 if j < 4 else vgK1)
    return ["s_add_u32 m0, s%d, %d" % (m0base, m0add + j * (PIECE - 256)),
            "buffer_load_dwordx4 v%d, %s, s%d offen offset:%d nt lds" % (vg, srd(sv if isv else sk), sOff, j * 256)]

def wqT(m0base, m0add):
    out = []
    for j in range(8):
        if j & 3 == 0: out.append("s_add_u32 m0, s%d, %d" % (m0base, m0add + j * PIECE))
        out.append("buffer_load_dwordx4 v%d, %s, s%d offen offset:%d lds" % (VWQ + j, srd(sWQ), sOff, (j & 3) * PIECE))
    return out
def woT(m0base, m0add):
    out = []
    for j in range(8):
        out.append("s_add_u32 m0, s%d, %d" % (m0base, m0add + j * PIECE - (j & 3) * 1024) + ("\ns_add_u32 s%d, s%d, 4096" % (sOff, sOff) if j == 4 else ""))
        out.append("buffer_load_dwordx4 v%d, %s, s%d offen offset:%d lds" % (vgWo, srd(sWO), sOff, (j & 3) * 1024))
    return out
def emit(a, lst):
    prev = ""
    for x in lst:
        if x.startswith("buffer") and x.endswith("lds") and prev.split("\n")[-1].startswith("s_add_u32 m0"): a("s_nop 0")
        a(x); prev = x

def tr_reads(off, tiles=range(8), dst0=F, va=vT):
    return ["ds_read_b64_tr_b16 %s, v%d offset:%d" % (v2(dst0 + t * 4 + h * 2), va, off + 256 * h + 32 * t) for t in tiles for h in range(2)]
def k_reads(off, kts=(0, 1)):
    return ["ds_read_b128 %s, v%d offset:%d" % (v4(F + (kt * 4 + s) * 4), vK, off + 512 * kt + 64 * s) for kt in kts for s in range(4)]

def sm_chain(kt, qt):
    t0 = T + ((kt * 3 + qt) & 1) * 4
    s = sreg(kt, qt)
    out = ["v_exp_f32 v%d, v%d" % (t0 + r, s + r) for r in range(4)]
    out.append("v_cvt_pk_bf16_f32 v%d, v%d, v%d" % (preg(qt) + 2 * kt, t0, t0 + 1))
    out.append("v_cvt_pk_bf16_f32 v%d, v%d, v%d" % (preg(qt) + 2 * kt + 1, t0 + 2, t0 + 3))
    return out
def qk_chain(kt, qt):
    return [mf(sreg(kt, qt), F + (kt * 4 + s) * 4, qf(s, qt), sreg(kt, qt) if s else NM + qt * 4) for s in range(4)]
def pv_list(tiles): return [mf(acc(t, qt), F + t * 4, preg(qt), acc(t, qt)) for t in tiles for qt in range(3)]
def l_list(): return [mf(L + qt * 4, ON, preg(qt), L + qt * 4) for qt in range(3)]

def tile_old(a, vo, knext):
    c = [qk_chain(kt, qt) for kt in range(2) for qt in range(3)]
    sm = [sm_chain(kt, qt) for kt in range(2) for qt in range(3)]
    v0 = tr_reads(vo, range(4)); v1 = tr_reads(vo, range(4, 8))
    for s in range(4):
        a("s_waitcnt lgkmcnt(%d)" % (7 - s))
        a(c[0][s])
    for m in c[1]: a(m)
    weave(a, c[2], (sm[0], 1, 4))
    a("s_waitcnt lgkmcnt(0)")
    weave(a, c[3], (sm[1], 0, 4), (v0[:4], 0, 4))
    weave(a, c[4], (sm[2], 0, 4), (v0[4:], 0, 4))
    s5 = sreg(1, 2)
    O1, O2 = P + 10, P + 11
    pre = ["v_or3_b32 v%d, v%d, v%d, v%d" % (O1, P, P + 1, P + 4), "v_or3_b32 v%d, v%d, v%d, v%d" % (O2, P + 5, P + 8, P + 9)]
    weave(a, c[5], (pre, 0, 2), (sm[3], 0, 4))
    a(sm[4][0]); a(sm[4][1])
    a("v_or3_b32 v%d, v%d, v%d, v%d" % (O1, O1, P + 2, P + 3))
    a(sm[4][2]); a(sm[4][3])
    a("v_or_b32 v%d, v%d, v%d" % (O1, O1, O2))
    a(sm[4][4]); a(sm[4][5])
    a("v_max3_f32 v%d, v%d, v%d, v%d" % (O2, s5, s5 + 1, s5 + 2))
    a("v_or3_b32 v%d, v%d, v%d, v%d" % (O1, O1, P + 6, P + 7))
    a("v_lshl_or_b32 v%d, v%d, 16, v%d" % (O1, O1, O1))
    a("v_and_b32 v%d, 0x40000000, v%d" % (O1, O1))
    a("v_max3_f32 v%d, v%d, v%d, v%d" % (O2, O2, s5 + 3, O1))
    a("v_cmp_le_f32 vcc, s%d, v%d" % (sThr, O2))
    ok = a.newlabel("L_ok")
    a("s_cbranch_vccz %s" % ok)
    a("s_call_b64 s[%d:%d], L_slow" % (sRet, sRet + 1))
    a.label(ok)
    ll = l_list()
    a("s_waitcnt lgkmcnt(0)")
    m1 = [ll[0], ll[1]] + [mf(acc(t, qt), F + t * 4, preg(qt), acc(t, qt)) for t in range(4) for qt in range(2)]
    weave(a, m1, (sm[5], 0, 5), (v1, 0, 8))
    a(ll[2])
    for t in range(4): a(mf(acc(t, 2), F + t * 4, preg(2), acc(t, 2)))
    m2 = pv_list(range(4, 8))
    if knext is not None:
        for r in k_reads(knext, (0,)): a(r)
        a("s_waitcnt lgkmcnt(4)")
        for m in m2: a(m)
        for r in k_reads(knext, (1,)): a(r)
    else:
        a("s_waitcnt lgkmcnt(0)")
        for m in m2: a(m)

STUBS = []
def tile_fast(a, vo, knext):
    c = [qk_chain(kt, qt) for kt in range(2) for qt in range(3)]
    sm = [sm_chain(kt, qt) for kt in range(2) for qt in range(3)]
    v0 = tr_reads(vo, range(4)); v1 = tr_reads(vo, range(4, 8))
    k1 = k_reads(vo - BLK, (1,))
    def chk(qt):
        t = T + 4 * (qt & 1); p = preg(qt)
        return ["v_or3_b32 v%d, v%d, v%d, v%d" % (t, p, p + 1, p + 2),
                "v_bitop3_b32 v%d, v%d, v%d, s%d bitop3:0xa8" % (t, t, p + 3, sMsk),
                "v_cmp_le_u32 vcc, s%d, v%d" % (sThr, t)]
    def br(qt):
        ok = a.newlabel("L_ok"); st = a.newlabel("L_stub")
        a("s_cbranch_vccnz %s" % st)
        a.label(ok)
        STUBS.append((st, ok, qt))
    def pvq(qt): return [l_list()[qt]] + [mf(acc(t, qt), F + t * 4, preg(qt), acc(t, qt)) for t in range(4)]
    for s in range(4):
        a("s_waitcnt lgkmcnt(3)")
        a(c[0][s])
        a(k1[s])
    for m in c[1]: a(m)
    weave(a, c[2], (sm[0], 0, 4))
    a("s_waitcnt lgkmcnt(0)")
    weave(a, c[3], (sm[1], 0, 4), (v0[:4], 0, 4))
    weave(a, c[4], (sm[2], 0, 4), (v0[4:], 0, 4))
    weave(a, c[5], (sm[3] + chk(0), 0, 3))
    a("s_waitcnt lgkmcnt(0)")
    br(0)
    weave(a, pvq(0), (sm[4] + chk(1), 0, 4))
    br(1)
    weave(a, pvq(1), (sm[5] + chk(2), 0, 4), (v1[:2], 3, 5))
    br(2)
    weave(a, pvq(2), (v1[2:], 0, 4))
    m2 = pv_list(range(4, 8))
    kn = k_reads(knext, (0,)) if knext is not None else []
    for t in range(4):
        a("s_waitcnt lgkmcnt(%d)" % (6 - 2 * t + (min(2 * t, 4) if kn else 0)))
        for i, m in enumerate(m2[3 * t:3 * t + 3]):
            a(m)
            if kn and t < 2 and i < 2: a(kn[2 * t + i])

def emit_stubs(a):
    for st, ok, qt in STUBS:
        a.label(st)
        a("s_call_b64 s[%d:%d], L_slow%d" % (sRet, sRet + 1, qt))
        a("s_branch %s" % ok)

def xlane(a, op, r, t):
    a("v_mov_b32 v%d, v%d" % (t, r))
    a("v_permlane32_swap_b32 v%d, v%d" % (t, r))
    a("%s v%d, v%d, v%d" % (op, r, r, t))
    a("v_mov_b32 v%d, v%d" % (t, r))
    a("v_permlane16_swap_b32 v%d, v%d" % (t, r))
    a("%s v%d, v%d, v%d" % (op, r, r, t))

def slow_old(a):
    a.label("L_slow")
    a("s_nop 7")
    for qt in range(3):
        s0, s1 = sreg(0, qt), sreg(1, qt)
        x = T
        a("v_max3_f32 v%d, v%d, v%d, v%d" % (x, s0, s0 + 1, s0 + 2))
        a("v_max3_f32 v%d, v%d, v%d, v%d" % (x, x, s0 + 3, s1))
        a("v_max3_f32 v%d, v%d, v%d, v%d" % (x, x, s1 + 1, s1 + 2))
        a("v_max_f32 v%d, v%d, v%d" % (x, x, s1 + 3))
        xlane(a, "v_max_f32", x, T + 1)
        a("v_max_f32 v%d, s%d, v%d" % (x, sFloor, x))
        a("v_add_f32 v%d, 0x%x, v%d" % (x, fbits(BIAS), x))
        a("v_sub_f32 v%d, 0, v%d" % (T + 1, x))
        a("v_min_f32 v%d, 0, v%d" % (T + 1, T + 1))
        a("v_exp_f32 v%d, v%d" % (T + 1, T + 1))
        for r in range(4):
            a("v_sub_f32 v%d, v%d, v%d" % (NM + qt * 4 + r, NM + qt * 4 + r, x))
            a("v_sub_f32 v%d, v%d, v%d" % (s0 + r, s0 + r, x))
            a("v_sub_f32 v%d, v%d, v%d" % (s1 + r, s1 + r, x))
        lsk = a.newlabel("L_nors")
        a("s_cmp_lg_u32 s%d, 1.0\ns_cbranch_scc1 %s" % (sThr, lsk))
        for r in range(4):
            a("v_mul_f32 v%d, v%d, v%d" % (L + qt * 4 + r, L + qt * 4 + r, T + 1))
        for t in range(8):
            for r in range(4):
                a("v_mul_f32 v%d, v%d, v%d" % (acc(t, qt) + r, acc(t, qt) + r, T + 1))
        a.label(lsk)
    for kt in range(2):
        for qt in range(3):
            for s in sm_chain(kt, qt): a(s)
    a("s_mov_b32 s%d, 0x%x" % (sFloor, fbits(-BIAS)))
    a("s_mov_b32 s%d, 1.0" % sThr)
    a("s_nop 1")
    a("s_setpc_b64 s[%d:%d]" % (sRet, sRet + 1))

def slow_path(a):
    if "oldtile" in ARGS: return slow_old(a)
    for qt in range(3):
        a.label("L_slow%d" % qt)
        s0, s1 = sreg(0, qt), sreg(1, qt)
        x = T
        a("v_max3_f32 v%d, v%d, v%d, v%d" % (x, s0, s0 + 1, s0 + 2))
        a("v_max3_f32 v%d, v%d, v%d, v%d" % (x + 1, s0 + 3, s1, s1 + 1))
        a("v_max3_f32 v%d, v%d, v%d, v%d" % (x, x, s1 + 2, s1 + 3))
        a("v_max_f32 v%d, v%d, v%d" % (x, x, x + 1))
        xlane(a, "v_max_f32", x, T + 1)
        a("v_max_f32 v%d, s%d, v%d" % (x, sFloor, x))
        a("v_add_f32 v%d, 0x%x, v%d" % (x, fbits(BIAS), x))
        for r in range(4):
            a("v_sub_f32 v%d, v%d, v%d" % (s0 + r, s0 + r, x))
            a("v_sub_f32 v%d, v%d, v%d" % (s1 + r, s1 + r, x))
            a("v_sub_f32 v%d, v%d, v%d" % (NM + qt * 4 + r, NM + qt * 4 + r, x))
        lsk = a.newlabel("L_nors")
        a("s_cmp_eq_u32 s%d, 0\ns_cbranch_scc1 %s" % (sThr, lsk))
        a("v_sub_f32 v%d, 0, v%d" % (T + 1, x))
        a("v_exp_f32 v%d, v%d" % (T + 1, T + 1))
        for r in range(4):
            a("v_mul_f32 v%d, v%d, v%d" % (L + qt * 4 + r, L + qt * 4 + r, T + 1))
        for t in range(8):
            for r in range(4):
                a("v_mul_f32 v%d, v%d, v%d" % (acc(t, qt) + r, acc(t, qt) + r, T + 1))
        a.label(lsk)
        for kt in range(2):
            t0 = T + 4 * kt; s = sreg(kt, qt)
            for r in range(4): a("v_exp_f32 v%d, v%d" % (t0 + r, s + r))
        for kt in range(2):
            t0 = T + 4 * kt
            a("v_cvt_pk_bf16_f32 v%d, v%d, v%d" % (preg(qt) + 2 * kt, t0, t0 + 1))
            a("v_cvt_pk_bf16_f32 v%d, v%d, v%d" % (preg(qt) + 2 * kt + 1, t0 + 2, t0 + 3))
        if qt == 2:
            a("s_mov_b32 s%d, 0x%x" % (sFloor, fbits(-BIAS)))
            a("s_mov_b32 s%d, 1" % sThr)
        a("s_nop 1")
        a("s_setpc_b64 s[%d:%d]" % (sRet, sRet + 1))

def zero(a, base, n):
    for r in range(n): a("v_mov_b32 v%d, 0" % (base + r))

def att_init(a):
    zero(a, ACC, 96); zero(a, NM, 24)
    for r in range(4): a("v_mov_b32 v%d, 0x3f803f80" % (ON + r))
    a("s_mov_b32 s%d, 0x%x\ns_mov_b32 s%d, %s" % (sFloor, fbits(-3e38), sThr, "0xff800000" if "oldtile" in ARGS else "0"))
    a("s_mov_b32 s%d, 0x40004000" % sMsk)

def scale_acc(a, sc):
    for t in range(8):
        for qt in range(3):
            for r in (0, 2):
                x = acc(t, qt) + r
                a("v_pk_mul_f32 %s, %s, %s%s" % (v2(x), v2(x), sc(qt), " op_sel_hi:[1,0]" if sc(qt)[0] == "s" else ""))

def pack_T(a):
    for s in range(4):
        for qt in range(3):
            d = qf(s, qt)
            for hh in range(2):
                src = acc(2 * s + hh, qt)
                a("v_cvt_pk_bf16_f32 v%d, v%d, v%d" % (d + 2 * hh, src, src + 1))
                a("v_cvt_pk_bf16_f32 v%d, v%d, v%d" % (d + 2 * hh + 1, src + 2, src + 3))
def pack_R(a):
    for s in range(4):
        for qt in range(3):
            for p in range(4):
                a("v_cvt_pk_bf16_f32 v%d, v%d, v%d" % (qf(s, qt) + p, acc(2 * p, qt) + s, acc(2 * p + 1, qt) + s))

def q_final_T(a):
    a("s_nop 7")
    scale_acc(a, lambda qt: "s[%d:%d]" % (sC, sC + 1))
    pack_T(a)
    for op in ("v_permlane32_swap_b32", "v_permlane16_swap_b32"):
        for i in range(12):
            d = QF + 4 * i
            a("%s v%d, v%d" % (op, d, d + 2)); a("%s v%d, v%d" % (op, d + 1, d + 3))
def q_final_R(a):
    a("s_nop 7")
    scale_acc(a, lambda qt: "s[%d:%d]" % (sC, sC + 1))
    pack_R(a)
    xpose_R(a)
def xpose_R(a):
    for qt in range(3):
        for (x, y) in ((0, 2), (1, 3)):
            for p in range(4): a("v_permlane32_swap_b32 v%d, v%d" % (qf(x, qt) + p, qf(y, qt) + p))
    for qt in range(3):
        for (x, y) in ((0, 1), (2, 3)):
            for p in range(4): a("v_permlane16_swap_b32 v%d, v%d" % (qf(x, qt) + p, qf(y, qt) + p))
def o_final(a):
    a("s_nop 7")
    for qt in range(3):
        a("v_rcp_f32 v%d, v%d" % (L + qt * 4, L + qt * 4))
        a("v_rcp_f32 v%d, v%d" % (L + qt * 4 + 1, L + qt * 4 + 1))
    scale_acc(a, lambda qt: v2(L + qt * 4))
    pack_T(a)

def publish(a, base_sgpr, src=QF, n=12):
    a("v_add_u32 v%d, s%d, v%d" % (vTmpA, base_sgpr, vLane16))
    for i in range(n):
        a("ds_write_b128 v%d, %s offset:%d" % (vTmpA, v4(src + i * 4), i * 1024))

def debug_dump(a, which, isB):
    a("s_lshl_b32 s%d, s2, 2\ns_add_u32 s%d, s%d, s%d" % (sT0, sT0, sT0, sW))
    if isB: a("s_add_u32 s%d, s%d, 1024" % (sT0, sT0))
    a("s_mul_i32 s%d, s%d, 12288" % (sT0, sT0))
    a("s_add_u32 s%d, s%d, 0x%x" % (sT0, sT0, (64 + 32 * which) << 20))
    for i in range(12):
        a("s_add_u32 s%d, s%d, %d" % (sT1, sT0, i * 1024))
        a("buffer_store_dwordx4 %s, v%d, %s, s%d offen" % (v4(QF + i * 4), vLane16, srd(sWS), sT1))
    a("s_waitcnt vmcnt(0)")

def store_partial(a, br, cb):
    a("s_nop 7")
    a("s_add_u32 s%d, s%d, %d" % (sT0, sB, br * 32))
    a("s_lshl_b32 s%d, s%d, 2\ns_add_u32 s%d, s%d, s%d" % (sT0, sT0, sT0, sT0, cb))
    a("s_mul_i32 s%d, s%d, %d" % (sT0, sT0, 12 * 8192))
    a("s_lshl_b32 s%d, s%d, 10\ns_add_u32 s%d, s%d, s%d" % (sT1, sG, sT0, sT0, sT1))
    if not br:
        pack_R(a); xpose_R(a)
    if OWN:
        a("s_lshr_b32 s%d, s%d, 1\ns_and_b32 s%d, s%d, 1\ns_cmp_eq_u32 s%d, s%d\ns_cselect_b32 s%d, s%d, 2" % (sT1, sG, sRot, sG, sT1, cb, sRot, sRot))
    for half in range(2):
        def body():
            for i in range(6 * half, 6 * half + 6):
                a("s_add_u32 s%d, s%d, %d" % (sT1, sT0, i * 8192))
                a("buffer_store_dwordx4 %s, v%d, %s, s%d offen sc1" % (v4(QF + 4 * i), vLane16, srd(sWS), sT1))
        if br:
            for i in range(6 * half, 6 * half + 6):
                s, qt = i // 3, i % 3
                d = qf(s, qt)
                for hh in range(2):
                    src = acc(2 * s + hh, qt)
                    a("v_cvt_pk_bf16_f32 v%d, v%d, v%d" % (d + 2 * hh, src, src + 1))
                    a("v_cvt_pk_bf16_f32 v%d, v%d, v%d" % (d + 2 * hh + 1, src + 2, src + 3))
        if OWN: cond(a, sRot, half, body, eq=False)
        else: body()

def own_write(a, br, src=QF):
    if not OWN: return
    for half in range(2):
        def body():
            a("v_add_u32 v%d, %d, v%d" % (vTmpA, WR + 6144 * br, vLane16))
            for i in range(6):
                a("ds_write_b128 v%d, %s offset:%d" % (vTmpA, v4(src + 4 * (6 * half + i)), i * 1024))
        cond(a, sRot, half, body)

def cond(a, reg, val, body, eq=True):
    l = a.newlabel("L_c")
    a("s_cmp_eq_u32 s%d, %d" % (reg, val))
    a("s_cbranch_scc%d %s" % (0 if eq else 1, l))
    body()
    a.label(l)
def cond_lt(a, reg, val, body):
    l = a.newlabel("L_c")
    a("s_cmp_lt_u32 s%d, %d\ns_cbranch_scc0 %s" % (reg, val, l))
    body()
    a.label(l)

FS = int(opt("fs", -1))
SB = int(opt("sb", -1))
def sbst(a, s_):
    if SB >= 0 and SB <= s_ < SB + 9: stamp(a, 1 + s_ - SB, True)
def stamp(a, k, fine=False):
    if not STAMP: return
    if "ft" in ARGS and not fine and 1 <= k <= 4: return
    if (FS >= 0 or SB >= 0 or opt("f3")) and not fine and k >= 1: return
    if "cyc" in ARGS:
        a("s_memtime s[90:91]\ns_waitcnt lgkmcnt(0)")
        if k == 0: a("s_mov_b32 s%d, s90\ns_mov_b32 s92, 1" % sCyc)
        else: a("s_sub_u32 s%d, s90, s%d\ns_lshr_b32 s%d, s%d, 4" % (92 + k, sCyc, 92 + k, 92 + k))
        return
    a("s_memrealtime s[90:91]\ns_waitcnt lgkmcnt(0)\ns_mov_b32 s%d, s90" % (92 + k))
def stamp_out(a, n):
    if not STAMP: return
    if opt("dup") is not None:
        k0, k1 = [int(x) for x in opt("dup").split(",")]
        if k1 > 0:
            l = a.newlabel("L_dup"); le = a.newlabel("L_dupe")
            a("s_cmp_lg_u32 s%d, 2\ns_cbranch_scc1 %s" % (sWave, le))
            a("s_sub_u32 s%d, s%d, s%d\ns_mul_i32 s%d, s%d, %s\ns_add_u32 s%d, s%d, s101" % (sT0, 92 + k1, 92 + k0, sT0, sT0, opt("amp", "1"), sT0, sT0))
            a.label(l)
            a("s_sleep 4\ns_memrealtime s[90:91]\ns_waitcnt lgkmcnt(0)\ns_sub_u32 s%d, s90, s%d\ns_cmp_lt_i32 s%d, 0\ns_cbranch_scc1 %s" % (sT1, sT0, sT1, l))
            a.label(le)
        return
    a("s_lshl_b32 s%d, s2, 3\ns_add_u32 s%d, s%d, s%d\ns_lshl_b32 s%d, s%d, 6\ns_add_u32 s%d, s%d, 0x%x" % (sT0, sT0, sT0, sWave, sT0, sT0, sT0, sT0, 536870912 - (1 << 20)))
    a("s_mov_b64 exec, 1")
    a("v_mov_b32 v15, 0")
    for k in range(n):
        a("v_mov_b32 v14, s%d" % (92 + k))
        a("buffer_store_dword v14, v15, %s, s%d offen offset:%d" % (srd(sWS), sT0, 4 * k))
        a("s_nop 1")

def dbg_srd(a, q=sXI):
    a("s_mov_b32 s%d, s%d\ns_mov_b32 s%d, s%d\ns_mov_b32 s%d, 256\ns_mov_b32 s%d, 0x20000" % (q, sPtr + 22, q + 1, sPtr + 23, q + 2, q + 3))

SEP = "sep" in ARGS
def arrive(a, ev=0, sl=1):
    ld = a.newlabel("L_d"); lw = a.newlabel("L_w"); lp = a.newlabel("L_poll")
    a("v_mov_b32 v%d, %d\nv_mov_b32 v%d, 1" % (T, SYNC + 16 * ev, T + 1))
    a("v_lshlrev_b32 v%d, 7, v0" % (T + 4))
    a("s_lshl_b32 s%d, s%d, 10\ns_add_u32 s%d, s%d, 0x%x" % (sOff, sB, sOff, sOff, GO))
    a("s_lshl_b32 s%d, s2, 7\ns_add_u32 s%d, s%d, 0x%x" % (sT1, sT1, sT1, GO))
    a("s_mov_b64 exec, 1")
    a("ds_read_b32 v%d, v%d offset:8" % (T + 5, T))
    a("v_mov_b32 v%d, 0" % (T + 3))
    if "ft" in ARGS: stamp(a, 1, True)
    a("s_waitcnt vmcnt(0)")
    if "ft" in ARGS: stamp(a, 2, True)
    a("ds_add_rtn_u32 v%d, v%d, v%d" % (T + 2, T, T + 1))
    a("s_waitcnt lgkmcnt(0)")
    a("v_readfirstlane_b32 s%d, v%d" % (sT0, T + 2))
    a("s_cmp_eq_u32 s%d, %d\ns_cbranch_scc0 %s" % (sT0, 3 if SEP else 7, ld))
    a("s_mov_b64 exec, 0xff")
    a("buffer_atomic_add v%d, v%d, %s, s%d offen offset:%d sc1" % (T + 1, T + 4, srd(sWS), sOff, 4 * ev))
    a("s_mov_b64 exec, 1")
    if "ft" in ARGS: stamp(a, 3, True)
    a("v_readfirstlane_b32 s%d, v%d" % (sN, T + 5))
    a("s_add_u32 s%d, s%d, 8" % (sN, sN))
    a("s_mov_b32 s%d, 200000" % sT2)
    a.label(lp)
    a("s_sub_u32 s%d, s%d, 1\ns_cbranch_scc1 %s" % (sT2, sT2, lw))
    a("buffer_load_dword v%d, v%d, %s, s%d offen offset:%d sc1" % (T + 2, T + 3, srd(sWS), sT1, 4 * ev))
    a("s_waitcnt vmcnt(0)")
    a("v_readfirstlane_b32 s%d, v%d" % (sT0, T + 2))
    a("s_cmp_eq_u32 s%d, s%d\ns_cbranch_scc1 %s" % (sT0, sN, lw))
    a("s_sleep %d\ns_branch %s" % (sl, lp))
    a.label(lw)
    if "ft" in ARGS: stamp(a, 4, True)
    a("ds_write_b32 v%d, v%d offset:4" % (T, T + 1))
    a("s_waitcnt lgkmcnt(0)")
    a.label(ld)
    a("s_mov_b64 exec, -1")

def wait_flag(a, sl, ev=0):
    lp = a.newlabel("L_f"); ld = a.newlabel("L_g")
    a("v_mov_b32 v%d, %d" % (T, SYNC + 16 * ev))
    a("s_mov_b32 s%d, 4000000" % sT2)
    a.label(lp)
    a("s_sub_u32 s%d, s%d, 1\ns_cbranch_scc1 %s" % (sT2, sT2, ld))
    a("ds_read_b32 v%d, v%d offset:4" % (T + 1, T))
    a("s_waitcnt lgkmcnt(0)")
    a("v_readfirstlane_b32 s%d, v%d" % (sT0, T + 1))
    a("s_cmp_lg_u32 s%d, 0\ns_cbranch_scc1 %s" % (sT0, ld))
    a("s_sleep %d\ns_branch %s" % (sl, lp))
    a.label(ld)

def reduce_prep(a, it, br, ld, so):
    a("s_mul_i32 s%d, s%d, 6\ns_add_u32 s%d, s%d, s%d" % (sT0, sG, sT0, sT0, it))
    a("s_add_u32 s%d, s%d, %d\ns_mul_i32 s%d, s%d, 48\ns_add_u32 s%d, s%d, s%d" % (sT1, sB, 32 * br, sT1, sT1, sT1, sT1, sT0))
    a("s_lshl_b32 s%d, s%d, 13" % (ld, sT1))
    a("s_mul_i32 s%d, s%d, 43\ns_lshr_b32 s%d, s%d, 7" % (sT1, sT0, sT1, sT1))
    a("s_mul_i32 s%d, s%d, 3\ns_sub_u32 s%d, s%d, s%d" % (sT2, sT1, sT2, sT0, sT2))
    a("s_mul_i32 s%d, s%d, 3\ns_add_u32 s%d, s%d, s%d\ns_lshl_b32 s%d, s%d, 15" % (so, sB, so, so, sT2, so, so))
    a("s_lshl_b32 s%d, s%d, 6\ns_add_u32 s%d, s%d, s%d" % (sT1, sT1, so, so, sT1))
    if br: a("s_add_u32 s%d, s%d, 1024" % (so, so))
def reduce_issue(a, D, ld, br=0, it=None, k=0):
    if "nord" in ARGS: a("s_mov_b32 s%d, 0x40000000" % ld)
    if OWN:
        a("s_lshl_b32 s%d, s%d, 10\ns_add_u32 s%d, s%d, %d" % (sT0, it, sT0, sT0, WR + 6144 * br))
        a("v_add_u32 v%d, s%d, v%d" % (RX, sT0, vLane16))
        a("ds_read_b128 %s, v%d" % (v4(RW + 4 * k), RX))
    for g_ in range(7 if OWN else 8):
        if OWN:
            a("s_add_u32 s%d, s%d, %d\ns_and_b32 s%d, s%d, 7\ns_lshl_b32 s%d, s%d, 10\ns_add_u32 s%d, s%d, s%d" % (sT0, sG, g_ + 1, sT0, sT0, sT0, sT0, sT0, sT0, ld))
            a("buffer_load_dwordx4 %s, v%d, %s, s%d offen sc1" % (v4(D + 4 * g_), vLane16, srd(sWS), sT0))
        else:
            if g_ == 4: a("s_add_u32 s%d, s%d, 4096" % (ld, ld))
            a("buffer_load_dwordx4 %s, v%d, %s, s%d offen offset:%d sc1" % (v4(D + 4 * g_), vLane16, srd(sWS), ld, (g_ & 3) * 1024))
RA, RX, RADB, RADA, RO, RW = 200, 208, 212, 213, 216, 224
def reduce_fin(a, D, br, so, younger, k):
    O_ = RO + 4 * k
    NL = 7 if OWN else 8
    if OWN and younger: younger = 7
    for g_ in range(8):
        if OWN and g_ == 0: a("s_waitcnt lgkmcnt(0)")
        else: a("s_waitcnt vmcnt(%d)" % (7 - g_ + younger))
        for d in range(4):
            src = D + 4 * g_ + d
            if OWN: src = (RW + 4 * k + d) if g_ == 0 else (D + 4 * (g_ - 1) + d)
            if g_ == 0:
                a("v_lshlrev_b32 v%d, 16, v%d" % (RA + 2 * d, src))
                a("v_and_b32 v%d, 0xffff0000, v%d" % (RA + 2 * d + 1, src))
            else:
                X = RX + (d & 1) * 2
                a("v_lshlrev_b32 v%d, 16, v%d" % (X, src))
                a("v_and_b32 v%d, 0xffff0000, v%d" % (X + 1, src))
                a("v_pk_add_f32 %s, %s, %s" % (v2(RA + 2 * d), v2(RA + 2 * d), v2(X)))
    for d in range(4):
        a("v_cvt_pk_bf16_f32 v%d, v%d, v%d" % (O_ + d, RA + 2 * d, RA + 2 * d + 1))
    if br:
        a("v_permlane32_swap_b32 v%d, v%d\nv_permlane32_swap_b32 v%d, v%d" % (O_, O_ + 2, O_ + 1, O_ + 3))
        a("v_permlane16_swap_b32 v%d, v%d\nv_permlane16_swap_b32 v%d, v%d" % (O_, O_ + 2, O_ + 1, O_ + 3))
    return "buffer_store_dwordx4 %s, v%d, %s, s%d offen sc1" % (v4(O_), RADB, srd(sK), so)

def tail_joint(a, isB):
    arrive(a)
    a("v_and_b32 v%d, 15, v0\nv_lshrrev_b32 v%d, 4, v0\nv_lshlrev_b32 v%d, 11, v%d" % (RADB, RX, RADB, RADB))
    a("v_lshl_add_u32 v%d, v%d, 4, v%d" % (RADB, RX, RADB))
    a("s_mov_b32 s%d, s%d\ns_mov_b32 s%d, s%d\ns_mov_b32 s%d, 0x%x\ns_mov_b32 s%d, 0x20000" % (sK, sPtr + 20, sK + 1, sPtr + 21, sK + 2, SZ["out"], sK + 3))
    if isB:
        reduce_prep(a, sW, 1, sBuf, sCh)
        reduce_prep(a, sW, 0, sSet, sChN)
        wait_flag(a, 1)
        stamp(a, 8)
        reduce_issue(a, ACC, sBuf, 1, sW, 0); reduce_issue(a, ACC + 32, sSet, 0, sW, 1)
        st = [reduce_fin(a, ACC, 1, sCh, 8, 0), reduce_fin(a, ACC + 32, 0, sChN, 0, 1)]
        for s_ in st: a(s_)
    else:
        l2 = a.newlabel("L_ta")
        a("s_cmp_ge_u32 s%d, 2\ns_cbranch_scc1 %s" % (sW, l2))
        for br, add in ((1, 4), (0, 2)):
            if br == 0: a.label(l2)
            a("s_add_u32 s%d, s%d, %d" % (sN, sW, add))
            reduce_prep(a, sN, br, sBuf, sCh)
            wait_flag(a, 2)
            stamp(a, 8)
            reduce_issue(a, ACC, sBuf, br, sN, 0)
            a(reduce_fin(a, ACC, br, sCh, 0, 0))
            if br == 1: a("s_branch L_fin")
    if isB: a("s_branch L_fin")
    else:
        a.label("L_fin")
        if STAMP: a("s_waitcnt vmcnt(0)")
        stamp(a, 9)
        stamp_out(a, 10)
        a("s_endpgm")

def tail(a, isB):
    if not SEP: return tail_joint(a, isB)
    arrive(a, 0 if isB else 1, 1 if isB else 4)
    a("v_and_b32 v%d, 15, v0\nv_lshrrev_b32 v%d, 4, v0\nv_lshlrev_b32 v%d, 11, v%d" % (RADB, RX, RADB, RADB))
    a("v_lshl_add_u32 v%d, v%d, 4, v%d" % (RADB, RX, RADB))
    a("s_mov_b32 s%d, s%d\ns_mov_b32 s%d, s%d\ns_mov_b32 s%d, 0x%x\ns_mov_b32 s%d, 0x20000" % (sK, sPtr + 20, sK + 1, sPtr + 21, sK + 2, SZ["out"], sK + 3))
    if isB:
        a("s_mov_b32 s%d, s%d" % (sN, sW))
        a.label("L_bitem")
        reduce_prep(a, sN, 1, sBuf, sCh)
        wait_flag(a, 1)
        stamp(a, 8)
        reduce_issue(a, ACC, sBuf, 1, sN, 0)
        a(reduce_fin(a, ACC, 1, sCh, 0, 0))
        a("s_branch L_fin")
    else:
        l2 = a.newlabel("L_ta")
        reduce_prep(a, sW, 0, sBuf, sCh)
        a("s_cmp_ge_u32 s%d, 2\ns_cbranch_scc1 %s" % (sW, l2))
        wait_flag(a, 2, 1)
        reduce_issue(a, ACC, sBuf, 0, sW, 1)
        a(reduce_fin(a, ACC, 0, sCh, 0, 1))
        stamp(a, 7)
        a("s_add_u32 s%d, s%d, 4" % (sN, sW))
        a("s_branch L_bitem")
        a.label(l2)
        a("s_add_u32 s%d, s%d, 2" % (sN, sW))
        reduce_prep(a, sN, 0, sSet, sChN)
        wait_flag(a, 2, 1)
        reduce_issue(a, ACC, sBuf, 0, sW, 0); reduce_issue(a, ACC + 32, sSet, 0, sN, 1)
        st = [reduce_fin(a, ACC, 0, sCh, 8, 0), reduce_fin(a, ACC + 32, 0, sChN, 0, 1)]
        for s_ in st: a(s_)
        stamp(a, 7)
        a.label("L_fin")
        if STAMP: a("s_waitcnt vmcnt(0)")
        stamp(a, 9)
        stamp_out(a, 10)
        a("s_endpgm")

def x_piece(p_sgpr_off, p, srdq, ch, ldsbase):
    pass

def xp(a_list, ch_sgpr, p, srdq, lds_const, fl=""):
    ls = ["s_lshl_b32 s%d, s%d, 7" % (sT2, ch_sgpr), "s_add_u32 s%d, s%d, s%d" % (sT2, sT2, sXB)]
    ls.append("s_add_u32 m0, s%d, %d" % (sN, lds_const + p * 1024))
    ls.append("s_add_u32 s%d, s%d, %d" % (sT2, sT2, p * 8192))
    ls.append("buffer_load_dwordx4 v%d, %s, s%d offen%s lds" % (vgX, srd(srdq), sT2, fl))
    a_list.append("\n".join(ls))

def wq_off(chreg, add, par):
    return ["s_add_u32 s%d, s%d, %d\ns_and_b32 s%d, s%d, 7" % (sOff, chreg, add, sOff, sOff),
            "s_lshl_b32 s%d, s%d, 1\ns_add_u32 s%d, s%d, s%d" % (sOff, sOff, sOff, sOff, sSp + par),
            "s_lshl_b32 s%d, s%d, 18\ns_add_u32 s%d, s%d, s%d" % (sOff, sOff, sOff, sOff, sWqB)]
def xaddr(par, bufreg=None, bufconst=0):
    out = ["s_lshl_b32 s%d, s%d, 6" % (sT0, sSp + par), "v_xor_b32 v%d, s%d, v%d" % (vXa, sT0, vXr)]
    if bufreg is not None: out.append("v_add_u32 v%d, s%d, v%d" % (vXa, bufreg, vXa))
    return out

def projT(a, bimm, aoff, va, issue, accf=acc, af=F, bf=P):
    for qt in range(3): a("ds_read_b128 %s, v%d offset:%d" % (v4(bf + 4 * qt), vXa, bimm[qt]))
    rd = tr_reads(aoff, range(8), af, va)
    for r in rd[:12]: a(r)
    a("s_waitcnt lgkmcnt(10)")
    for r in rd[12:]: a(r)
    a("s_waitcnt lgkmcnt(0)")
    issue()
    for t in range(8):
        for qt in range(3): a(mf(accf(t, qt), af + t * 4, bf + 4 * qt, accf(t, qt)))

def projR(a, bimm, lb, issue):
    for qt in range(3): a("ds_read_b128 %s, v%d offset:%d" % (v4(BFR + 4 * qt), vXa, bimm[qt]))
    def perms(i):
        d = FR + (i & 3) * 4
        return ["v_perm_b32 v%d, v%d, v%d, s%d" % (d + p, lb + (2 * p + 1) * 4 + (i >> 1), lb + 2 * p * 4 + (i >> 1), sSelHi if i & 1 else sSelLo) for p in range(4)]
    for i in range(4):
        for x in perms(i): a(x)
    a("s_waitcnt lgkmcnt(0)")
    for i in range(4):
        for qt in range(3): a(mf(acc(i, qt), FR + i * 4, BFR + 4 * qt, acc(i, qt)))
        for x in perms(i + 4): a(x)
    issue()
    for i in range(4, 8):
        for qt in range(3): a(mf(acc(i, qt), FR + (i & 3) * 4, BFR + 4 * qt, acc(i, qt)))

def perm_all(a, lb, fr):
    for i in range(8):
        for p in range(4):
            a("v_perm_b32 v%d, v%d, v%d, s%d" % (fr + 4 * i + p, lb + (2 * p + 1) * 4 + (i >> 1), lb + 2 * p * 4 + (i >> 1), sSelHi if i & 1 else sSelLo))

def projR2(a, bimm, fr, bf, vxa, issue, nfirst, bar=None):
    for qt in range(3): a("ds_read_b128 %s, v%d offset:%d" % (v4(bf[qt]), vxa, bimm[qt]))
    ms = [mf(acc(i, qt), fr + i * 4, bf[qt], acc(i, qt)) for i in range(8) for qt in range(3)]
    if nfirst < 0:
        issue()
        a("s_waitcnt lgkmcnt(0)")
        for m in ms: a(m)
        bar()
        return
    if nfirst == 0:
        issue()
        a("s_waitcnt lgkmcnt(0)")
        for m in ms: a(m)
        return
    if "aprio" in ARGS: a("s_setprio 2")
    a("s_waitcnt lgkmcnt(0)")
    for m in ms[:nfirst]: a(m)
    issue()
    if "aprio" in ARGS: a("s_setprio 0")
    for m in ms[nfirst:]: a(m)

def wqR(lb, dummy=None):
    out = []
    for r in range(8):
        if r: out.append("s_add_u32 s%d, s%d, 8192" % (sOff, sOff))
        out.append("buffer_load_dwordx4 %s, v%d, %s, s%d offen" % (v4(lb + 4 * r), vgWq, srd(sWQ), sOff))
    return out
def woR(lb):
    out = []
    for r in range(8):
        if r == 4: out.append("s_add_u32 s%d, s%d, 16384" % (sOff, sOff))
        out.append("buffer_load_dwordx4 %s, v%d, %s, s%d offen offset:%d" % (v4(lb + 4 * r), 2, srd(sWO), sOff, (r & 3) * 1024))
    return out

def b_kv_params(a, wadd=0):
    a("s_lshl_b32 s%d, s2, 2\ns_add_u32 s%d, s%d, s%d" % (sT0, sT0, sT0, sW))
    if wadd: a("s_sub_u32 s%d, s%d, %d" % (sT0, sT0, -wadd))
    a("s_lshl_b32 s%d, s%d, 17" % (sKV, sT0))
    rk = int(opt("rk", 1))
    if rk == 0:
        a("s_mul_i32 s%d, s%d, 5\ns_lshr_b32 s%d, s%d, 4\ns_add_u32 s%d, s%d, s%d\ns_and_b32 s%d, s%d, 15" % (sRot, sT0, sT1, sT0, sRot, sRot, sT1, sRot, sRot))
    elif rk == 1:
        a("s_and_b32 s%d, s%d, 15" % (sRot, sT0))
    elif rk == 2:
        a("s_lshl_b32 s%d, s%d, 3\ns_add_u32 s%d, s%d, s%d\ns_and_b32 s%d, s%d, 15" % (sRot, sW, sRot, sRot, sG, sRot, sRot))
    elif rk == 3:
        a("s_and_b32 s%d, s%d, 1\ns_lshl_b32 s%d, s%d, 1\ns_add_u32 s%d, s%d, s%d" % (sT1, sW, sRot, sG, sRot, sRot, sT1))
    elif rk == 4:
        a("s_and_b32 s%d, s%d, 1\ns_lshl_b32 s%d, s%d, 1\ns_add_u32 s%d, s%d, s%d\ns_add_u32 s%d, s%d, s%d\ns_and_b32 s%d, s%d, 15" % (sT1, sW, sRot, sG, sRot, sRot, sT1, sRot, sRot, sB, sRot, sRot))
    elif rk == 5:
        a("s_lshl_b32 s%d, s%d, 3\ns_add_u32 s%d, s%d, s%d\ns_and_b32 s%d, s%d, 15" % (sRot, sW, sRot, sRot, sB, sRot, sRot))
    elif rk == 6:
        a("s_lshl_b32 s%d, s%d, 3\ns_add_u32 s%d, s%d, s%d\ns_mul_i32 s%d, s%d, 3\ns_add_u32 s%d, s%d, s%d\ns_and_b32 s%d, s%d, 15" % (sRot, sW, sRot, sRot, sG, sT1, sB, sRot, sRot, sT1, sRot, sRot))
    elif rk == 7:
        a("s_and_b32 s%d, s%d, 1\ns_lshl_b32 s%d, s%d, 1\ns_lshl_b32 s%d, s%d, 2\ns_add_u32 s%d, s%d, s%d\ns_lshr_b32 s%d, s%d, 2\ns_add_u32 s%d, s%d, s%d\ns_and_b32 s%d, s%d, 15" % (sT1, sW, sT1, sT1, sRot, sG, sRot, sRot, sT1, sT1, sG, sRot, sRot, sT1, sRot, sRot))
    elif rk == 8:
        a("s_lshr_b32 s%d, s%d, 4\ns_xor_b32 s%d, s%d, s%d\ns_and_b32 s%d, s%d, 15" % (sT1, sT0, sRot, sT0, sT1, sRot, sRot))
    elif rk == 9:
        a("s_andn2_b32 s%d, 15, s%d" % (sRot, sT0))
    elif rk == 10:
        a("s_mul_i32 s%d, s%d, 3\ns_and_b32 s%d, s%d, 15" % (sRot, sT0, sRot, sRot))

def row_off(row):
    if 16 <= row < 24:
        return "s_add_u32 s%d, s%d, %d\ns_and_b32 s%d, s%d, 7\ns_lshl_b32 s%d, s%d, 14\ns_add_u32 s%d, s%d, s%d" % (sOff, sSet, row - 16, sOff, sOff, sOff, sOff, sOff, sOff, sBuf)
    r = row if row < 16 else row - 24
    return "s_add_u32 s%d, s%d, %d\ns_and_b32 s%d, s%d, 15\ns_lshl_b32 s%d, s%d, 13\ns_add_u32 s%d, s%d, s%d" % (sOff, sRot, r, sOff, sOff, sOff, sOff, sOff, sOff, sKV)

def issue_pieces(a, lst):
    cur = None
    out = []
    for (row, p) in lst:
        if row != cur: out.append(row_off(row)); cur = row
        isA = 16 <= row < 24
        out += kv_piece(sMK, (row % 3) * SETSZ + (p >> 3) * BLK, p & 7, p >> 3, sX if isA else sK, sXI if isA else sV)
    emit(a, out)

def gen_main(a, dbg=False):
    SCH = make_sched(int(opt("cap", 14)), 48, boost=int(opt("boost", 3)), alt=int(opt("alt", 0)), cap3=int(opt("cap3", 0)), bcap=int(opt("bcap", 16)))
    p3_0 = [i for i, x in enumerate(SCH) if x["cons"] == 23][0] + 1
    while len(SCH) - p3_0 < 18:
        SCH.insert(p3_0, dict(cons=None, iss={0: [], 1: []}))
    NS = len(SCH)
    cstep = {x["cons"]: i for i, x in enumerate(SCH) if x["cons"] is not None}
    print("steps", NS, "p3_0", p3_0)
    ASELF = "noself" not in ARGS
    for st in SCH:
        st["aiss"] = None
        c = st["cons"]
        if ASELF and c is not None and 16 <= c < 24 and len(st["iss"][0]) == 16 and st["iss"][0][0][1] == 0:
            st["aiss"] = st["iss"][0][0][0]; st["iss"][0] = []
    B2 = "nob2" not in ARGS
    NF = int(opt("nf", 24))
    OLDR = "oldR" in ARGS
    LATEB = NF < 0
    ONE = "one" in ARGS
    def hasS(s_): return not (ONE and (1 <= s_ <= 13 or p3_0 + 3 <= s_ <= p3_0 + 15))
    def hasB(s_): return B2 and (s_ < 16 or p3_0 <= s_ < p3_0 + 18)

    kernel_begin(a, KNAME)
    a("s_cmp_lt_u32 s2, 256\ns_cbranch_scc1 L_start\ns_endpgm")
    a.label("L_start")
    a("s_load_dwordx16 s[%d:%d], s[0:1], 0" % (sPtr, sPtr + 15))
    a("s_load_dwordx8 s[%d:%d], s[0:1], 64" % (sPtr + 16, sPtr + 23))
    a("s_load_dwordx2 s[%d:%d], s[0:1], 96" % (sPtr + 24, sPtr + 25))
    a("s_getpc_b64 s[%d:%d]" % (sRet, sRet + 1))
    a.label("L_pc")
    a("s_sub_u32 s%d, s%d, L_pc-%s\ns_subb_u32 s%d, s%d, 0" % (sRet, sRet, KNAME, sRet + 1, sRet + 1))
    a("s_lshr_b32 s%d, s2, 3\ns_lshl_b32 s%d, s%d, 4\ns_sub_u32 s%d, s%d, 448" % (sT0, sT0, sT0, sT0, sT0))
    a("v_add_u32 v30, s%d, v0\nv_lshlrev_b32 v30, 7, v30" % sT0)
    a("v_and_b32 v31, 0x1f0, v0")
    a("v_cmp_eq_u32 s[%d:%d], 0x1c0, v31" % (sRet2, sRet2 + 1) if False else "v_cmp_eq_u32 vcc, 0x1c0, v31")
    a("s_mov_b64 s[%d:%d], vcc" % (sRet2, sRet2 + 1))
    a("v_cmp_gt_u32 vcc, L_code_end-%s, v30" % KNAME)
    a("s_and_b64 exec, vcc, s[%d:%d]" % (sRet2, sRet2 + 1))
    a("s_cbranch_execz L_nopf")
    a("global_load_dword v31, v30, s[%d:%d]" % (sRet, sRet + 1))
    a.label("L_nopf")
    a("s_mov_b64 exec, -1")
    a("v_lshrrev_b32 v14, 6, v0\ns_nop 0\nv_readfirstlane_b32 s%d, v14" % sWave)
    a("v_and_b32 v0, 63, v0")
    a("s_lshr_b32 s%d, s2, 3\ns_and_b32 s%d, s2, 7\ns_and_b32 s%d, s%d, 3" % (sB, sG, sW, sWave))
    a("v_lshrrev_b32 v14, 4, v0\nv_and_b32 v15, 15, v0")
    a("v_lshlrev_b32 v%d, 4, v0" % vLane16)
    a("v_bfe_u32 v16, v0, 2, 3")
    a("v_mul_u32_u24 v%d, %d, v16" % (vT, PIECE))
    a("v_lshrrev_b32 v16, 5, v0\nv_lshlrev_b32 v16, 9, v16")
    a("v_add_u32 v%d, v%d, v16" % (vT, vT))
    a("v_and_b32 v16, 3, v0\nv_lshlrev_b32 v16, 3, v16")
    a("v_add_u32 v%d, v%d, v16" % (vT, vT))
    a("v_lshrrev_b32 v16, 3, v15\nv_and_b32 v17, 3, v15\nv_lshl_add_u32 v17, v16, 2, v17")
    a("v_mul_u32_u24 v%d, %d, v17" % (vK, PIECE))
    a("v_bfe_u32 v17, v15, 2, 1\nv_xor_b32 v17, v17, v16\nv_lshlrev_b32 v17, 8, v17")
    a("v_add_u32 v%d, v%d, v17" % (vK, vK))
    a("v_lshl_add_u32 v%d, v14, 4, v%d" % (vK, vK))
    a("v_and_b32 v16, 6, v15\nv_xor_b32 v16, v16, v14\nv_lshlrev_b32 v16, 4, v16\nv_lshl_add_u32 v%d, v15, 7, v16" % vXr)
    a("v_lshrrev_b32 v16, 3, v0\nv_and_b32 v17, 6, v16\nv_and_b32 v18, 7, v0\nv_xor_b32 v17, v17, v18\nv_lshlrev_b32 v17, 4, v17\nv_lshl_add_u32 v%d, v16, 10, v17" % vgX)
    a("v_and_b32 v16, 1, v14\nv_lshrrev_b32 v17, 1, v14\nv_lshlrev_b32 v18, 4, v15")
    a("v_lshlrev_b32 v19, 12, v17\nv_add_u32 v19, v19, v18")
    a("v_lshl_add_u32 v%d, v16, 10, v19" % vgK0)
    a("v_lshlrev_b32 v20, 10, v16\nv_sub_u32 v20, 2048, v20\nv_add_u32 v%d, v19, v20" % vgK1)
    a("v_lshlrev_b32 v19, 4, v16\nv_lshl_add_u32 v19, v17, 3, v19")
    a("v_lshl_add_u32 v%d, v19, 8, v18" % vgV)
    a("v_lshl_add_u32 v%d, v19, 10, v18" % vgWo)
    a("v_lshlrev_b32 v19, 2, v16\nv_lshl_add_u32 v19, v17, 4, v19")
    a("v_lshl_add_u32 v19, v19, 13, v18")
    for j in range(8):
        a("v_add_u32 v%d, %d, v19" % (VWQ + j, ((j & 3) + 8 * (j >> 2)) * 8192 - (j & 3) * PIECE))
    a("s_mov_b32 s%d, 0x%x" % (sC, fbits(SCALE)))
    a("s_add_u32 s%d, s%d, s%d\ns_and_b32 s%d, s%d, 7" % (sH0, sB, sG, sH0, sH0))
    a("s_bfe_u32 s%d, s%d, 0x10003\ns_xor_b32 s%d, s%d, 1" % (sSp, sB, sSp + 1, sSp))
    a("s_mul_i32 s%d, s%d, %d" % (sXB, sB, 0 if "xsame" in ARGS else 49152))
    a("s_lshl_b32 s%d, s%d, 2\ns_add_u32 s%d, s%d, s%d" % (sT0, sG, sT0, sT0, sW))
    a("s_lshl_b32 s%d, s%d, 8" % (sWqB, sT0))
    a("s_and_b32 s%d, s%d, 1\ns_mul_i32 s%d, s%d, %d" % (sT1, sW, sT1, sT1, 2 * BLK))
    a("s_add_u32 s%d, s%d, %d\ns_add_u32 s%d, s%d, %d" % (sMW, sT1, WR, sMK, sT1, KVB))
    a("s_waitcnt lgkmcnt(0)")
    pA = dict(x=0, k=2, v=4, wq=6, wo=8); pB = dict(x=10, k=12, v=14, wq=16, wo=18)
    a("s_cmp_ge_u32 s%d, 4" % sWave)
    for nm, q, sz in (("wq", sWQ, SZ["Awq"]), ("x", sX, SZ["Ax"]), ("wo", sWO, SZ["Awo"])):
        a("s_cselect_b32 s%d, s%d, s%d" % (q, sPtr + pA[nm], sPtr + pB[nm]))
        a("s_cselect_b32 s%d, s%d, s%d" % (q + 1, sPtr + pA[nm] + 1, sPtr + pB[nm] + 1))
        a("s_mov_b32 s%d, 0x%x\ns_mov_b32 s%d, 0x20000" % (q + 2, sz, q + 3))
    for q, k_, sz in ((sK, 12, SZ["Bk"]), (sV, 14, SZ["Bv"]), (sWS, 24, SZ["ws"]), (sXI, 4, SZ["Av"])):
        a("s_mov_b32 s%d, s%d\ns_mov_b32 s%d, s%d\ns_mov_b32 s%d, 0x%x\ns_mov_b32 s%d, 0x20000" % (q, sPtr + k_, q + 1, sPtr + k_ + 1, q + 2, sz, q + 3))
    stamp(a, 0)
    if "ft" in ARGS: a("s_mov_b32 s95, 0\ns_mov_b32 s96, 0")
    a("s_cmp_ge_u32 s%d, 4\ns_cbranch_scc1 L_A" % sWave)
    a("s_cmp_ge_u32 s%d, 2\ns_cbranch_scc1 L_G1" % sWave)

    a("s_mul_i32 s%d, s%d, %d\ns_add_u32 s%d, s%d, s%d" % (sT0, sW, 3 * 8192, sXB, sXB, sT0))
    a("s_mul_i32 s%d, s%d, 3072" % (sN, sW))
    def xchunk(add, buf):
        out = ["s_add_u32 s%d, s%d, %d\ns_and_b32 s%d, s%d, 7" % (sChN, sCh, add, sChN, sChN)]
        for p in range(3): xp(out, sChN, p, sX, buf * XC)
        return out
    a("s_mov_b32 s%d, s%d" % (sCh, sH0))
    a("s_mov_b32 s%d, s%d\ns_add_u32 s%d, s%d, %d\ns_add_u32 s%d, s%d, %d" % (sSl0, sMW, sSl1, sMK, 2 * SETSZ, sSl2, sMW, BLK))
    for x in wq_off(sCh, 0, 0): a(x)
    d0 = wqT(sSl0, 0)
    emit(a, d0)
    for x in xchunk(0, 0): a(x)
    zero(a, ACC, 96)
    for x in wq_off(sCh, 0, 1): a(x)
    emit(a, wqT(sSl1, 0))
    for x in xchunk(1, 1): a(x)
    for x in wq_off(sCh, 1, 0): a(x)
    emit(a, wqT(sSl2, 0))
    for x in xchunk(2, 2): a(x)
    def fset(k): return (F, P) if k == 0 else (QF, QF + 32)
    def preads(k, bufc):
        fa, fb = fset(k)
        return ["ds_read_b128 %s, v%d offset:%d" % (v4(fb + qt * 4), vXa, bufc + qt * 2048) for qt in range(3)] + tr_reads(0, range(8), fa, vTc)
    for x in xaddr(0): a(x)
    a("v_add_u32 v%d, s%d, v%d" % (vTc, sSl0, vT))
    a("s_waitcnt vmcnt(22)\ns_barrier")
    for r in preads(0, 0): a(r)
    for x in xaddr(1): a(x)
    a("v_add_u32 v%d, s%d, v%d" % (vTc, sSl1, vT))
    a("s_waitcnt vmcnt(14)")
    vq = ["w0"] * 8 + ["x0"] * 3 + ["w1"] * 8 + ["x1"] * 3 + ["w2"] * 8 + ["x2"] * 3
    def vneed(tags):
        idx = max(i for i, t in enumerate(vq) if t in tags)
        return len(vq) - 1 - idx
    SL = (sSl0, sSl1, sSl2)
    for n in range(16):
        issue = []
        if n + 3 < 16:
            issue += wq_off(sCh, (n + 3) >> 1, (n + 3) & 1) + wqT(SL[n % 3], 0); vq += ["w%d" % (n + 3)] * 8
        if n & 1 and (n >> 1) + 3 < 8:
            c_ = (n >> 1) + 3
            issue += xchunk(c_, c_ & 3); vq += ["x%d" % c_] * 3
        a("s_waitcnt lgkmcnt(0)")
        if n & 1: a("s_barrier")
        fa, fb = fset(n & 1)
        main = [mf(acc(t, qt), fa + t * 4, fb + qt * 4, acc(t, qt)) for t in range(8) for qt in range(3)]
        tw = xaddr(n & 1) + ["v_add_u32 v%d, s%d, v%d" % (vTc, SL[(n + 2) % 3], vT)] if n < 14 else []
        weave(a, main, (preads((n + 1) & 1, (((n + 1) >> 1) & 3) * XC) if n < 15 else [], 0, 17), (issue, 0, 24), (tw, 18, 24))
        if n < 14:
            need = ["w%d" % (n + 2)]
            if not n & 1: need.append("x%d" % ((n >> 1) + 1))
            a("s_waitcnt vmcnt(%d)" % vneed(need))
    stamp(a, 1)
    q_final_T(a)
    if dbg: debug_dump(a, 0, True)
    b_kv_params(a)
    a("s_lshl_b32 s%d, s2, 17\ns_lshl_b32 s%d, s%d, 13\ns_add_u32 s%d, s%d, s%d" % (sBuf, sT0, sW, sBuf, sBuf, sT0))
    def a_rot(): a("s_mul_i32 s%d, s2, 3\ns_add_u32 s%d, s%d, s%d\ns_and_b32 s%d, s%d, 7" % (sSet, sSet, sSet, sB, sSet, sSet))
    a_rot()
    a("s_mov_b32 s%d, s%d\ns_mov_b32 s%d, s%d\ns_mov_b32 s%d, 0x%x" % (sX, sPtr + 2, sX + 1, sPtr + 3, sX + 2, SZ["Ak"]))
    a("s_sub_u32 s%d, s%d, %d" % (sT0, sMK, 2 * BLK))
    a("v_add_u32 v%d, s%d, v%d\nv_add_u32 v%d, s%d, v%d" % (vT, sT0, vT, vK, sT0, vK))
    a("s_lshl_b32 s%d, s%d, 19\ns_lshl_b32 s%d, s%d, 9\ns_add_u32 s%d, s%d, s%d" % (sWoB, sG, sT1, sW, sWoB, sWoB, sT1))
    a("s_and_b32 s%d, s%d, 7" % (sH0, sB))
    stamp(a, 2)
    att_init(a)
    def setdelta(row):
        d = SETSZ if row % 3 < 2 else -2 * SETSZ
        a("v_add_u32 v%d, %d, v%d\nv_add_u32 v%d, %d, v%d" % (vT, d, vT, vK, d, vK))
    def wo_off(add, hh, kbase=0):
        return ["s_add_u32 s%d, s%d, %d\ns_and_b32 s%d, s%d, 7" % (sOff, sH0, add, sOff, sOff),
                "s_lshl_b32 s%d, s%d, 15\ns_add_u32 s%d, s%d, s%d" % (sOff, sOff, sOff, sOff, sWoB)] + (["s_add_u32 s%d, s%d, %d" % (sOff, sOff, hh * 256 + kbase)] if hh or kbase else [])
    for s_ in range(p3_0):
        st = SCH[s_]
        if hasS(s_): a("s_barrier")
        sbst(a, s_)
        fk = 1 + 4 * (s_ - FS) if FS >= 0 and FS <= s_ <= FS + 1 else None
        if fk: stamp(a, fk, True)
        if FS >= 0 and s_ == FS + 2: stamp(a, 9, True)
        n_iss = len(st["iss"][0])
        c = st["cons"]
        if c is not None and c < 16:
            a("s_call_b64 s[%d:%d], L_tile" % (sRet2, sRet2 + 1))
            setdelta(c)
        if fk: stamp(a, fk + 1, True)
        if hasB(s_): a("s_barrier")
        issue_pieces(a, st["iss"][0])
        if fk: stamp(a, fk + 2, True)
        if c == 15: stamp(a, 3)
        s15 = max(cstep[15], 16)
        if s_ == cstep[15] + 1:
            o_final(a)
            if dbg: debug_dump(a, 1, True)
        if s_ == s15 + 2:
            a("s_mul_i32 s%d, s%d, 12288" % (sT0, sW))
            publish(a, sT0)
            a("s_waitcnt lgkmcnt(0)")
            zero(a, ACC, 96)
        if s_ == s15 + 3:
            zero(a, ACC + 96, 96)
            a("v_subrev_u32 v%d, s%d, v%d" % (vTc, sMK, vT))
            a("s_sub_u32 s%d, s%d, %d" % (sT0, sMW, SETSZ - 2 * BLK))
            a("v_add_u32 v%d, s%d, v%d" % (vTc, sT0, vTc))
        if s_ == p3_0 - 2:
            emit(a, wo_off(0, 0) + woT(sMW, 0) + wo_off(0, 1) + woT(sMW, BLK)); n_iss += 16
        if dbg and s_ == cstep[15] + 1: n_iss = 0
        a("s_waitcnt vmcnt(%d)" % n_iss)
        if fk: stamp(a, fk + 3, True)
    stamp(a, 4)
    a("s_mov_b32 s%d, 0" % sCnt)
    a.label("L_G0_o")
    for hh in range(2):
        if ONE: cond_lt(a, sCnt, 2 - hh, lambda: a("s_barrier"))
        else: a("s_barrier")
        if hh == 0:
            a("s_add_u32 s%d, s%d, s%d\ns_and_b32 s%d, s%d, 7\ns_mul_i32 s%d, s%d, 3072" % (sT0, sH0, sCnt, sT0, sT0, sT0, sT0))
            a("v_add_u32 v%d, s%d, v%d" % (vXa, sT0, vLane16))
        def iss():
            def body():
                a("s_add_u32 s%d, s%d, s%d\ns_add_u32 s%d, s%d, 1\ns_and_b32 s%d, s%d, 7" % (sOff, sH0, sCnt, sOff, sOff, sOff, sOff))
                a("s_lshl_b32 s%d, s%d, 15\ns_add_u32 s%d, s%d, s%d" % (sOff, sOff, sOff, sOff, sWoB))
                if hh: a("s_add_u32 s%d, s%d, 256" % (sOff, sOff))
                emit(a, woT(sMW, hh * BLK))
            fs0(1)
            cond(a, sCnt, 7, body, eq=False)
            fs0(2)
            if B2 and not LATEB: a("s_barrier")
        def fs0(k):
            F3 = int(opt("f3", -1))
            if F3 >= 0: cond(a, sCnt, F3 // 2, lambda: stamp(a, 1 + 4 * hh + k, True))
        fs0(0)
        projT(a, (0, 1024, 2048), hh * BLK, vTc, iss, lambda t, qt: acc(t, qt) + 96 * hh, AF0, BF0)
        if B2 and LATEB: a("s_barrier")
        if hh == 0: cond(a, sCnt, 7, lambda: a("s_waitcnt vmcnt(0)"))
        a("s_waitcnt vmcnt(8)")
    a("s_add_u32 s%d, s%d, 1\ns_cmp_lt_u32 s%d, 8\ns_cbranch_scc1 L_G0_o" % (sCnt, sCnt, sCnt))
    a("s_nop 7")
    for s in range(4):
        for qt in range(3):
            d = AF0 + (s * 3 + qt) * 4
            for h2 in range(2):
                src = acc(2 * s + h2, qt) + 96
                a("v_cvt_pk_bf16_f32 v%d, v%d, v%d" % (d + 2 * h2, src, src + 1))
                a("v_cvt_pk_bf16_f32 v%d, v%d, v%d" % (d + 2 * h2 + 1, src + 2, src + 3))
    def tail_params(cbexpr):
        a(cbexpr)
        a("s_lshl_b32 s%d, s%d, 19\ns_lshl_b32 s%d, s%d, 8\ns_add_u32 s%d, s%d, s%d\ns_add_u32 s%d, s%d, %d" % (sWoB, sG, sT1, sChN, sWoB, sWoB, sT1, sWoB, sWoB, 256 * 1024))
        a("s_mul_i32 s%d, s%d, %d\ns_add_u32 s%d, s%d, %d" % (sMW, sW, BLK, sMW, sMW, KVB))
    tail_params("s_lshl_b32 s%d, s%d, 1" % (sChN, sW))
    TS = (1, 2, 0)
    def tail_blk(j): return wo_off(j, 0) + woT(sMW, TS[j % 3] * SETSZ)
    for s_ in range(p3_0 + 16, NS):
        a("s_barrier")
        if s_ == p3_0 + 16:
            a("s_mul_i32 s%d, s%d, 12288\ns_add_u32 s%d, s%d, %d" % (sT0, sW, sT0, sT0, HO))
            publish(a, sT0, AF0)
            a("s_waitcnt lgkmcnt(0)")
        for j in range(2):
            if s_ == max(cstep[37 + j] + 1, p3_0 + 16): emit(a, tail_blk(j))
        if hasB(s_): a("s_barrier")
    stamp(a, 5)
    def p3_addr():
        a("v_bfe_u32 v%d, v0, 2, 3" % T)
        a("v_mul_u32_u24 v%d, %d, v%d" % (vgK0, PIECE, T))
        a("v_lshrrev_b32 v%d, 5, v0\nv_lshl_add_u32 v%d, v%d, 9, v%d" % (T, vgK0, T, vgK0))
        a("v_and_b32 v%d, 3, v0\nv_lshl_add_u32 v%d, v%d, 3, v%d" % (T, vgK0, T, vgK0))
        a("v_add_u32 v%d, s%d, v%d" % (vgK0, sMW, vgK0))
        a("v_add_u32 v%d, %d, v%d" % (vgK1, 2 * SETSZ, vgK0))
    p3_addr()
    a.label("L_P3")
    def oad(j):
        return ["s_add_u32 s%d, s%d, %d\ns_and_b32 s%d, s%d, 7" % (sT0, sH0, j, sT0, sT0), "s_mul_i32 s%d, s%d, 3072" % (sT0, sT0),
                "v_add_u32 v%d, s%d, v%d" % (vXa, sT0, vLane16)]
    def treads(j):
        fa, fb = fset(j & 1)
        se = TS[j % 3]
        return ["ds_read_b128 %s, v%d offset:%d" % (v4(fb + qt * 4), vXa, qt * 1024) for qt in range(3)] + tr_reads(SETSZ * (se & 1), range(8), fa, vgK0 if se < 2 else vgK1)
    for x in oad(0): a(x)
    a("s_waitcnt vmcnt(8) lgkmcnt(0)\ns_barrier")
    stamp(a, 6)
    for r in treads(0): a(r)
    for x in oad(1): a(x)
    emit(a, tail_blk(2))
    a("s_waitcnt vmcnt(8)")
    WOV = "nowov" not in ARGS
    PK = F
    for j in range(8):
        issue = tail_blk(j + 3) if j + 3 < 8 else []
        if j == 6 and WOV:
            issue = ["s_add_u32 s%d, s%d, 32\ns_lshl_b32 s%d, s%d, 2\ns_add_u32 s%d, s%d, s%d" % (sBuf, sB, sBuf, sBuf, sBuf, sBuf, sChN),
                     "s_mul_i32 s%d, s%d, %d\ns_lshl_b32 s%d, s%d, 10\ns_add_u32 s%d, s%d, s%d" % (sBuf, sBuf, 12 * 8192, sT1, sG, sBuf, sBuf, sT1),
                     "s_lshr_b32 s%d, s%d, 1\ns_and_b32 s%d, s%d, 1\ns_cmp_eq_u32 s%d, s%d\ns_cselect_b32 s%d, s%d, 2" % (sT1, sG, sRot, sG, sT1, sChN, sRot, sRot),
                     "s_cmp_eq_u32 s%d, 1\ns_cselect_b32 s%d, 0x40000000, s%d" % (sRot, sSet, sBuf),
                     "s_cmp_eq_u32 s%d, 0\ns_cselect_b32 s%d, 0x40000000, s%d" % (sRot, sBuf, sBuf)]
        a("s_waitcnt lgkmcnt(0)")
        fa, fb = fset(j & 1)
        main = [mf(acc(t, qt), fa + t * 4, fb + qt * 4, acc(t, qt)) for t in range(8) for qt in range(3)]
        if j == 7 and WOV:
            def pk(i):
                s, qt = i // 3, i % 3
                d = PK + 4 * i
                out = []
                for hh in range(2):
                    src = acc(2 * s + hh, qt)
                    out.append("v_cvt_pk_bf16_f32 v%d, v%d, v%d" % (d + 2 * hh, src, src + 1))
                    out.append("v_cvt_pk_bf16_f32 v%d, v%d, v%d" % (d + 2 * hh + 1, src + 2, src + 3))
                out.append("s_add_u32 s%d, s%d, %d\nbuffer_store_dwordx4 %s, v%d, %s, s%d offen sc1" % (sT1, sBuf if i < 6 else sSet, i * 8192, v4(d), vLane16, srd(sWS), sT1))
                return out
            weave(a, main, (pk(0) + pk(1) + pk(2), 10, 16), (pk(3) + pk(4) + pk(5), 16, 22))
            stamp(a, 7)
            for i in range(6, 12):
                for x in pk(i): a(x)
            own_write(a, 1, PK)
            continue
        weave(a, main, (treads(j + 1) if j < 7 else [], 0, 17), (issue, 0, 24), (oad(j + 2) if j < 6 else [], 18, 24))
        if j < 6: a("s_waitcnt vmcnt(%d)" % (8 if j < 5 else 0))
        if j == int(opt("abar", -1)): a("s_barrier")
    if not WOV:
        stamp(a, 7)
        store_partial(a, 1, sChN)
        own_write(a, 1)
    tail(a, True)

    a.label("L_G1")
    b_kv_params(a, -2)
    if "notlb" not in ARGS:
        a("v_mov_b32 v26, 0\ns_mov_b64 exec, 1")
        a("buffer_load_dword v27, v26, %s, s%d offen nt" % (srd(sK), sKV))
        a("buffer_load_dword v27, v26, %s, s%d offen nt" % (srd(sV), sKV))
        a("s_lshl_b32 s%d, s2, 17" % sT0)
        a("buffer_load_dword v27, v26, %s, s%d offen nt" % (srd(sXI), sT0))
        a("s_mov_b32 s%d, s%d\ns_mov_b32 s%d, s%d" % (sXI, sPtr + 2, sXI + 1, sPtr + 3))
        a("buffer_load_dword v27, v26, %s, s%d offen nt" % (srd(sXI), sT0))
        a("s_lshl_b32 s%d, s%d, 19" % (sT0, sG))
        a("buffer_load_dword v27, v26, %s, s%d offen" % (srd(sWO), sT0))
        a("s_mov_b64 exec, -1")
    if "wqpf" in ARGS:
        def pfB():
            a("v_lshrrev_b32 v26, 2, v0\nv_and_b32 v28, 3, v0\nv_lshlrev_b32 v28, 7, v28\nv_lshl_add_u32 v26, v26, 13, v28")
            a("s_lshl_b32 s%d, s%d, 17\ns_lshl_b32 s%d, s%d, 10\ns_add_u32 s%d, s%d, s%d\ns_add_u32 s%d, s%d, 512" % (sT0, sB, sT1, sG, sT0, sT0, sT1, sT0, sT0))
            a("buffer_load_dword v27, v26, %s, s%d offen" % (srd(sWQ), sT0))
        cond(a, sW, 2, pfB)
    rows_at = [int(c) for c in opt("pf", "579")]
    for i_ in range(9):
        a("s_barrier")
        for r_ in range(3):
            if rows_at[r_] == i_: issue_pieces(a, [(r_, p) for p in range(16)])
        if i_ == 0:
            a("s_waitcnt vmcnt(0)")
            zero(a, ACC, 96)
    assert rows_at[2] >= 7
    REV = "norev" not in ARGS
    a("s_add_u32 s%d, s%d, %d\ns_and_b32 s%d, s%d, 7" % (sCh, sH0, 7 if REV else 6, sCh, sCh))
    for k in range(2):
        for x in wq_off(sCh, 0, k): a(x)
        emit(a, wqT(sMW, k * BLK))
    late_rows = [r_ for r_ in range(3) if rows_at[r_] == 9]
    a("s_waitcnt vmcnt(32)")
    assert len(late_rows) <= 1
    for r_ in late_rows: issue_pieces(a, [(r_, p) for p in range(16)])
    a("s_and_b32 s%d, s%d, 1\ns_mul_i32 s%d, s%d, %d\ns_add_u32 s%d, s%d, s%d" % (sT1, sW, sT0, sT1, 3 * 8192, sXB, sXB, sT0))
    a("s_mul_i32 s%d, s%d, 3072" % (sWoB, sT1))
    a("v_add_u32 v%d, s%d, v%d" % (vTc, sMW, vT))
    a("s_mov_b32 s%d, %d\ns_mov_b32 s%d, 0" % (sBuf, (3 if REV else 2) * XC, sCnt))
    assert 0 not in late_rows
    a("s_waitcnt vmcnt(%d)" % (8 + 16 * len(late_rows)))
    def qloop(lab, regpath):
        a.label(lab)
        inc = 7 if (REV and not regpath) else 1
        for par in range(2):
            if ONE:
                if par == 0: cond(a, sCnt, 0, lambda: a("s_barrier"))
                cond(a, sCnt, 7, lambda: a("s_barrier"))
            else: a("s_barrier")
            def fst(k):
                if FS >= 0: cond(a, sCnt, FS // 2, lambda: stamp(a, 1 + 4 * par + k, True))
            fst(0)
            for x in xaddr(par, sBuf): a(x)
            xlate = "xlate" in ARGS
            def xs():
                a("s_xor_b32 s%d, s%d, %d\ns_add_u32 s%d, s%d, s%d" % (sN, sBuf, XC if regpath else (2 * XC) ^ (3 * XC), sN, sN, sWoB))
                out = ["s_add_u32 s%d, s%d, %d\ns_and_b32 s%d, s%d, 7" % (sChN, sCh, inc, sChN, sChN)]
                if regpath:
                    xp(out, sChN, 0, sX, 0, XNT)
                    for x in out: a(x)
                    o2 = []; xp(o2, sChN, 4, sX, 0, XNT)
                    cond_lt(a, sW, 2, lambda: a(o2[0]))
                else:
                    for p in range(3): xp(out, sChN, p, sX, 0, XNT)
                    for x in out: a(x)
            def xcond():
                l = a.newlabel("L_nx")
                a("s_sub_u32 s%d, s%d, 1\ns_cmp_lt_u32 s%d, 6\ns_cbranch_scc0 %s" % (sT0, sCnt, sT0, l))
                xs()
                a.label(l)
            def iss():
                xpar = 1 if ("xalt" in ARGS and not regpath) or ("xalt2" in ARGS and regpath) else 0
                if par == xpar and not xlate: xcond()
                def body():
                    for x in wq_off(sCh, inc, par): a(x)
                    emit(a, wqR(LB[par]) if regpath else wqT(sMW, par * BLK))
                fst(1)
                cond(a, sCnt, 7, body, eq=False)
                fst(2)
                if not LATEB: barB()
            def barB():
                if B2: a("s_barrier")
                if par == 0 and xlate: xcond()
            if regpath and OLDR: projR(a, (0, 2048, 4096), LB[par], iss)
            elif regpath: projR2(a, (0, 2048, 4096), QF, (232, 236, 240), vXa, iss, NF, barB)
            else:
                projT(a, (0, 2048, 4096), par * BLK, vTc, iss)
                if LATEB: barB()
            if par == 0 and xlate:
                l1_ = a.newlabel("L_v"); l2_ = a.newlabel("L_v")
                a("s_sub_u32 s%d, s%d, 1\ns_cmp_lt_u32 s%d, 6\ns_cbranch_scc0 %s" % (sT0, sCnt, sT0, l1_))
                a("s_waitcnt vmcnt(%d)\ns_branch %s" % (9 if regpath else 11, l2_))
                a.label(l1_)
                cond(a, sCnt, 7, lambda: a("s_waitcnt vmcnt(0)"))
                a("s_waitcnt vmcnt(8)")
                a.label(l2_)
            else:
                if par == 0: cond(a, sCnt, 7, lambda: a("s_waitcnt vmcnt(0)"))
                a("s_waitcnt vmcnt(8)")
            if regpath and not OLDR:
                if par == 0: perm_all(a, LB[1], QF)
                else: cond(a, sCnt, 7, lambda: perm_all(a, LB[0], QF), eq=False)
            fst(3)
        a("s_add_u32 s%d, s%d, %d\ns_and_b32 s%d, s%d, 7" % (sCh, sCh, inc, sCh, sCh))
        a("s_xor_b32 s%d, s%d, %d" % (sBuf, sBuf, XC if regpath else (2 * XC) ^ (3 * XC)))
        a("s_add_u32 s%d, s%d, 1\ns_cmp_lt_u32 s%d, 8\ns_cbranch_scc1 %s" % (sCnt, sCnt, sCnt, lab))
    qloop("L_G1_q", False)
    stamp(a, 1)
    assert not SCH[16]["iss"][1] and not SCH[17]["iss"][1] and not SCH[18]["iss"][1]
    a("s_barrier")
    q_final_T(a)
    if dbg: debug_dump(a, 0, True)
    a("s_barrier")
    att_init(a)
    def chk():
        lp = a.newlabel("L_st"); le = a.newlabel("L_se")
        dbg_srd(a)
        a("s_lshl_b32 s%d, s%d, 3" % (sT1, sB))
        a("v_mov_b32 v%d, 0\ns_mov_b32 s%d, 200000" % (T + 2, sT2))
        a.label(lp)
        a("s_sub_u32 s%d, s%d, 1\ns_cbranch_scc1 %s" % (sT2, sT2, le))
        a("buffer_load_dword v%d, v%d, %s, s%d offen sc1" % (T + 3, T + 2, srd(sXI), sT1))
        a("s_waitcnt vmcnt(0)")
        a("v_readfirstlane_b32 s%d, v%d" % (sT0, T + 3))
        a("s_and_b32 s%d, s%d, 7\ns_cbranch_scc0 %s" % (sT0, sT0, le))
        a("s_sleep 8\ns_branch %s" % lp)
        a.label(le)
    cond(a, sW, 2, chk)
    b_kv_params(a)
    a("s_sub_u32 s%d, s%d, %d" % (sT0, sMK, 2 * BLK))
    a("v_add_u32 v%d, s%d, v%d\nv_add_u32 v%d, s%d, v%d" % (vT, sT0, vT, vK, sT0, vK))
    a("s_and_b32 s%d, s%d, 7" % (sH0, sB))
    tail_params("s_lshl_b32 s%d, s%d, 1\ns_sub_u32 s%d, s%d, 3" % (sChN, sW, sChN, sChN))
    stamp(a, 2)
    for s_ in range(18, NS):
        st = SCH[s_]
        if hasS(s_): a("s_barrier")
        sbst(a, s_)
        F3 = int(opt("f3", -1))
        fk = 1 + 4 * (s_ - p3_0 - F3) if F3 >= 0 and F3 <= s_ - p3_0 <= F3 + 1 else None
        if fk: stamp(a, fk, True)
        if F3 >= 0 and s_ == p3_0 + F3 + 2: stamp(a, 9, True)
        c = st["cons"]
        n_iss = len(st["iss"][1])
        wop = int(opt("wopf", 19))
        if s_ in (wop, wop + 1):
            k_ = 18 if s_ == wop else 8
            a("s_mov_b32 s%d, s%d\ns_mov_b32 s%d, s%d\ns_mov_b32 s%d, 0x%x\ns_mov_b32 s%d, 0x20000" % (sXI, sPtr + k_, sXI + 1, sPtr + k_ + 1, sXI + 2, SZ["Awo"], sXI + 3))
            a("s_lshl_b32 s%d, s%d, 1\ns_and_b32 s%d, s%d, 1\ns_add_u32 s%d, s%d, s%d\ns_lshl_b32 s%d, s%d, 13" % (sT0, sB, sT1, sW, sT0, sT0, sT1, sT0, sT0))
            a("s_lshl_b32 s%d, s%d, 19\ns_add_u32 s%d, s%d, s%d" % (sT1, sG, sT0, sT0, sT1))
            a("v_lshlrev_b32 v%d, 7, v0" % T)
            a("buffer_load_dword v%d, v%d, %s, s%d offen" % (T + 1, T, srd(sXI), sT0))
            n_iss += 1
        for j in range(2):
            if s_ == max(cstep[37 + j] + 1, p3_0 + 16): emit(a, tail_blk(j)); n_iss += 8
        if c is not None and c >= 24:
            if c == 24: stamp(a, 4)
            if c == 39:
                assert not st["iss"][1]
                p3_addr()
            a("s_call_b64 s[%d:%d], L_tile" % (sRet2, sRet2 + 1))
            if c < 39: setdelta(c)
        if fk: stamp(a, fk + 1, True)
        if hasB(s_): a("s_barrier")
        if fk: stamp(a, fk + 2, True)
        issue_pieces(a, st["iss"][1])
        if fk: stamp(a, fk + 3, True)
        if s_ < cstep[39]: a("s_waitcnt vmcnt(%d)" % n_iss)
    stamp(a, 5)
    o_final(a)
    if dbg: debug_dump(a, 1, True)
    a("s_and_b32 s%d, s%d, 1\ns_mul_i32 s%d, s%d, 12288\ns_add_u32 s%d, s%d, %d" % (sT0, sW, sT0, sT0, sT1, sT0, HO))
    a("v_add_u32 v%d, s%d, v%d" % (vTmpB, sT1, vLane16))
    HB_ = F
    for i in range(12): a("ds_read_b128 %s, v%d offset:%d" % (v4(HB_ + 4 * i), vTmpB, i * 1024))
    publish(a, sT0)
    for s in range(4):
        a("s_waitcnt lgkmcnt(%d)" % min(15, 12 + 9 - 3 * s))
        for qt in range(3):
            d = HB_ + (s * 3 + qt) * 4
            for h2 in range(2):
                dst = acc(2 * s + h2, qt)
                for e in range(2):
                    a("v_lshlrev_b32 v%d, 16, v%d" % (dst + 2 * e, d + 2 * h2 + e))
                    a("v_and_b32 v%d, 0xffff0000, v%d" % (dst + 2 * e + 1, d + 2 * h2 + e))
    a("s_branch L_P3")

    a.label("L_A")
    def g0():
        a("v_mov_b32 v16, %d\nv_mov_b32 v18, 0\nv_mov_b32 v19, 0\nv_mov_b32 v21, 0" % SYNC)
        a("s_lshl_b32 s%d, s2, 7\ns_add_u32 s%d, s%d, 0x%x" % (sT1, sT1, sT1, GO))
        a("buffer_load_dword v20, v18, %s, s%d offen sc1" % (srd(sWS), sT1))
        a("buffer_load_dword v28, v18, %s, s%d offen offset:4 sc1" % (srd(sWS), sT1))
        a("v_mov_b32 v26, 0\nv_mov_b32 v27, 0\nv_mov_b32 v29, 0")
        dbg_srd(a)
        a("s_lshl_b32 s%d, s%d, 3" % (sT1, sB))
        a("v_mov_b32 v22, 1")
        a("s_waitcnt vmcnt(0)")
        a("ds_write_b128 v16, v[18:21]\nds_write_b128 v16, v[26:29] offset:16")
        a("s_mov_b64 exec, 1")
        a("buffer_atomic_add v22, v18, %s, s%d offen sc1" % (srd(sXI), sT1))
        a("s_mov_b64 exec, -1")
        a("s_waitcnt lgkmcnt(0)")
    cond(a, sW, 0, g0)
    a("s_mov_b32 s%d, 0x05040100\ns_mov_b32 s%d, 0x07060302" % (sSelLo, sSelHi))
    a("v_lshrrev_b32 v24, 4, v0\nv_and_b32 v25, 15, v0\nv_lshlrev_b32 v25, 4, v25")
    a("v_lshl_add_u32 v%d, v24, 16, v25\nv_lshl_add_u32 v%d, v24, 12, v25" % (vgWq, vgWo))
    a("s_lshl_b32 s%d, s%d, 13\ns_add_u32 s%d, s%d, s%d" % (sT0, sW, sXB, sXB, sT0))
    a("s_lshl_b32 s%d, s%d, 10" % (sWoB, sW))
    a("s_mov_b32 s%d, s%d" % (sCh, sH0))
    if "notlb" not in ARGS:
        a("v_mov_b32 v26, 0\ns_mov_b64 exec, 1")
        a("buffer_load_dword v27, v26, %s, s%d offen" % (srd(sX), sXB))
        a("s_lshl_b32 s%d, s%d, 20" % (sT0, sW))
        a("buffer_load_dword v27, v26, %s, s%d offen" % (srd(sWQ), sT0))
        a("s_lshl_b32 s%d, s%d, 19" % (sT0, sG))
        a("buffer_load_dword v27, v26, %s, s%d offen" % (srd(sWO), sT0))
        a("s_mov_b64 exec, -1")
    if "wqpf" in ARGS:
        def pfA():
            a("v_lshrrev_b32 v26, 3, v0\nv_and_b32 v28, 7, v0\nv_lshlrev_b32 v28, 7, v28\nv_lshl_add_u32 v26, v26, 13, v28")
            a("s_lshl_b32 s%d, s%d, 1\ns_and_b32 s%d, s%d, 1\ns_add_u32 s%d, s%d, s%d\ns_lshl_b32 s%d, s%d, 16" % (sT0, sB, sT1, sW, sT0, sT0, sT1, sT0, sT0))
            a("s_lshl_b32 s%d, s%d, 10\ns_add_u32 s%d, s%d, s%d" % (sT1, sG, sT0, sT0, sT1))
            a("buffer_load_dword v27, v26, %s, s%d offen" % (srd(sWQ), sT0))
        cond_lt(a, sW, 2, pfA)
    aw = int(opt("aw", 2))
    for i_ in range(9):
        a("s_barrier")
        if i_ == 1:
            a("s_waitcnt vmcnt(0)")
            zero(a, ACC, 96)
        if i_ == int(opt("xt", -1)):
            def touch():
                a("v_lshlrev_b32 v%d, 7, v0" % T)
                a("s_lshl_b32 s%d, s%d, 13\ns_add_u32 s%d, s%d, s%d" % (sT0, sW, sT0, sT0, sXB))
                a("buffer_load_dword v%d, v%d, %s, s%d offen" % (T + 1, T, srd(sX), sT0))
                a("s_add_u32 s%d, s%d, 8192" % (sT0, sT0))
                a("buffer_load_dword v%d, v%d, %s, s%d offen" % (T + 2, T, srd(sX), sT0))
            cond(a, sW, 3, touch, eq=False)
        if i_ == 6:
            for c_ in range(2):
                a("s_add_u32 s%d, s%d, %d" % (sN, sWoB, c_ * XC))
                out = ["s_add_u32 s%d, s%d, %d\ns_and_b32 s%d, s%d, 7" % (sChN, sCh, c_, sChN, sChN)]
                xp(out, sChN, 0, sX, 0, XNT)
                for x in out: a(x)
                o2 = []; xp(o2, sChN, 4, sX, 0, XNT)
                cond_lt(a, sW, 2, lambda: a(o2[0]))
        if i_ == aw:
            for k in range(2):
                for x in wq_off(sCh, 0, k): a(x)
                emit(a, wqR(LB[k]))
    a("s_mov_b32 s%d, 0\ns_mov_b32 s%d, 0" % (sBuf, sCnt))
    a("s_waitcnt vmcnt(8)")
    perm_all(a, LB[0], QF)
    qloop("L_A_q", True)
    stamp(a, 1)
    a0 = 16
    if cstep[16] > 16:
        a("s_barrier"); a0 = 17
    q_final_R(a)
    if dbg: debug_dump(a, 0, False)
    att_init(a)
    a("v_add_u32 v%d, %d, v%d\nv_add_u32 v%d, %d, v%d" % (vT, KVB + SETSZ, vT, vK, KVB + SETSZ, vK))
    a("s_lshl_b32 s%d, s%d, 19\ns_lshl_b32 s%d, s%d, 8\ns_add_u32 s%d, s%d, s%d" % (sWoB, sG, sT1, sW, sWoB, sWoB, sT1))
    a("s_and_b32 s%d, s%d, 3" % (sH0, sB))
    a("s_lshr_b32 s%d, s%d, 2" % (sSp, sB))
    a("s_and_b32 s%d, s%d, 7\ns_mul_i32 s%d, s%d, 3072" % (sChN, sB, sChN, sChN))
    a("s_lshl_b32 s%d, s2, 17\ns_lshr_b32 s%d, s%d, 1\ns_lshl_b32 s%d, s%d, 13\ns_add_u32 s%d, s%d, s%d" % (sBuf, sT0, sW, sT0, sT0, sBuf, sBuf, sT0))
    a_rot()
    a("s_mul_i32 s%d, s%d, %d\ns_add_u32 s%d, s%d, %d" % (sMK, sW, BLK, sMK, sMK, KVB))
    a("s_and_b32 s%d, s%d, 1\ns_cmp_eq_u32 s%d, 1" % (sT0, sW, sT0))
    a("s_cselect_b32 s%d, s%d, s%d\ns_cselect_b32 s%d, s%d, s%d\ns_mov_b32 s%d, 0x%x" % (sK, sPtr + 4, sPtr + 2, sK + 1, sPtr + 5, sPtr + 3, sK + 2, SZ["Ak"]))
    a("s_cselect_b64 vcc, -1, 0")
    a("v_cndmask_b32 v%d, v%d, v%d, vcc\nv_cndmask_b32 v%d, v%d, v%d, vcc" % (vgK0, vgK0, vgV, vgK1, vgK1, vgV))
    stamp(a, 2)
    for s_ in range(a0, p3_0):
        a("s_barrier")
        c = SCH[s_]["cons"]
        row = SCH[s_]["aiss"]
        if row is not None:
            for r in k_reads(0, (0,)): a(r)
            out = [row_off(row)]
            for j in range(8):
                out += ["s_add_u32 m0, s%d, %d" % (sMK, (row % 3) * SETSZ + j * (PIECE - 256)),
                        "buffer_load_dwordx4 v%d, %s, s%d offen offset:%d nt lds" % (vgK0 if j < 4 else vgK1, srd(sK), sOff, j * 256)]
            emit(a, out)
            a("s_call_b64 s[%d:%d], L_att1" % (sRet2, sRet2 + 1))
            a("s_waitcnt vmcnt(8)")
        elif c is not None and 16 <= c < 24:
            a("s_call_b64 s[%d:%d], L_att" % (sRet2, sRet2 + 1))
            a("s_waitcnt vmcnt(0)")
        if c is not None and 16 <= c < 24:
            if c < 23: setdelta(c)
            if c == 19 and opt("pause"): a("s_sleep %s" % opt("pause"))
            if opt("slowa"): a("s_sleep %s" % opt("slowa"))
    stamp(a, 3)
    def ks_calc(jreg, jadd):
        a("s_add_u32 s%d, s%d, %d" % (sT2, jreg, jadd))
        a("s_lshr_b32 s%d, s%d, 2\ns_add_u32 s%d, s%d, s%d\ns_and_b32 s%d, s%d, 3" % (sT0, sT2, sT0, sT0, sH0, sT0, sT0))
        a("s_add_u32 s%d, s%d, s%d\ns_and_b32 s%d, s%d, 3" % (sT1, sT2, sSp, sT1, sT1))
    def wo_issue(jadd, lb):
        ks_calc(sCnt, jadd)
        a("s_lshl_b32 s%d, s%d, 2\ns_add_u32 s%d, s%d, s%d\ns_lshl_b32 s%d, s%d, 15\ns_add_u32 s%d, s%d, s%d" % (sOff, sT0, sOff, sOff, sT1, sOff, sOff, sOff, sOff, sWoB))
        emit(a, woR(lb))
    def jit(jadd, bufY):
        ks_calc(sCnt, jadd)
        a("s_mov_b32 s%d, %s" % (sN, ("s%d" % sChN) if bufY else str(SP)))
        a("s_call_b64 s[%d:%d], L_jit" % (sRet2, sRet2 + 1))
    a("s_barrier")
    a("v_mov_b32 v2, v%d" % vgWo)
    a("s_mov_b32 s%d, 0" % sCnt)
    wo_issue(0, LB[0]); wo_issue(1, LB[1])
    if B2: a("s_barrier")
    o_final(a)
    if dbg: debug_dump(a, 1, False)
    stamp(a, 4)
    a("s_barrier")
    jit(0, False)
    if B2: a("s_barrier")
    zero(a, ACC, 96)
    a("s_waitcnt vmcnt(0)")
    perm_all(a, LB[0], FR)
    a.label("L_A_o")
    for par in range(2):
        if ONE:
            if par == 0: cond(a, sCnt, 0, lambda: a("s_barrier"))
            cond(a, sCnt, 14, lambda: a("s_barrier"))
        else: a("s_barrier")
        a("v_add_u32 v3, %s, v%d" % (("s%d" % sChN) if par else str(SP), vLane16))
        def dojit():
            if par == 0:
                a("s_cmp_eq_u32 s%d, 14\ns_cselect_b32 s%d, %d, s%d" % (sCnt, sChN, WR + 24576, sChN))
                jit(1, True)
            else: cond(a, sCnt, 14, lambda: jit(2, False), eq=False)
        JL = "jitlate" in ARGS
        if not LATEB and not JL: dojit()
        def fsA(k):
            F3 = int(opt("f3", -1))
            if F3 >= 0: cond(a, sCnt, F3 - 2, lambda: stamp(a, 1 + 4 * par + k, True))
        fsA(0)
        def issA():
            fsA(1)
            cond(a, sCnt, 14, lambda: wo_issue(2 + par, LB[par]), eq=False)
            fsA(2)
            if B2 and not LATEB: a("s_barrier")
            if JL: dojit()
        def barA():
            if B2: a("s_barrier")
            dojit()
        if OLDR:
            a("v_mov_b32 v%d, v3" % vXa)
            projR(a, (0, 1024, 2048), LB[par], issA)
        else: projR2(a, (0, 1024, 2048), FR, (248, 252, 4), 3, issA, NF, barA)
        if par == 0: cond(a, sCnt, 14, lambda: a("s_waitcnt vmcnt(0)"))
        a("s_waitcnt vmcnt(8)")
        if OLDR: pass
        elif par == 0: perm_all(a, LB[1], FR)
        else: cond(a, sCnt, 14, lambda: perm_all(a, LB[0], FR), eq=False)
        fsA(3)
    a("s_add_u32 s%d, s%d, 2\ns_cmp_lt_u32 s%d, 16\ns_cbranch_scc1 L_A_o" % (sCnt, sCnt, sCnt))
    stamp(a, 5)
    a("v_lshrrev_b32 v0, 4, v%d" % vLane16)
    ast = int(opt("ast", 0))
    if ast == 0: store_partial(a, 0, sW)
    for s_ in range(p3_0 + 18, NS): a("s_barrier")
    a("s_barrier")
    if ast == 1: store_partial(a, 0, sW)
    if int(opt("abar", -1)) >= 0: a("s_barrier")
    if ast == 2: store_partial(a, 0, sW)
    own_write(a, 0)
    tail(a, False)

    a.label("L_tile")
    a("s_setprio 1")
    for r in k_reads(2 * BLK, (0,)): a(r)
    a("s_branch L_att2")
    a.label("L_att")
    for r in k_reads(0, (0,)): a(r)
    a.label("L_att1")
    a("s_setprio 1")
    tile_fast(a, BLK, 2 * BLK)
    a.label("L_att2")
    tile_fast(a, 3 * BLK, None)
    a("s_setprio 0")
    a("s_setpc_b64 s[%d:%d]" % (sRet2, sRet2 + 1))
    a.label("L_jit")
    a("s_cmp_eq_u32 s%d, s%d\ns_cbranch_scc0 L_jit_r" % (sT0, sW))
    a("v_add_u32 v0, s%d, v%d" % (sN, vLane16))
    for sp in range(4):
        l = a.newlabel("L_j")
        if sp < 3: a("s_cmp_eq_u32 s%d, %d\ns_cbranch_scc0 %s" % (sT1, sp, l))
        for qt in range(3): a("ds_write_b128 v0, %s offset:%d" % (v4(qf(sp, qt)), qt * 1024))
        if sp < 3:
            a("s_branch L_jit_w")
            a.label(l)
    a.label("L_jit_w")
    a("s_waitcnt lgkmcnt(0)")
    a.label("L_jit_r")
    a("s_setpc_b64 s[%d:%d]" % (sRet2, sRet2 + 1))
    emit_stubs(a)
    slow_path(a)
    a.label("L_code_end")
    a("s_endpgm")

HDR = open("cdna_kernels/%s.s.ref" % NAME).read().split("; Override launch")[0]

def make(dbg=False):
    a = Asm()
    gen_main(a, dbg)
    rep = []
    lines = hazard.run(a.l, rep)
    for p in hazard.check_all_edges(lines): print("EDGE HAZARD", p)
    src = HDR + "; @launch grid=(256,1,1) block=(512,1,1) lds=%d\n" % LDS_BYTES
    src += ".amdgcn_target \"amdgcn-amd-amdhsa--gfx950\"\n" + "\n".join(lines) + "\n" + kernel_desc(KNAME, 256)
    print("nops inserted", rep, "lines", len(lines))
    return src

if __name__ == "__main__":
    dbg = "dbg" in ARGS
    out = opt("o", "k_dbg" if dbg else "k_st" if STAMP else "k")
    build(make(dbg), out, KNAME)
```
